```python
import torch

def _softmax(x, axis=-1):
    return torch.softmax(x, dim=axis)
def _gelu(x):
    return torch.nn.functional.gelu(x, approximate="tanh")
def _silu(x):
    return torch.nn.functional.silu(x)
def _sigmoid(x):
    return torch.sigmoid(x)
def _layernorm(x, axis=-1, eps=1e-5):
    m = x.mean(dim=axis, keepdim=True)
    v = x.var(dim=axis, keepdim=True, unbiased=False)
    return (x - m) / torch.sqrt(v + eps)
def _scatter_add(tgt, idx, src, axis=0):
    return tgt.clone().index_add_(axis, idx, src)
def _segment_sum(src, seg, n):
    out = torch.zeros((n,) + src.shape[1:], dtype=src.dtype)
    return out.index_add_(0, seg, src)
def _pad(x, pw):
    flat = tuple(v for pair in reversed(pw) for v in pair)
    return torch.nn.functional.pad(x, flat)

kernel_name = 'standalone__mixer_token_mlp__prompt'

def setup_inputs():

    _w = (lambda a: (lambda t: t.to(torch.bfloat16) if t.is_floating_point() else t)(torch.as_tensor(a)))
    B, S, D, F = 1, 2048, 640, 1536
    return {
        "x": _w((lambda *s: torch.randn(*s, dtype=torch.bfloat16) * 0.05)(B, S, D)),
        "w1": _w((lambda *s: torch.randn(*s, dtype=torch.bfloat16) * 0.2)(S, F) * (S ** -0.5)),
        "b1": _w((lambda *s: torch.randn(*s, dtype=torch.bfloat16) * 1.6)(F) * 0.02),
        "w2": _w((lambda *s: torch.randn(*s, dtype=torch.bfloat16) * 0.05)(F, S) * (F ** -0.5)),
        "b2": _w((lambda *s: torch.randn(*s, dtype=torch.bfloat16) * 0.05)(S) * 0.02),
    }

def reference(x, w1, b1, w2, b2):
    B, S, D = x.shape
    h = _layernorm(x, axis=-1)
    u = torch.einsum("bsd,sf->bdf", h, w1) + b1
    u = _gelu(u)
    y = torch.einsum("bdf,fs->bds", u, w2) + b2
    return (lambda x, *d: x.permute(*d))(y, 0, 2, 1)
```

```python
import struct

HEADER = """; Kernarg layout for this problem (64 bytes, ptrs only, base s[0:1]):
"""


def f32(x):
    return "0x%08x" % struct.unpack("<I", struct.pack("<f", x))[0]


class Asm:
    def __init__(self):
        self.lines = []

    def __call__(self, s, *a):
        for ln in s.strip("\n").split("\n"):
            ln = ln.strip()
            if not ln:
                continue
            if ln.endswith(":") or ln.startswith("."):
                self.lines.append(ln)
            else:
                self.lines.append("    " + ln)

    def c(self, s):
        self.lines.append("    ; " + s)

    def text(self):
        return "\n".join(self.lines) + "\n"


def v(i, n=1):
    return "v%d" % i if n == 1 else "v[%d:%d]" % (i, i + n - 1)


def a(i, n=1):
    return "a%d" % i if n == 1 else "a[%d:%d]" % (i, i + n - 1)


def s(i, n=1):
    return "s%d" % i if n == 1 else "s[%d:%d]" % (i, i + n - 1)


def kernel_begin(A, name):
    A(".text")
    A(".globl %s" % name)
    A(".p2align 8")
    A(".type %s,@function" % name)
    A("%s:" % name)


def kernel_desc(A, name, vgpr, accum, sgpr=96):
    A('.section .rodata,"a"')
    A(".p2align 6")
    A(".amdhsa_kernel %s" % name)
    A(".amdhsa_next_free_vgpr %d" % vgpr)
    A(".amdhsa_next_free_sgpr %d" % sgpr)
    A(".amdhsa_accum_offset %d" % accum)
    A(".amdhsa_group_segment_fixed_size 0")
    A(".amdhsa_kernarg_size 64")
    A(".amdhsa_user_sgpr_count 2")
    A(".amdhsa_user_sgpr_kernarg_segment_ptr 1")
    A(".amdhsa_system_sgpr_workgroup_id_x 1")
    A(".amdhsa_float_denorm_mode_32 3")
    A(".end_amdhsa_kernel")


def interleave(main, fill, start=0, every=1, per=1):
    out = []
    fi = 0
    for i, m in enumerate(main):
        out.append(m)
        if i >= start and (i - start) % every == 0:
            for _ in range(per):
                if fi < len(fill):
                    out.append(fill[fi])
                    fi += 1
    out.extend(fill[fi:])
    return out
```

```python
import sys
from asmlib import *

S, D, F = 2048, 640, 1536
H_OFF = 0
G_OFF = 0x280000
KSTEP_B = 40960
LNP = 1344


def srd(A, dst, bytes_):
    A("s_and_b32 %s, %s, 0xffff" % (s(dst + 1), s(dst + 1)))
    A("s_mov_b32 %s, %d" % (s(dst + 2), bytes_))
    A("s_mov_b32 %s, 0x20000" % s(dst + 3))


def reduce32(A, x, t):
    for mod in ("quad_perm:[1,0,3,2]", "quad_perm:[2,3,0,1]", "row_half_mirror", "row_mirror"):
        A("s_nop 1")
        A("v_add_f32_dpp %s, %s, %s %s row_mask:0xf bank_mask:0xf" % (v(x), v(x), v(x), mod))
    A("v_mov_b32 %s, %s" % (v(t), v(x)))
    A("s_nop 1")
    A("v_permlane16_swap_b32 %s, %s" % (v(t), v(x)))
    A("s_nop 1")
    A("v_add_f32 %s, %s, %s" % (v(x), v(x), v(t)))


def gen_ln(A, name):
    kernel_begin(A, name)
    A("s_cmp_ge_u32 s2, 256")
    A("s_cbranch_scc1 L_ln_done")
    A("s_load_dwordx2 s[4:5], s[0:1], 0")
    A("s_load_dwordx2 s[8:9], s[0:1], 56")
    A("s_lshr_b32 s16, s2, 2")
    A("s_and_b32 s17, s2, 3")
    A("s_lshl_b32 s18, s16, 5")
    A("s_lshl_b32 s19, s17, 2")
    A("s_add_u32 s18, s18, s19")
    A("v_lshrrev_b32 v1, 5, v0")
    A("v_and_b32 v2, 31, v0")
    A("v_and_b32 v3, 3, v1")
    A("v_lshrrev_b32 v4, 2, v1")
    A("v_lshl_add_u32 v3, v4, 4, v3")
    A("v_add_u32 v3, s18, v3")
    A("v_mul_u32_u24 v3, 1280, v3")
    A("v_lshl_add_u32 v4, v2, 4, v3")
    A("v_lshl_add_u32 v5, v2, 3, v3")
    A("s_waitcnt lgkmcnt(0)")
    srd(A, 4, S * D * 2)
    A("buffer_load_dwordx4 v[10:13], v4, s[4:7], 0 offen")
    A("buffer_load_dwordx4 v[14:17], v4, s[4:7], 0 offen offset:512")
    A("buffer_load_dwordx2 v[18:19], v5, s[4:7], 0 offen offset:1024")
    srd(A, 8, S * D * 2)
    A("v_mul_u32_u24 v6, %d, v1" % LNP)
    A("v_lshl_add_u32 v7, v2, 3, v6")
    A("v_lshl_add_u32 v6, v2, 4, v6")
    A("v_and_b32 v40, 63, v0")
    A("v_lshrrev_b32 v41, 6, v0")
    A("v_and_b32 v42, 15, v0")
    A("v_lshrrev_b32 v43, 4, v40")
    A("v_readfirstlane_b32 s20, v41")
    A("v_lshrrev_b32 v44, 2, v42")
    A("v_mul_u32_u24 v44, %d, v44" % LNP)
    A("v_and_b32 v45, 3, v42")
    A("v_lshl_add_u32 v44, v45, 3, v44")
    A("v_lshl_add_u32 v44, v43, 5, v44")
    A("v_lshl_add_u32 v44, v41, 7, v44")
    A("v_lshlrev_b32 v45, 4, v42")
    A("v_lshl_add_u32 v45, v43, 10, v45")
    A("v_lshl_add_u32 v45, v41, 12, v45")
    A("s_mul_i32 s21, s16, %d" % KSTEP_B)
    A("s_lshl_b32 s22, s17, 8")
    A("s_add_u32 s21, s21, s22")
    A("s_add_u32 s22, s21, 16384")
    A("s_add_u32 s23, s21, 32768")
    A("s_waitcnt vmcnt(0)")
    for q in range(10):
        A("v_lshlrev_b32 %s, 16, %s" % (v(20 + 2 * q), v(10 + q)))
        A("v_and_b32 %s, 0xffff0000, %s" % (v(21 + 2 * q), v(10 + q)))
    A("v_add_f32 v8, v20, v21")
    A("v_add_f32 v9, v22, v23")
    for q in range(4, 20, 2):
        A("v_add_f32 v8, v8, %s" % v(20 + q))
        A("v_add_f32 v9, v9, %s" % v(21 + q))
    A("v_add_f32 v8, v8, v9")
    reduce32(A, 8, 9)
    A("v_mul_f32 v8, %s, v8" % f32(1.0 / 640))
    for q in range(20):
        A("v_sub_f32 %s, %s, v8" % (v(20 + q), v(20 + q)))
    A("v_mul_f32 v10, v20, v20")
    A("v_mul_f32 v11, v21, v21")
    for q in range(2, 20, 2):
        A("v_fmac_f32 v10, %s, %s" % (v(20 + q), v(20 + q)))
        A("v_fmac_f32 v11, %s, %s" % (v(21 + q), v(21 + q)))
    A("v_add_f32 v10, v10, v11")
    reduce32(A, 10, 11)
    A("v_mul_f32 v10, %s, v10" % f32(1.0 / 640))
    A("v_cvt_pk_bf16_f32 v11, v8, v10")
    A("v_lshlrev_b32 v12, 16, v11")
    A("v_and_b32 v11, 0xffff0000, v11")
    A("v_add_f32 v11, %s, v11" % f32(1e-5))
    A("v_cvt_pk_bf16_f32 v11, v11, v11")
    A("v_lshlrev_b32 v11, 16, v11")
    A("v_sqrt_f32 v11, v11")
    A("v_sub_f32 v12, v8, v12")
    A("v_cvt_pk_bf16_f32 v11, v11, v11")
    A("v_lshlrev_b32 v11, 16, v11")
    A("v_rcp_f32 v11, v11")
    A("s_nop 0")
    A("v_mul_f32 v12, v12, v11")
    for q in range(20):
        A("v_fma_f32 %s, %s, v11, v12" % (v(20 + q), v(20 + q)))
    for q in range(10):
        A("v_cvt_pk_bf16_f32 %s, %s, %s" % (v(20 + q), v(20 + 2 * q), v(21 + 2 * q)))
    A("ds_write_b128 v6, v[20:23]")
    A("ds_write_b128 v6, v[24:27] offset:512")
    A("ds_write_b64 v7, v[28:29] offset:1024")
    A("s_waitcnt lgkmcnt(0)")
    A("s_barrier")
    A("ds_read_b64_tr_b16 v[12:13], v44")
    A("ds_read_b64_tr_b16 v[14:15], v44 offset:%d" % (4 * LNP))
    A("ds_read_b64_tr_b16 v[16:17], v44 offset:512")
    A("ds_read_b64_tr_b16 v[18:19], v44 offset:%d" % (4 * LNP + 512))
    A("s_cmp_ge_u32 s20, 2")
    A("s_cbranch_scc1 L_ln_two")
    A("ds_read_b64_tr_b16 v[20:21], v44 offset:1024")
    A("ds_read_b64_tr_b16 v[22:23], v44 offset:%d" % (4 * LNP + 1024))
    A("s_waitcnt lgkmcnt(0)")
    A("buffer_store_dwordx4 v[20:23], v45, s[8:11], s23 offen")
    A("L_ln_two:")
    A("s_waitcnt lgkmcnt(0)")
    A("buffer_store_dwordx4 v[12:15], v45, s[8:11], s21 offen")
    A("buffer_store_dwordx4 v[16:19], v45, s[8:11], s22 offen")
    A("L_ln_done:")
    A("s_endpgm")
    kernel_desc(A, name, 48, 48, 32)


def gen_gemm(A, name, which, P=6, R=8):
    g1 = which == 1
    NS = 16 if g1 else 12
    NB = 4 if g1 else 5
    NO = NB
    pitch = 3072 if g1 else 4096
    nwg = 240 if g1 else 256
    PA = P + 1
    RING = R * 4096
    VW, VT, VA = 1, 5, 9
    WF = 16
    AB = 48
    VB = AB + PA * NB * 4
    L = "L_g%d_" % which

    def acc(q, o):
        return (q * NO + o) * 4

    kernel_begin(A, name)
    A("s_cmp_ge_u32 s2, %d" % nwg)
    A("s_cbranch_scc1 %sdone" % L)
    A("s_load_dwordx2 s[4:5], s[0:1], %d" % (8 if g1 else 24))
    A("s_load_dwordx2 s[8:9], s[0:1], 56")
    A("s_load_dwordx2 s[12:13], s[0:1], %d" % (56 if g1 else 40))
    A("s_load_dwordx2 s[16:17], s[0:1], %d" % (16 if g1 else 32))
    A("v_lshrrev_b32 v14, 6, v0")
    A("v_and_b32 v0, 63, v0")
    A("v_readfirstlane_b32 s20, v14")
    A("s_and_b32 s21, s2, 7")
    A("s_lshr_b32 s22, s2, 3")
    A("s_and_b32 s23, s21, 1")
    A("s_lshr_b32 s21, s21, 1")
    if g1:
        A("s_mul_i32 s24, s22, 52")
        A("s_lshr_b32 s24, s24, 8")
        A("s_mul_i32 s25, s24, 5")
        A("s_sub_u32 s25, s22, s25")
        A("s_mul_i32 s23, s23, 5")
        A("s_add_u32 s23, s23, s25")
        A("s_mul_i32 s21, s21, 6")
        A("s_add_u32 s21, s21, s24")
    else:
        A("s_lshr_b32 s24, s22, 2")
        A("s_and_b32 s25, s22, 3")
        A("s_lshl_b32 s23, s23, 2")
        A("s_add_u32 s23, s23, s25")
        A("s_lshl_b32 s21, s21, 3")
        A("s_add_u32 s21, s21, s24")
    A("s_mul_i32 s26, s20, %d" % (NS * 32 * pitch))
    A("s_lshl_b32 s24, s21, 7")
    A("s_add_u32 s26, s26, s24")
    A("s_mul_i32 s27, s20, %d" % (NS * KSTEP_B))
    A("s_mul_i32 s24, s23, %d" % (NB * 1024))
    A("s_add_u32 s27, s27, s24")
    A("s_mul_i32 s28, s20, %d" % RING)
    A("v_lshrrev_b32 v14, 3, v0")
    A("v_mul_u32_u24 v14, %d, v14" % pitch)
    A("v_bfe_u32 v15, v0, 1, 2")
    A("v_lshrrev_b32 v16, 4, v0")
    A("v_xor_b32 v15, v15, v16")
    A("v_lshl_add_u32 v14, v15, 5, v14")
    A("v_and_b32 v15, 1, v0")
    A("v_lshl_add_u32 %s, v15, 4, v14" % v(VW))
    for q in range(1, 4):
        A("v_add_u32 %s, %d, %s" % (v(VW + q), q * (8 * pitch - 1024), v(VW)))
    A("v_and_b32 v17, 15, v0")
    A("v_lshrrev_b32 v14, 2, v17")
    A("v_lshl_add_u32 v14, v16, 2, v14")
    A("v_bfe_u32 v15, v14, 1, 2")
    if not g1:
        A("v_xor_b32 v15, s20, v15")
    A("v_lshlrev_b32 v14, 7, v14")
    A("v_and_b32 v18, 3, v17")
    A("v_lshl_add_u32 v14, v18, 3, v14")
    A("v_add_u32 v14, s28, v14")
    for b in range(4):
        A("v_xor_b32 v18, %d, v15" % b)
        A("v_lshl_add_u32 %s, v18, 5, v14" % v(VT + b))
    A("v_lshlrev_b32 v14, 4, v0")
    for b in range(NB):
        if g1:
            A("s_xor_b32 s24, s20, %d" % b)
            A("s_lshl_b32 s24, s24, 10")
            A("v_add_u32 %s, s24, v14" % v(VA + b))
        else:
            A("v_add_u32 %s, %d, v14" % (v(VA + b), b * 1024))
    A("s_waitcnt lgkmcnt(0)")
    srd(A, 4, S * F * 2)
    if not g1:
        A("s_add_u32 s8, s8, %d" % G_OFF)
        A("s_addc_u32 s9, s9, 0")
    srd(A, 8, 64 * KSTEP_B if g1 else 48 * KSTEP_B)
    if g1:
        A("s_add_u32 s12, s12, %d" % G_OFF)
        A("s_addc_u32 s13, s13, 0")
    srd(A, 12, 48 * KSTEP_B if g1 else S * D * 2)
    srd(A, 16, F * 2 if g1 else S * 2)
    if g1:
        A("v_lshlrev_b32 v14, 3, v16")
        A("s_lshl_b32 s24, s21, 7")
        for o in range(4):
            A("buffer_load_dwordx2 %s, v14, s[16:19], s24 offen offset:%d" % (v(VB + 2 * o, 2), 32 * o))
    else:
        A("v_lshlrev_b32 v14, 1, v17")
        A("s_lshl_b32 s24, s21, 7")
        A("s_lshl_b32 s25, s20, 5")
        A("s_add_u32 s24, s24, s25")
        A("buffer_load_ushort %s, v14, s[16:19], s24 offen" % v(VB))

    def vm_issue(i):
        out = []
        out.append("s_add_u32 m0, s28, %d" % ((i % R) * 4096))
        out.append("s_nop 0")
        for q in range(4):
            out.append("buffer_load_dwordx4 %s, s[4:7], s26 offen offset:%d lds" % (v(VW + q), q * 1024))
        out.append("s_add_u32 s26, s26, %d" % (32 * pitch))
        for b in range(NB):
            out.append("buffer_load_dwordx4 %s, %s, s[8:11], s27 offen" % (v(AB + ((i % PA) * NB + b) * 4, 4), v(VA + b)))
        out.append("s_add_u32 s27, s27, %d" % KSTEP_B)
        return out

    def tr_reads(i):
        out = []
        for b in range(4):
            for t in range(2):
                out.append("ds_read_b64_tr_b16 %s, %s offset:%d" % (v(WF + (i & 1) * 16 + b * 4 + 2 * t, 2), v(VT + b), (i % R) * 4096 + t * 2048))
        return out

    def mfmas(i):
        out = []
        for q in range(4):
            for o in range(NO):
                wb, ab = (o, q) if g1 else (q, o)
                wr = v(WF + (i & 1) * 16 + wb * 4, 4)
                ar = v(AB + ((i % PA) * NB + ab) * 4, 4)
                c = "0" if i == 0 else a(acc(q, o), 4)
                if g1:
                    out.append("v_mfma_f32_16x16x32_bf16 %s, %s, %s, %s" % (a(acc(q, o), 4), wr, ar, c))
                else:
                    out.append("v_mfma_f32_16x16x32_bf16 %s, %s, %s, %s" % (a(acc(q, o), 4), ar, wr, c))
        return out

    PER = 4 + NB
    for i in range(P):
        for x in vm_issue(i):
            A(x)
    A("s_waitcnt vmcnt(%d)" % (NB + (P - 1) * PER))
    for x in tr_reads(0):
        A(x)
    for i in range(NS):
        A.c("step %d" % i)
        issued = min(NS, i + P)
        if i + 1 < NS:
            n = NB + (issued - (i + 2)) * PER
        else:
            n = 0
        A("s_waitcnt vmcnt(%d) lgkmcnt(0)" % n)
        fill = []
        if i + 1 < NS:
            fill += tr_reads(i + 1)
        if i + P < NS:
            fill += vm_issue(i + P)
        m = mfmas(i)
        for x in interleave(m, fill, 0, 1, 1 if len(fill) <= len(m) else 2):
            A(x)
    A("v_lshlrev_b32 v14, 4, v0")
    A("v_add_u32 v15, s28, v14")
    for q in range(1, 4):
        A("s_xor_b32 s24, s20, %d" % q)
        A("s_mul_i32 s24, s24, %d" % RING)
        A("v_add_u32 %s, s24, v14" % v(VT + q))
    A("s_nop 7")
    for q in range(1, 4):
        for o in range(NO):
            A("ds_write_b128 v15, %s offset:%d" % (a(acc(q, o), 4), ((q - 1) * NO + o) * 1024))
    A("s_waitcnt lgkmcnt(0)")
    A("s_barrier")
    RB = AB
    for o in range(NO):
        for q in range(1, 4):
            A("ds_read_b128 %s, %s offset:%d" % (v(RB + (o * 3 + q - 1) * 4, 4), v(VT + q), ((q - 1) * NO + o) * 1024))
    U = 16
    for o in range(NO):
        for r in range(4):
            A("v_accvgpr_read_b32 %s, %s" % (v(U + o * 4 + r), a(acc(0, o) + r)))
    if g1:
        for o in range(4):
            for r in range(4):
                src = v(VB + 2 * o + (r >> 1))
                if r & 1:
                    A("v_and_b32 v14, 0xffff0000, %s" % src)
                else:
                    A("v_lshlrev_b32 v14, 16, %s" % src)
                A("v_add_f32 %s, %s, v14" % (v(U + o * 4 + r), v(U + o * 4 + r)))
    else:
        A("v_lshlrev_b32 v14, 16, %s" % v(VB))
        for o in range(NO):
            for r in range(4):
                A("v_add_f32 %s, %s, v14" % (v(U + o * 4 + r), v(U + o * 4 + r)))
    for o in range(NO):
        A("s_waitcnt lgkmcnt(%d)" % min(15, (NO - 1 - o) * 3))
        for r in range(4):
            x = [RB + (o * 3 + q) * 4 + r for q in range(3)]
            A("v_add_f32 %s, %s, %s" % (v(x[0]), v(x[0]), v(x[1])))
            A("v_add_f32 %s, %s, %s" % (v(U + o * 4 + r), v(U + o * 4 + r), v(x[2])))
        for r in range(4):
            A("v_add_f32 %s, %s, %s" % (v(U + o * 4 + r), v(U + o * 4 + r), v(RB + o * 12 + r)))
    if g1:
        k1 = 2 * 0.7978845608028654 * 1.4426950408889634
        k3 = k1 * 0.044715
        A("s_mov_b32 s24, %s" % f32(-k3))
        A("v_mov_b32 v14, %s" % f32(-k1))
        T = RB
        for e in range(16):
            A("v_mul_f32 %s, %s, %s" % (v(T + e), v(U + e), v(U + e)))
        for e in range(16):
            A("v_fma_f32 %s, %s, s24, v14" % (v(T + e), v(T + e)))
        for e in range(16):
            A("v_mul_f32 %s, %s, %s" % (v(T + e), v(T + e), v(U + e)))
        for e in range(16):
            A("v_exp_f32 %s, %s" % (v(T + e), v(T + e)))
        for e in range(16):
            A("v_add_f32 %s, 1.0, %s" % (v(T + e), v(T + e)))
        for e in range(16):
            A("v_rcp_f32 %s, %s" % (v(T + e), v(T + e)))
        for e in range(16):
            A("v_mul_f32 %s, %s, %s" % (v(U + e), v(U + e), v(T + e)))
        for e in range(8):
            A("v_cvt_pk_bf16_f32 %s, %s, %s" % (v(T + e), v(U + 2 * e), v(U + 2 * e + 1)))
        A("s_mul_i32 s24, s21, %d" % (2 * KSTEP_B))
        A("s_lshl_b32 s25, s23, 2")
        A("s_add_u32 s25, s25, s20")
        A("s_lshl_b32 s25, s25, 10")
        A("s_add_u32 s24, s24, s25")
        A("s_add_u32 s25, s24, %d" % KSTEP_B)
        A("v_lshlrev_b32 v14, 4, v0")
        A("buffer_store_dwordx4 %s, v14, s[12:15], s24 offen" % v(T, 4))
        A("buffer_store_dwordx4 %s, v14, s[12:15], s25 offen" % v(T + 4, 4))
    else:
        T = RB
        for e in range(10):
            A("v_cvt_pk_bf16_f32 %s, %s, %s" % (v(T + e), v(U + 2 * e), v(U + 2 * e + 1)))
        A("v_and_b32 v14, 15, v0")
        A("v_mul_u32_u24 v14, 1280, v14")
        A("v_lshrrev_b32 v15, 4, v0")
        A("v_lshl_add_u32 v14, v15, 3, v14")
        A("s_lshl_b32 s24, s21, 2")
        A("s_add_u32 s24, s24, s20")
        A("s_mul_i32 s24, s24, %d" % (16 * 1280))
        A("s_mul_i32 s25, s23, 160")
        A("s_add_u32 s24, s24, s25")
        for o in range(5):
            A("buffer_store_dwordx2 %s, v14, s[12:15], s24 offen offset:%d" % (v(T + 2 * o, 2), 32 * o))
    A("%sdone:" % L)
    A("s_endpgm")
    nv = (VB + 8 + 3) // 4 * 4
    kernel_desc(A, name, nv + 4 * NO * 4, nv, 40)
    return 4 * RING


def gen_empty(A, name):
    kernel_begin(A, name)
    A("s_endpgm")
    kernel_desc(A, name, 8, 8, 16)


def main():
    n_empty = int(sys.argv[2]) if len(sys.argv) > 2 else 0
    A = Asm()
    A('.amdgcn_target "amdgcn-amd-amdhsa--gfx950"')
    gen_ln(A, "ln_kernel")
    l1 = gen_gemm(A, "gemm1_kernel", 1)
    l2 = gen_gemm(A, "gemm2_kernel", 2)
    if n_empty:
        gen_empty(A, "empty_kernel")
    hdr = HEADER
    hdr += "; @launch kernel=ln_kernel grid=(256,1,1) block=(256,1,1) lds=%d\n" % (8 * LNP)
    hdr += "; @launch kernel=gemm1_kernel grid=(240,1,1) block=(256,1,1) lds=%d\n" % l1
    hdr += "; @launch kernel=gemm2_kernel grid=(256,1,1) block=(256,1,1) lds=%d\n" % l2
    for _ in range(n_empty):
        hdr += "; @launch kernel=empty_kernel grid=(256,1,1) block=(256,1,1) lds=0\n"
    open(sys.argv[1], "w").write(hdr + A.text())


if __name__ == "__main__":
    main()
```

```python
import struct

HEADER = """; Kernarg layout for this problem (64 bytes, ptrs only, base s[0:1]):
"""


def f32(x):
    return "0x%08x" % struct.unpack("<I", struct.pack("<f", x))[0]


class Asm:
    def __init__(self):
        self.lines = []

    def __call__(self, s, *a):
        for ln in s.strip("\n").split("\n"):
            ln = ln.strip()
            if not ln:
                continue
            if ln.endswith(":") or ln.startswith("."):
                self.lines.append(ln)
            else:
                self.lines.append("    " + ln)

    def c(self, s):
        self.lines.append("    ; " + s)

    def text(self):
        return "\n".join(self.lines) + "\n"


def v(i, n=1):
    return "v%d" % i if n == 1 else "v[%d:%d]" % (i, i + n - 1)


def a(i, n=1):
    return "a%d" % i if n == 1 else "a[%d:%d]" % (i, i + n - 1)


def s(i, n=1):
    return "s%d" % i if n == 1 else "s[%d:%d]" % (i, i + n - 1)


def kernel_begin(A, name):
    A(".text")
    A(".globl %s" % name)
    A(".p2align 8")
    A(".type %s,@function" % name)
    A("%s:" % name)


def kernel_desc(A, name, vgpr, accum, sgpr=96):
    A('.section .rodata,"a"')
    A(".p2align 6")
    A(".amdhsa_kernel %s" % name)
    A(".amdhsa_next_free_vgpr %d" % vgpr)
    A(".amdhsa_next_free_sgpr %d" % sgpr)
    A(".amdhsa_accum_offset %d" % accum)
    A(".amdhsa_group_segment_fixed_size 0")
    A(".amdhsa_kernarg_size 64")
    A(".amdhsa_user_sgpr_count 2")
    A(".amdhsa_user_sgpr_kernarg_segment_ptr 1")
    A(".amdhsa_system_sgpr_workgroup_id_x 1")
    A(".amdhsa_float_denorm_mode_32 3")
    A(".end_amdhsa_kernel")


def interleave(main, fill, start=0, every=1, per=1):
    out = []
    fi = 0
    for i, m in enumerate(main):
        out.append(m)
        if i >= start and (i - start) % every == 0:
            for _ in range(per):
                if fi < len(fill):
                    out.append(fill[fi])
                    fi += 1
    out.extend(fill[fi:])
    return out


STAMP_OFF = 0x8000000
STAMPS = False


def set_stamps(on):
    global STAMPS
    STAMPS = on


def stamp_init(A):
    if not STAMPS:
        return
    for k in range(1, 16):
        A("s_mov_b64 %s, 0" % s(64 + 2 * k, 2))
    A("s_memrealtime s[64:65]")
    A("s_load_dwordx2 s[56:57], s[0:1], 56")


def stamp(A, k):
    if STAMPS:
        A("s_memrealtime %s" % s(64 + 2 * k, 2))


def stamp_flush(A, kidx, wave_sgpr, last, label, wg="s2", wave=0):
    if not STAMPS:
        return
    A("s_waitcnt vmcnt(0) lgkmcnt(0)")
    A("s_memrealtime %s" % s(64 + 2 * last, 2))
    A("s_waitcnt lgkmcnt(0)")
    A("s_cmp_lg_u32 %s, %d" % (wave_sgpr, wave))
    A("s_cbranch_scc1 %s" % label)
    A("s_add_u32 s56, s56, %d" % STAMP_OFF)
    A("s_addc_u32 s57, s57, 0")
    A("s_and_b32 s57, s57, 0xffff")
    A("s_mov_b32 s58, 0x100000")
    A("s_mov_b32 s59, 0x20000")
    A("s_lshl_b32 s60, %s, 7" % wg)
    A("s_add_u32 s60, s60, %d" % (kidx * 256 * 128))
    A("s_mov_b64 exec, 1")
    A("v_mov_b32 v2, 0")
    for k in range(last + 1):
        A("v_mov_b32 v4, %s" % s(64 + 2 * k))
        A("v_mov_b32 v5, %s" % s(65 + 2 * k))
        A("buffer_store_dwordx2 v[4:5], v2, s[56:59], s60 offen offset:%d" % (8 * k))
        A("s_nop 1")
    A("%s:" % label)
```

```python
import sys
from asmlib import *

import os
STAMPS_ON = bool(os.environ.get("STAMPS"))
set_stamps(STAMPS_ON)
STAG = int(os.environ.get("STAG", "0"))
S, D, F = 2048, 640, 1536
H_OFF = 0
G_OFF = 0x280000
KSTEP_B = 40960
LNP = 1344


def srd(A, dst, bytes_):
    A("s_and_b32 %s, %s, 0xffff" % (s(dst + 1), s(dst + 1)))
    A("s_mov_b32 %s, %d" % (s(dst + 2), bytes_))
    A("s_mov_b32 %s, 0x20000" % s(dst + 3))


def reduce32(A, x, t):
    for mod in ("quad_perm:[1,0,3,2]", "quad_perm:[2,3,0,1]", "row_half_mirror", "row_mirror"):
        A("s_nop 1")
        A("v_add_f32_dpp %s, %s, %s %s row_mask:0xf bank_mask:0xf" % (v(x), v(x), v(x), mod))
    A("v_mov_b32 %s, %s" % (v(t), v(x)))
    A("s_nop 1")
    A("v_permlane16_swap_b32 %s, %s" % (v(t), v(x)))
    A("s_nop 1")
    A("v_add_f32 %s, %s, %s" % (v(x), v(x), v(t)))


def gen_ln(A, name):
    kernel_begin(A, name)
    A("s_cmp_ge_u32 s2, 256")
    A("s_cbranch_scc1 L_ln_done")
    stamp_init(A)
    A("s_load_dwordx2 s[4:5], s[0:1], 0")
    A("s_load_dwordx2 s[8:9], s[0:1], 56")
    A("s_lshr_b32 s16, s2, 2")
    A("s_and_b32 s17, s2, 3")
    A("s_lshl_b32 s18, s16, 5")
    A("s_lshl_b32 s19, s17, 2")
    A("s_add_u32 s18, s18, s19")
    A("v_lshrrev_b32 v1, 5, v0")
    A("v_and_b32 v2, 31, v0")
    A("v_and_b32 v3, 3, v1")
    A("v_lshrrev_b32 v4, 2, v1")
    A("v_lshl_add_u32 v3, v4, 4, v3")
    A("v_add_u32 v3, s18, v3")
    A("v_mul_u32_u24 v3, 1280, v3")
    A("v_lshl_add_u32 v4, v2, 4, v3")
    A("v_lshl_add_u32 v5, v2, 3, v3")
    A("s_waitcnt lgkmcnt(0)")
    srd(A, 4, S * D * 2)
    A("buffer_load_dwordx4 v[10:13], v4, s[4:7], 0 offen")
    A("buffer_load_dwordx4 v[14:17], v4, s[4:7], 0 offen offset:512")
    A("buffer_load_dwordx2 v[18:19], v5, s[4:7], 0 offen offset:1024")
    srd(A, 8, S * D * 2)
    A("v_mul_u32_u24 v6, %d, v1" % LNP)
    A("v_lshl_add_u32 v7, v2, 3, v6")
    A("v_lshl_add_u32 v6, v2, 4, v6")
    A("v_and_b32 v40, 63, v0")
    A("v_lshrrev_b32 v41, 6, v0")
    A("v_and_b32 v42, 15, v0")
    A("v_lshrrev_b32 v43, 4, v40")
    A("v_readfirstlane_b32 s20, v41")
    A("v_lshrrev_b32 v44, 2, v42")
    A("v_mul_u32_u24 v44, %d, v44" % LNP)
    A("v_and_b32 v45, 3, v42")
    A("v_lshl_add_u32 v44, v45, 3, v44")
    A("v_lshl_add_u32 v44, v43, 5, v44")
    A("v_lshl_add_u32 v44, v41, 7, v44")
    A("v_lshlrev_b32 v45, 4, v42")
    A("v_lshl_add_u32 v45, v43, 10, v45")
    A("v_lshl_add_u32 v45, v41, 12, v45")
    A("s_mul_i32 s21, s16, %d" % KSTEP_B)
    A("s_lshl_b32 s22, s17, 8")
    A("s_add_u32 s21, s21, s22")
    A("s_add_u32 s22, s21, 16384")
    A("s_add_u32 s23, s21, 32768")
    stamp(A, 1)
    A("s_waitcnt vmcnt(0)")
    stamp(A, 2)
    for q in range(10):
        A("v_lshlrev_b32 %s, 16, %s" % (v(20 + 2 * q), v(10 + q)))
        A("v_and_b32 %s, 0xffff0000, %s" % (v(21 + 2 * q), v(10 + q)))
    A("v_add_f32 v8, v20, v21")
    A("v_add_f32 v9, v22, v23")
    for q in range(4, 20, 2):
        A("v_add_f32 v8, v8, %s" % v(20 + q))
        A("v_add_f32 v9, v9, %s" % v(21 + q))
    A("v_add_f32 v8, v8, v9")
    reduce32(A, 8, 9)
    A("v_mul_f32 v8, %s, v8" % f32(1.0 / 640))
    for q in range(20):
        A("v_sub_f32 %s, %s, v8" % (v(20 + q), v(20 + q)))
    A("v_mul_f32 v10, v20, v20")
    A("v_mul_f32 v11, v21, v21")
    for q in range(2, 20, 2):
        A("v_fmac_f32 v10, %s, %s" % (v(20 + q), v(20 + q)))
        A("v_fmac_f32 v11, %s, %s" % (v(21 + q), v(21 + q)))
    A("v_add_f32 v10, v10, v11")
    reduce32(A, 10, 11)
    A("v_mul_f32 v10, %s, v10" % f32(1.0 / 640))
    A("v_cvt_pk_bf16_f32 v11, v8, v10")
    A("v_lshlrev_b32 v12, 16, v11")
    A("v_and_b32 v11, 0xffff0000, v11")
    A("v_add_f32 v11, %s, v11" % f32(1e-5))
    A("v_cvt_pk_bf16_f32 v11, v11, v11")
    A("v_lshlrev_b32 v11, 16, v11")
    A("v_sqrt_f32 v11, v11")
    A("v_sub_f32 v12, v8, v12")
    A("v_cvt_pk_bf16_f32 v11, v11, v11")
    A("v_lshlrev_b32 v11, 16, v11")
    A("v_rcp_f32 v11, v11")
    A("s_nop 0")
    A("v_mul_f32 v12, v12, v11")
    for q in range(20):
        A("v_fma_f32 %s, %s, v11, v12" % (v(20 + q), v(20 + q)))
    for q in range(10):
        A("v_cvt_pk_bf16_f32 %s, %s, %s" % (v(20 + q), v(20 + 2 * q), v(21 + 2 * q)))
    A("ds_write_b128 v6, v[20:23]")
    A("ds_write_b128 v6, v[24:27] offset:512")
    A("ds_write_b64 v7, v[28:29] offset:1024")
    A("s_waitcnt lgkmcnt(0)")
    A("s_barrier")
    A("ds_read_b64_tr_b16 v[12:13], v44")
    A("ds_read_b64_tr_b16 v[14:15], v44 offset:%d" % (4 * LNP))
    A("ds_read_b64_tr_b16 v[16:17], v44 offset:512")
    A("ds_read_b64_tr_b16 v[18:19], v44 offset:%d" % (4 * LNP + 512))
    A("s_cmp_ge_u32 s20, 2")
    A("s_cbranch_scc1 L_ln_two")
    A("ds_read_b64_tr_b16 v[20:21], v44 offset:1024")
    A("ds_read_b64_tr_b16 v[22:23], v44 offset:%d" % (4 * LNP + 1024))
    A("s_waitcnt lgkmcnt(0)")
    A("buffer_store_dwordx4 v[20:23], v45, s[8:11], s23 offen")
    A("L_ln_two:")
    A("s_waitcnt lgkmcnt(0)")
    A("buffer_store_dwordx4 v[12:15], v45, s[8:11], s21 offen")
    A("buffer_store_dwordx4 v[16:19], v45, s[8:11], s22 offen")
    stamp(A, 3)
    stamp_flush(A, 0, "s20", 4, "L_ln_st")
    A("L_ln_done:")
    A("s_endpgm")
    kernel_desc(A, name, 48, 48, 100)


def gen_gemm(A, name, which, P=6, R=8):
    g1 = which == 1
    NS = 16 if g1 else 12
    NB = 4 if g1 else 5
    NO = NB
    pitch = 3072 if g1 else 4096
    nwg = 240 if g1 else 256
    PA = P + 1
    RING = R * 4096
    VW, VT, VA = 1, 5, 9
    WF = 16
    AB = 48
    VB = AB + PA * NB * 4
    L = "L_g%d_" % which

    def acc(q, o):
        return (q * NO + o) * 4

    kernel_begin(A, name)
    A("s_cmp_ge_u32 s2, %d" % nwg)
    A("s_cbranch_scc1 %sdone" % L)
    stamp_init(A)
    A("s_load_dwordx2 s[4:5], s[0:1], %d" % (8 if g1 else 24))
    A("s_load_dwordx2 s[8:9], s[0:1], 56")
    A("s_load_dwordx2 s[12:13], s[0:1], %d" % (56 if g1 else 40))
    A("s_load_dwordx2 s[16:17], s[0:1], %d" % (16 if g1 else 32))
    A("v_lshrrev_b32 v14, 6, v0")
    A("v_and_b32 v0, 63, v0")
    A("v_readfirstlane_b32 s20, v14")
    A("s_and_b32 s21, s2, 7")
    A("s_lshr_b32 s22, s2, 3")
    A("s_and_b32 s23, s21, 1")
    A("s_lshr_b32 s21, s21, 1")
    if g1:
        A("s_mul_i32 s24, s22, 52")
        A("s_lshr_b32 s24, s24, 8")
        A("s_mul_i32 s25, s24, 5")
        A("s_sub_u32 s25, s22, s25")
        A("s_mul_i32 s23, s23, 5")
        A("s_add_u32 s23, s23, s25")
        A("s_mul_i32 s21, s21, 6")
        A("s_add_u32 s21, s21, s24")
    else:
        A("s_lshr_b32 s24, s22, 2")
        A("s_and_b32 s25, s22, 3")
        A("s_lshl_b32 s23, s23, 2")
        A("s_add_u32 s23, s23, s25")
        A("s_lshl_b32 s21, s21, 3")
        A("s_add_u32 s21, s21, s24")
    if STAG:
        if g1:
            A("s_add_u32 s35, s24, s25")
            A("s_cmp_ge_u32 s35, 6")
            A("s_cselect_b32 s34, 6, 0")
            A("s_sub_u32 s35, s35, s34")
            A("s_mul_i32 s35, s35, %d" % (16 * 43))
            A("s_lshr_b32 s35, s35, 8")
        else:
            A("s_lshl_b32 s35, s25, 1")
            A("s_add_u32 s35, s35, s24")
            A("s_and_b32 s35, s35, 7")
            A("s_mul_i32 s35, s35, 3")
            A("s_lshr_b32 s35, s35, 1")
    A("s_mul_i32 s26, s20, %d" % (NS * 32 * pitch))
    A("s_lshl_b32 s24, s21, 7")
    A("s_add_u32 s26, s26, s24")
    A("s_mul_i32 s27, s20, %d" % (NS * KSTEP_B))
    A("s_mul_i32 s24, s23, %d" % (NB * 1024))
    A("s_add_u32 s27, s27, s24")
    A("s_mul_i32 s28, s20, %d" % RING)
    if STAG:
        A("s_mov_b32 s30, s26")
        A("s_mov_b32 s31, s27")
        A("s_mul_i32 s26, s35, %d" % (32 * pitch))
        A("s_add_u32 s26, s26, s30")
        A("s_mul_i32 s27, s35, %d" % KSTEP_B)
        A("s_add_u32 s27, s27, s31")
    A("v_lshrrev_b32 v14, 3, v0")
    A("v_mul_u32_u24 v14, %d, v14" % pitch)
    A("v_bfe_u32 v15, v0, 1, 2")
    A("v_lshrrev_b32 v16, 4, v0")
    A("v_xor_b32 v15, v15, v16")
    A("v_lshl_add_u32 v14, v15, 5, v14")
    A("v_and_b32 v15, 1, v0")
    A("v_lshl_add_u32 %s, v15, 4, v14" % v(VW))
    for q in range(1, 4):
        A("v_add_u32 %s, %d, %s" % (v(VW + q), q * (8 * pitch - 1024), v(VW)))
    A("v_and_b32 v17, 15, v0")
    A("v_lshrrev_b32 v14, 2, v17")
    A("v_lshl_add_u32 v14, v16, 2, v14")
    A("v_bfe_u32 v15, v14, 1, 2")
    if not g1:
        A("v_xor_b32 v15, s20, v15")
    A("v_lshlrev_b32 v14, 7, v14")
    A("v_and_b32 v18, 3, v17")
    A("v_lshl_add_u32 v14, v18, 3, v14")
    A("v_add_u32 v14, s28, v14")
    for b in range(4):
        A("v_xor_b32 v18, %d, v15" % b)
        A("v_lshl_add_u32 %s, v18, 5, v14" % v(VT + b))
    A("v_lshlrev_b32 v14, 4, v0")
    for b in range(NB):
        if g1:
            A("s_xor_b32 s24, s20, %d" % b)
            A("s_lshl_b32 s24, s24, 10")
            A("v_add_u32 %s, s24, v14" % v(VA + b))
        else:
            A("v_add_u32 %s, %d, v14" % (v(VA + b), b * 1024))
    A("s_waitcnt lgkmcnt(0)")
    srd(A, 4, S * F * 2)
    if not g1:
        A("s_add_u32 s8, s8, %d" % G_OFF)
        A("s_addc_u32 s9, s9, 0")
    srd(A, 8, 64 * KSTEP_B if g1 else 48 * KSTEP_B)
    if g1:
        A("s_add_u32 s12, s12, %d" % G_OFF)
        A("s_addc_u32 s13, s13, 0")
    srd(A, 12, 48 * KSTEP_B if g1 else S * D * 2)
    srd(A, 16, F * 2 if g1 else S * 2)
    if g1:
        A("v_lshlrev_b32 v14, 3, v16")
        A("s_lshl_b32 s24, s21, 7")
        for o in range(4):
            A("buffer_load_dwordx2 %s, v14, s[16:19], s24 offen offset:%d" % (v(VB + 2 * o, 2), 32 * o))
    else:
        A("v_lshlrev_b32 v14, 1, v17")
        A("s_lshl_b32 s24, s21, 7")
        A("s_lshl_b32 s25, s20, 5")
        A("s_add_u32 s24, s24, s25")
        A("buffer_load_ushort %s, v14, s[16:19], s24 offen" % v(VB))

    def vm_issue(i):
        out = []
        out.append("s_add_u32 m0, s28, %d" % ((i % R) * 4096))
        out.append("s_nop 0")
        for q in range(4):
            out.append("buffer_load_dwordx4 %s, s[4:7], s26 offen offset:%d lds" % (v(VW + q), q * 1024))
        out.append("s_add_u32 s26, s26, %d" % (32 * pitch))
        for b in range(NB):
            out.append("buffer_load_dwordx4 %s, %s, s[8:11], s27 offen" % (v(AB + ((i % PA) * NB + b) * 4, 4), v(VA + b)))
        out.append("s_add_u32 s27, s27, %d" % KSTEP_B)
        if STAG:
            out.append("s_add_u32 s35, s35, 1\ns_cmp_eq_u32 s35, %d\ns_cselect_b32 s26, s30, s26\ns_cselect_b32 s27, s31, s27" % NS)
        return out

    def tr_reads(i):
        out = []
        for b in range(4):
            for t in range(2):
                out.append("ds_read_b64_tr_b16 %s, %s offset:%d" % (v(WF + (i & 1) * 16 + b * 4 + 2 * t, 2), v(VT + b), (i % R) * 4096 + t * 2048))
        return out

    def mfmas(i):
        out = []
        for q in range(4):
            for o in range(NO):
                wb, ab = (o, q) if g1 else (q, o)
                wr = v(WF + (i & 1) * 16 + wb * 4, 4)
                ar = v(AB + ((i % PA) * NB + ab) * 4, 4)
                c = "0" if i == 0 else a(acc(q, o), 4)
                if g1:
                    out.append("v_mfma_f32_16x16x32_bf16 %s, %s, %s, %s" % (a(acc(q, o), 4), wr, ar, c))
                else:
                    out.append("v_mfma_f32_16x16x32_bf16 %s, %s, %s, %s" % (a(acc(q, o), 4), ar, wr, c))
        return out

    PER = 4 + NB
    for i in range(P):
        for x in vm_issue(i):
            A(x)
    stamp(A, 1)
    A("s_waitcnt vmcnt(%d)" % (NB + (P - 1) * PER))
    for x in tr_reads(0):
        A(x)
    for i in range(NS):
        A.c("step %d" % i)
        issued = min(NS, i + P)
        if i + 1 < NS:
            n = NB + (issued - (i + 2)) * PER
        else:
            n = 0
        A("s_waitcnt vmcnt(%d) lgkmcnt(0)" % n)
        if i == 0:
            stamp(A, 2)
        if i == NS // 2:
            stamp(A, 3)
        if i == NS - 1:
            stamp(A, 4)
        fill = []
        if i + 1 < NS:
            fill += tr_reads(i + 1)
        if i + P < NS:
            fill += vm_issue(i + P)
        m = mfmas(i)
        for x in interleave(m, fill, 0, 1, 1 if len(fill) <= len(m) else 2):
            A(x)
    A("v_lshlrev_b32 v14, 4, v0")
    A("v_add_u32 v15, s28, v14")
    for q in range(1, 4):
        A("s_xor_b32 s24, s20, %d" % q)
        A("s_mul_i32 s24, s24, %d" % RING)
        A("v_add_u32 %s, s24, v14" % v(VT + q))
    A("s_nop 7")
    for q in range(1, 4):
        for o in range(NO):
            A("ds_write_b128 v15, %s offset:%d" % (a(acc(q, o), 4), ((q - 1) * NO + o) * 1024))
    A("s_waitcnt lgkmcnt(0)")
    A("s_barrier")
    stamp(A, 5)
    if STAMPS_ON:
        A("s_waitcnt lgkmcnt(0)")
    RB = AB
    for o in range(NO):
        for q in range(1, 4):
            A("ds_read_b128 %s, %s offset:%d" % (v(RB + (o * 3 + q - 1) * 4, 4), v(VT + q), ((q - 1) * NO + o) * 1024))
    U = 16
    for o in range(NO):
        for r in range(4):
            A("v_accvgpr_read_b32 %s, %s" % (v(U + o * 4 + r), a(acc(0, o) + r)))
    if g1:
        for o in range(4):
            for r in range(4):
                src = v(VB + 2 * o + (r >> 1))
                if r & 1:
                    A("v_and_b32 v14, 0xffff0000, %s" % src)
                else:
                    A("v_lshlrev_b32 v14, 16, %s" % src)
                A("v_add_f32 %s, %s, v14" % (v(U + o * 4 + r), v(U + o * 4 + r)))
    else:
        A("v_lshlrev_b32 v14, 16, %s" % v(VB))
        for o in range(NO):
            for r in range(4):
                A("v_add_f32 %s, %s, v14" % (v(U + o * 4 + r), v(U + o * 4 + r)))
    for o in range(NO):
        A("s_waitcnt lgkmcnt(%d)" % min(15, (NO - 1 - o) * 3))
        for r in range(4):
            x = [RB + (o * 3 + q) * 4 + r for q in range(3)]
            A("v_add_f32 %s, %s, %s" % (v(x[0]), v(x[0]), v(x[1])))
            A("v_add_f32 %s, %s, %s" % (v(U + o * 4 + r), v(U + o * 4 + r), v(x[2])))
        for r in range(4):
            A("v_add_f32 %s, %s, %s" % (v(U + o * 4 + r), v(U + o * 4 + r), v(RB + o * 12 + r)))
    if g1:
        k1 = 2 * 0.7978845608028654 * 1.4426950408889634
        k3 = k1 * 0.044715
        A("s_mov_b32 s24, %s" % f32(-k3))
        A("v_mov_b32 v14, %s" % f32(-k1))
        T = RB
        for e in range(16):
            A("v_mul_f32 %s, %s, %s" % (v(T + e), v(U + e), v(U + e)))
        for e in range(16):
            A("v_fma_f32 %s, %s, s24, v14" % (v(T + e), v(T + e)))
        for e in range(16):
            A("v_mul_f32 %s, %s, %s" % (v(T + e), v(T + e), v(U + e)))
        for e in range(16):
            A("v_exp_f32 %s, %s" % (v(T + e), v(T + e)))
        for e in range(16):
            A("v_add_f32 %s, 1.0, %s" % (v(T + e), v(T + e)))
        for e in range(16):
            A("v_rcp_f32 %s, %s" % (v(T + e), v(T + e)))
        for e in range(16):
            A("v_mul_f32 %s, %s, %s" % (v(U + e), v(U + e), v(T + e)))
        for e in range(8):
            A("v_cvt_pk_bf16_f32 %s, %s, %s" % (v(T + e), v(U + 2 * e), v(U + 2 * e + 1)))
        A("s_mul_i32 s24, s21, %d" % (2 * KSTEP_B))
        A("s_lshl_b32 s25, s23, 2")
        A("s_add_u32 s25, s25, s20")
        A("s_lshl_b32 s25, s25, 10")
        A("s_add_u32 s24, s24, s25")
        A("s_add_u32 s25, s24, %d" % KSTEP_B)
        A("v_lshlrev_b32 v14, 4, v0")
        A("buffer_store_dwordx4 %s, v14, s[12:15], s24 offen" % v(T, 4))
        A("buffer_store_dwordx4 %s, v14, s[12:15], s25 offen" % v(T + 4, 4))
    else:
        T = RB
        for e in range(10):
            A("v_cvt_pk_bf16_f32 %s, %s, %s" % (v(T + e), v(U + 2 * e), v(U + 2 * e + 1)))
        A("v_and_b32 v14, 15, v0")
        A("v_mul_u32_u24 v14, 1280, v14")
        A("v_lshrrev_b32 v15, 4, v0")
        A("v_lshl_add_u32 v14, v15, 3, v14")
        A("s_lshl_b32 s24, s21, 2")
        A("s_add_u32 s24, s24, s20")
        A("s_mul_i32 s24, s24, %d" % (16 * 1280))
        A("s_mul_i32 s25, s23, 160")
        A("s_add_u32 s24, s24, s25")
        for o in range(5):
            A("buffer_store_dwordx2 %s, v14, s[12:15], s24 offen offset:%d" % (v(T + 2 * o, 2), 32 * o))
    stamp(A, 6)
    stamp_flush(A, which, "s20", 7, L + "st")
    A("%sdone:" % L)
    A("s_endpgm")
    nv = (VB + 8 + 3) // 4 * 4
    kernel_desc(A, name, nv + 4 * NO * 4, nv, 100)
    return 4 * RING


def gen_empty(A, name):
    kernel_begin(A, name)
    A("s_endpgm")
    kernel_desc(A, name, 8, 8, 16)


def main():
    n_empty = int(sys.argv[2]) if len(sys.argv) > 2 else 0
    A = Asm()
    A('.amdgcn_target "amdgcn-amd-amdhsa--gfx950"')
    gen_ln(A, "ln_kernel")
    l1 = gen_gemm(A, "gemm1_kernel", 1)
    l2 = gen_gemm(A, "gemm2_kernel", 2)
    if n_empty:
        gen_empty(A, "empty_kernel")
    hdr = HEADER
    hdr += "; @launch kernel=ln_kernel grid=(256,1,1) block=(256,1,1) lds=%d\n" % (8 * LNP)
    hdr += "; @launch kernel=gemm1_kernel grid=(240,1,1) block=(256,1,1) lds=%d\n" % l1
    hdr += "; @launch kernel=gemm2_kernel grid=(256,1,1) block=(256,1,1) lds=%d\n" % l2
    for _ in range(n_empty):
        hdr += "; @launch kernel=empty_kernel grid=(256,1,1) block=(256,1,1) lds=0\n"
    open(sys.argv[1], "w").write(hdr + A.text())


if __name__ == "__main__":
    main()
```

```python
import sys, os
os.environ["STAG"]="1"
from asmlib import *
import gen_v1 as G
kind=sys.argv[2]; N=int(sys.argv[3]); first=int(sys.argv[4]);
A=Asm()
A('.amdgcn_target "amdgcn-amd-amdhsa--gfx950"')
G.gen_ln(A,"ln_kernel")
l1=G.gen_gemm(A,"gemm1_kernel",1)
l2=G.gen_gemm(A,"gemm2_kernel",2)
kernel_begin(A,"diag_kernel")
grid=256
if kind=="spin":
    A("s_memtime s[4:5]")
    A("s_waitcnt lgkmcnt(0)")
    A("L_spin:")
    A("s_memtime s[6:7]")
    A("s_waitcnt lgkmcnt(0)")
    A("s_sub_u32 s8, s6, s4")
    A("s_cmp_lt_u32 s8, %d"%N)
    A("s_cbranch_scc1 L_spin")
elif kind=="chase":
    stride=int(sys.argv[5]); ptr=int(sys.argv[6])
    grid=1
    A("s_cmp_ge_u32 s2, 1")
    A("s_cbranch_scc1 L_dd")
    A("s_load_dwordx2 s[4:5], s[0:1], %d"%ptr)
    A("s_waitcnt lgkmcnt(0)")
    G.srd(A,4,6291456 if ptr!=56 else 268435456)
    A("v_mov_b32 v1, 0")
    A("s_mov_b32 s8, 0")
    A("s_mov_b32 s9, 0")
    A("L_ch:")
    A("buffer_load_dword v2, v1, s[4:7], s9 offen")
    A("s_add_u32 s9, s9, %d"%stride)
    A("s_add_u32 s8, s8, 1")
    A("s_cmp_lt_u32 s8, %d"%N)
    A("s_waitcnt vmcnt(0)")
    A("s_cbranch_scc1 L_ch")
    A("L_dd:")
elif kind=="code":
    A(".rept %d"%N)
    A("v_add_u32 v1, 0x12345, v0")
    A(".endr")
elif kind=="loop":
    A("s_mov_b32 s8, 0")
    A("L_lp:")
    A(".rept 16")
    A("v_add_u32 v1, 0x12345, v0")
    A(".endr")
    A("s_add_u32 s8, s8, 16")
    A("s_cmp_lt_u32 s8, %d"%N)
    A("s_cbranch_scc1 L_lp")
A("s_endpgm")
kernel_desc(A,"diag_kernel",8,8,16)
hdr=HEADER
d="; @launch kernel=diag_kernel grid=(%d,1,1) block=(64,1,1) lds=0\n"%grid
if first: hdr+=d
hdr += "; @launch kernel=ln_kernel grid=(256,1,1) block=(256,1,1) lds=%d\n" % (8 * G.LNP)
hdr += "; @launch kernel=gemm1_kernel grid=(240,1,1) block=(256,1,1) lds=%d\n" % l1
hdr += "; @launch kernel=gemm2_kernel grid=(256,1,1) block=(256,1,1) lds=%d\n" % l2
if not first: hdr+=d
open(sys.argv[1],"w").write(hdr+A.text())
```

```python
import sys, os
os.environ["STAG"]="1"
from asmlib import *
import gen_v1 as G
kind=sys.argv[2]; N=int(sys.argv[3]); first=int(sys.argv[4]);
A=Asm()
A('.amdgcn_target "amdgcn-amd-amdhsa--gfx950"')
G.gen_ln(A,"ln_kernel")
l1=G.gen_gemm(A,"gemm1_kernel",1)
l2=G.gen_gemm(A,"gemm2_kernel",2)
kernel_begin(A,"diag_kernel")
grid=256; blk=64; lds=0
if kind=="spin":
    A("s_memtime s[4:5]")
    A("s_waitcnt lgkmcnt(0)")
    A("L_spin:")
    A("s_memtime s[6:7]")
    A("s_waitcnt lgkmcnt(0)")
    A("s_sub_u32 s8, s6, s4")
    A("s_cmp_lt_u32 s8, %d"%N)
    A("s_cbranch_scc1 L_spin")
elif kind=="chase":
    stride=int(sys.argv[5]); ptr=int(sys.argv[6])
    grid=1
    A("s_cmp_ge_u32 s2, 1")
    A("s_cbranch_scc1 L_dd")
    A("s_load_dwordx2 s[4:5], s[0:1], %d"%ptr)
    A("s_waitcnt lgkmcnt(0)")
    G.srd(A,4,6291456 if ptr!=56 else 268435456)
    A("v_mov_b32 v1, 0")
    A("s_mov_b32 s8, 0")
    A("s_mov_b32 s9, 0")
    A("L_ch:")
    A("buffer_load_dword v2, v1, s[4:7], s9 offen")
    A("s_add_u32 s9, s9, %d"%stride)
    A("s_add_u32 s8, s8, 1")
    A("s_cmp_lt_u32 s8, %d"%N)
    A("s_waitcnt vmcnt(0)")
    A("s_cbranch_scc1 L_ch")
    A("L_dd:")
elif kind=="bw":
    pitch=int(sys.argv[5]); ptr=int(sys.argv[6]); ntile=pitch//128; NS=(6291456//pitch)//128
    blk=256; lds=131072
    A("s_cmp_ge_u32 s2, 240")
    A("s_cbranch_scc1 L_dd")
    A("s_load_dwordx2 s[4:5], s[0:1], %d"%ptr)
    A("v_lshrrev_b32 v14, 6, v0")
    A("v_and_b32 v0, 63, v0")
    A("v_readfirstlane_b32 s20, v14")
    A("s_and_b32 s21, s2, 7")
    A("s_lshr_b32 s22, s2, 3")
    A("s_lshr_b32 s21, s21, 1")
    A("s_mul_i32 s24, s22, 52")
    A("s_lshr_b32 s24, s24, 8")
    A("s_mul_i32 s21, s21, 6")
    A("s_add_u32 s21, s21, s24")
    A("s_mul_i32 s30, s20, %d" % (NS * 32 * pitch))
    A("s_lshl_b32 s24, s21, 7")
    A("s_add_u32 s30, s30, s24")
    A("s_mul_i32 s28, s20, 32768")
    A("v_lshrrev_b32 v14, 3, v0")
    A("v_mul_u32_u24 v14, %d, v14" % pitch)
    A("v_and_b32 v15, 7, v0")
    A("v_lshl_add_u32 v1, v15, 4, v14")
    for q in range(1, 4):
        A("v_add_u32 %s, %d, v1" % (v(1 + q), q * (8 * pitch - 1024)))
    A("s_waitcnt lgkmcnt(0)")
    G.srd(A,4,6291456)
    A("s_mov_b32 m0, s28")
    A("s_mov_b32 s33, 0")
    A("L_pass:")
    A("s_mov_b32 s26, s30")
    A("s_mov_b32 s29, 0")
    A("L_lp:")
    for q in range(4):
        A("buffer_load_dwordx4 %s, s[4:7], s26 offen offset:%d lds" % (v(1 + q), q * 1024))
    A("s_add_u32 s26, s26, %d" % (32 * pitch))
    A("s_waitcnt vmcnt(16)")
    A("s_add_u32 s29, s29, 1")
    A("s_cmp_lt_u32 s29, %d" % NS)
    A("s_cbranch_scc1 L_lp")
    A("s_add_u32 s33, s33, 1")
    A("s_cmp_lt_u32 s33, %d" % N)
    A("s_cbranch_scc1 L_pass")
    A("s_waitcnt vmcnt(0)")
    A("L_dd:")
elif kind=="code":
    A(".rept %d"%N)
    A("v_add_u32 v1, 0x12345, v0")
    A(".endr")
elif kind=="loop":
    A("s_mov_b32 s8, 0")
    A("L_lp:")
    A(".rept 16")
    A("v_add_u32 v1, 0x12345, v0")
    A(".endr")
    A("s_add_u32 s8, s8, 16")
    A("s_cmp_lt_u32 s8, %d"%N)
    A("s_cbranch_scc1 L_lp")
A("s_endpgm")
kernel_desc(A,"diag_kernel",32,32,48)
hdr=HEADER
d="; @launch kernel=diag_kernel grid=(%d,1,1) block=(%d,1,1) lds=%d\n"%(grid,blk,lds)
if first: hdr+=d
hdr += "; @launch kernel=ln_kernel grid=(256,1,1) block=(256,1,1) lds=%d\n" % (8 * G.LNP)
hdr += "; @launch kernel=gemm1_kernel grid=(240,1,1) block=(256,1,1) lds=%d\n" % l1
hdr += "; @launch kernel=gemm2_kernel grid=(256,1,1) block=(256,1,1) lds=%d\n" % l2
if not first: hdr+=d
open(sys.argv[1],"w").write(hdr+A.text())
```

```python
import sys, os
os.environ["STAG"]="1"
from asmlib import *
import gen_v1 as G
kind=sys.argv[2]; N=int(sys.argv[3]); first=int(sys.argv[4]);
A=Asm()
A('.amdgcn_target "amdgcn-amd-amdhsa--gfx950"')
G.gen_ln(A,"ln_kernel")
l1=G.gen_gemm(A,"gemm1_kernel",1)
l2=G.gen_gemm(A,"gemm2_kernel",2)
kernel_begin(A,"diag_kernel")
grid=256; blk=64; lds=0
if kind=="spin":
    A("s_memtime s[4:5]")
    A("s_waitcnt lgkmcnt(0)")
    A("L_spin:")
    A("s_memtime s[6:7]")
    A("s_waitcnt lgkmcnt(0)")
    A("s_sub_u32 s8, s6, s4")
    A("s_cmp_lt_u32 s8, %d"%N)
    A("s_cbranch_scc1 L_spin")
elif kind=="chase":
    stride=int(sys.argv[5]); ptr=int(sys.argv[6])
    grid=1
    A("s_cmp_ge_u32 s2, 1")
    A("s_cbranch_scc1 L_dd")
    A("s_load_dwordx2 s[4:5], s[0:1], %d"%ptr)
    A("s_waitcnt lgkmcnt(0)")
    G.srd(A,4,6291456 if ptr!=56 else 268435456)
    A("v_mov_b32 v1, 0")
    A("s_mov_b32 s8, 0")
    A("s_mov_b32 s9, 0")
    A("L_ch:")
    A("buffer_load_dword v2, v1, s[4:7], s9 offen")
    A("s_add_u32 s9, s9, %d"%stride)
    A("s_add_u32 s8, s8, 1")
    A("s_cmp_lt_u32 s8, %d"%N)
    A("s_waitcnt vmcnt(0)")
    A("s_cbranch_scc1 L_ch")
    A("L_dd:")
elif kind=="bw":
    pitch=int(sys.argv[5]); ptr=int(sys.argv[6]); ntile=pitch//128; NS=(6291456//pitch)//128
    blk=256; lds=131072
    A("s_cmp_ge_u32 s2, 240")
    A("s_cbranch_scc1 L_dd")
    A("s_load_dwordx2 s[4:5], s[0:1], %d"%ptr)
    A("v_lshrrev_b32 v14, 6, v0")
    A("v_and_b32 v0, 63, v0")
    A("v_readfirstlane_b32 s20, v14")
    A("s_and_b32 s21, s2, 7")
    A("s_lshr_b32 s22, s2, 3")
    A("s_lshr_b32 s21, s21, 1")
    A("s_mul_i32 s24, s22, 52")
    A("s_lshr_b32 s24, s24, 8")
    A("s_mul_i32 s21, s21, 6")
    A("s_add_u32 s21, s21, s24")
    A("s_mul_i32 s30, s20, %d" % (NS * 32 * pitch))
    A("s_lshl_b32 s24, s21, 7")
    A("s_add_u32 s30, s30, s24")
    A("s_mul_i32 s28, s20, 32768")
    A("v_lshrrev_b32 v14, 3, v0")
    A("v_mul_u32_u24 v14, %d, v14" % pitch)
    A("v_and_b32 v15, 7, v0")
    A("v_lshl_add_u32 v1, v15, 4, v14")
    for q in range(1, 4):
        A("v_add_u32 %s, %d, v1" % (v(1 + q), q * (8 * pitch - 1024)))
    A("s_waitcnt lgkmcnt(0)")
    G.srd(A,4,6291456)
    A("s_mov_b32 m0, s28")
    A("s_mov_b32 s33, 0")
    A("L_pass:")
    A("s_mov_b32 s26, s30")
    A("s_mov_b32 s29, 0")
    A("L_lp:")
    for q in range(4):
        A("buffer_load_dwordx4 %s, s[4:7], s26 offen offset:%d lds" % (v(1 + q), q * 1024))
    A("s_add_u32 s26, s26, %d" % (32 * pitch))
    A("s_waitcnt vmcnt(16)")
    A("s_add_u32 s29, s29, 1")
    A("s_cmp_lt_u32 s29, %d" % NS)
    A("s_cbranch_scc1 L_lp")
    A("s_add_u32 s33, s33, 1")
    A("s_cmp_lt_u32 s33, %d" % N)
    A("s_cbranch_scc1 L_pass")
    A("s_waitcnt vmcnt(0)")
    A("L_dd:")
elif kind=="rd":
    fl=sys.argv[5].replace("_"," ").replace("none",""); ptr=int(sys.argv[6])
    blk=256; lds=131072
    A("s_cmp_ge_u32 s2, 256")
    A("s_cbranch_scc1 L_dd")
    A("s_load_dwordx2 s[4:5], s[0:1], %d"%ptr)
    A("v_lshlrev_b32 v1, 4, v0")
    A("s_mul_i32 s21, s2, %d"%(N*1024))
    if ptr==56:
        A("s_add_u32 s21, s21, %d"%(int(sys.argv[7])<<20))
    A("s_waitcnt lgkmcnt(0)")
    G.srd(A,4,6291456 if ptr!=56 else 268435456)
    for i in range(N//4):
        A("buffer_load_dwordx4 v[4:7], v1, s[4:7], s21 offen %s"%fl)
        A("s_add_u32 s21, s21, 4096")
    A("s_waitcnt vmcnt(0)")
    A("L_dd:")
elif kind=="code":
    A(".rept %d"%N)
    A("v_add_u32 v1, 0x12345, v0")
    A(".endr")
elif kind=="loop":
    A("s_mov_b32 s8, 0")
    A("L_lp:")
    A(".rept 16")
    A("v_add_u32 v1, 0x12345, v0")
    A(".endr")
    A("s_add_u32 s8, s8, 16")
    A("s_cmp_lt_u32 s8, %d"%N)
    A("s_cbranch_scc1 L_lp")
A("s_endpgm")
kernel_desc(A,"diag_kernel",32,32,48)
hdr=HEADER
d="; @launch kernel=diag_kernel grid=(%d,1,1) block=(%d,1,1) lds=%d\n"%(grid,blk,lds)
if first: hdr+=d
hdr += "; @launch kernel=ln_kernel grid=(256,1,1) block=(256,1,1) lds=%d\n" % (8 * G.LNP)
hdr += "; @launch kernel=gemm1_kernel grid=(240,1,1) block=(256,1,1) lds=%d\n" % l1
hdr += "; @launch kernel=gemm2_kernel grid=(256,1,1) block=(256,1,1) lds=%d\n" % l2
if not first: hdr+=d
open(sys.argv[1],"w").write(hdr+A.text())
```

```python
import sys, os
from asmlib import *

E = lambda k, d: int(os.environ.get(k, d))
STAMPS_ON = bool(E("STAMPS", 0))
set_stamps(STAMPS_ON)

NAME = "standalone__mixer_token_mlp__prompt_kernel"
S, D, F = 2048, 640, 1536
KSTEP_B = 40960
H_OFF = 0
G_OFF = 0x280000
FL1 = 0x480000
FL2 = 0x490000
EPOCH = 0x4A0000
WS_SIZE = 0x4B0000
LNP = 1344
RING0 = 65536
NSLOT = 6
RINGB = NSLOT * 4096

DEPTH = E("DEPTH", 10)
WD = E("WD", 3)
N0 = E("N0", 2)
N1 = E("N1", 2)
ROT1 = E("ROT1", 3)
ROT1X = E("ROT1X", 0)
C1M = E("C1M", 2)
ROT2 = E("ROT2", 3)
ROT2X = E("ROT2X", 0)
ROT2S = E("ROT2S", 0)
C2M = E("C2M", 2)
M1 = E("M1", 1)
M2 = E("M2", 2)
PE1 = E("PE1", 3)
PE2 = E("PE2", 3)
SPIN = 1 << 17

SX, SW1, SW2, SWS, SOUT, SB1, SB2 = 4, 8, 12, 16, 20, 24, 28
ST = 32
sWAVE, sDT, sFT, sDT2, sST, sC, sRING, sWOFF = 48, 49, 50, 51, 52, 53, 54, 55
sT0, sT1, sT2, sWBASE, sWEND, sMAIN = 96, 97, 98, 99, 100, 3
VW1, VW2, VT, VA = 1, 5, 9, 13
vTAG = 20
vPOLL, vPA, vFA, vXW, vXR, vX4 = 18, 19, 24, 25, 26, 29
vT0, vT1 = 30, 31
VB1 = 32
VB2 = 40
AB = 48
RB = 96
PS = 160
ACC = 176


class VM:
    def __init__(self, A):
        self.A = A
        self.ops = []

    def op(self, text, tag, optional=False):
        self.ops.append((tag, optional))
        return text

    def count(self, tag):
        idx = max(i for i, (t, _) in enumerate(self.ops) if t == tag)
        n = sum(1 for (t, o) in self.ops[idx + 1:] if not o)
        assert n <= 63
        return n

    def wait(self, tag):
        return "s_waitcnt vmcnt(%d)" % self.count(tag)


def srd(A, dst, src, bytes_):
    A("s_mov_b32 %s, %s" % (s(dst), s(src)))
    A("s_and_b32 %s, %s, 0xffff" % (s(dst + 1), s(src + 1)))
    A("s_mov_b32 %s, %d" % (s(dst + 2), bytes_))
    A("s_mov_b32 %s, 0x20000" % s(dst + 3))


def reduce32(A, x, t):
    for mod in ("quad_perm:[1,0,3,2]", "quad_perm:[2,3,0,1]", "row_half_mirror", "row_mirror"):
        A("s_nop 1")
        A("v_add_f32_dpp %s, %s, %s %s row_mask:0xf bank_mask:0xf" % (v(x), v(x), v(x), mod))
    A("v_mov_b32 %s, %s" % (v(t), v(x)))
    A("s_nop 1")
    A("v_permlane16_swap_b32 %s, %s" % (v(t), v(x)))
    A("s_nop 1")
    A("v_add_f32 %s, %s, %s" % (v(x), v(x), v(t)))


def gen():
    A = Asm()
    vm = VM(A)
    A('.amdgcn_target "amdgcn-amd-amdhsa--gfx950"')
    kernel_begin(A, NAME)
    A("s_cmp_ge_u32 s2, 256")
    A("s_cbranch_scc1 L_done")
    stamp_init(A)
    A("s_load_dwordx16 s[32:47], s[0:1], 0")
    A("v_lshrrev_b32 v30, 6, v0")
    A("v_lshrrev_b32 v48, 5, v0")
    A("v_readfirstlane_b32 %s, v30" % s(sWAVE))
    A("v_and_b32 v49, 31, v0")
    A("v_and_b32 v0, 63, v0")
    A("s_lshr_b32 %s, s2, 2" % s(sT0))
    A("s_and_b32 %s, s2, 3" % s(sT1))
    A("s_lshl_b32 %s, %s, 5" % (s(sT2), s(sT0)))
    A("s_lshl_b32 %s, %s, 2" % (s(sT1), s(sT1)))
    A("s_add_u32 %s, %s, %s" % (s(sT2), s(sT2), s(sT1)))
    A("v_and_b32 v50, 3, v48")
    A("v_lshrrev_b32 v51, 2, v48")
    A("v_lshl_add_u32 v50, v51, 4, v50")
    A("v_add_u32 v50, %s, v50" % s(sT2))
    A("v_mul_u32_u24 v50, 1280, v50")
    A("v_lshl_add_u32 v51, v49, 3, v50")
    A("v_lshl_add_u32 v50, v49, 4, v50")
    A("v_mov_b32 v52, %d" % EPOCH)
    A("s_lshr_b32 %s, s2, 3" % s(sT0))
    A("s_cmp_lt_u32 %s, 30" % s(sT0))
    A("s_cselect_b32 %s, 1, 0" % s(sMAIN))
    A("s_min_u32 %s, %s, 29" % (s(sT1), s(sT0)))
    A("s_mul_i32 %s, %s, 52" % (s(sFT), s(sT1)))
    A("s_lshr_b32 %s, %s, 8" % (s(sFT), s(sFT)))
    A("s_mul_i32 %s, %s, 5" % (s(sT2), s(sFT)))
    A("s_sub_u32 %s, %s, %s" % (s(sDT), s(sT1), s(sT2)))
    if C1M == 2:
        A("s_and_b32 %s, %s, 1" % (s(sC), s(sFT)))
        A("s_lshl_b32 %s, %s, 1" % (s(sC), s(sC)))
    else:
        A("s_and_b32 %s, %s, %d" % (s(sC), s(sFT), C1M))
    A("s_mul_i32 %s, %s, %d" % (s(sWOFF), s(sDT), ROT1))
    A("s_and_b32 %s, s2, 1" % s(sT1))
    if ROT1X:
        A("s_mul_i32 %s, %s, %d" % (s(sT2), s(sT1), ROT1X))
        A("s_add_u32 %s, %s, %s" % (s(sWOFF), s(sWOFF), s(sT2)))
    A("s_and_b32 %s, %s, 15" % (s(sWOFF), s(sWOFF)))
    A("s_mul_i32 %s, %s, 5" % (s(sT2), s(sT1)))
    A("s_add_u32 %s, %s, %s" % (s(sDT), s(sDT), s(sT2)))
    A("s_bfe_u32 %s, s2, 0x20001" % s(sT1))
    A("s_mul_i32 %s, %s, 6" % (s(sT2), s(sT1)))
    A("s_add_u32 %s, %s, %s" % (s(sFT), s(sFT), s(sT2)))
    A("s_mov_b32 %s, %s" % (s(sST), s(sWOFF)))
    p1 = 3072
    A("s_mul_i32 %s, %s, %d" % (s(sWBASE), s(sWAVE), 16 * 32 * p1))
    A("s_lshl_b32 %s, %s, 7" % (s(sT2), s(sFT)))
    A("s_add_u32 %s, %s, %s" % (s(sWBASE), s(sWBASE), s(sT2)))
    A("s_add_u32 %s, %s, %d" % (s(sWEND), s(sWBASE), 16 * 32 * p1))
    A("s_mul_i32 %s, %s, %d" % (s(sWOFF), s(sWOFF), 32 * p1))
    A("s_add_u32 %s, %s, %s" % (s(sWOFF), s(sWOFF), s(sWBASE)))
    A("s_mul_i32 %s, %s, %d" % (s(sRING), s(sWAVE), RINGB))
    A("s_add_u32 %s, %s, %d" % (s(sRING), s(sRING), RING0))
    A("v_lshrrev_b32 v53, 3, v0")
    A("v_bfe_u32 v54, v0, 1, 2")
    A("v_lshrrev_b32 v55, 4, v0")
    A("v_xor_b32 v54, v54, v55")
    A("v_lshlrev_b32 v54, 5, v54")
    A("v_and_b32 v56, 1, v0")
    A("v_lshl_add_u32 v54, v56, 4, v54")
    A("v_mul_u32_u24 %s, %d, v53" % (v(VW1), p1))
    A("v_add_u32 %s, %s, v54" % (v(VW1), v(VW1)))
    for q in range(1, 4):
        A("v_add_u32 %s, %d, %s" % (v(VW1 + q), q * (8 * p1 - 1024), v(VW1)))
    A("s_waitcnt lgkmcnt(0)")
    srd(A, SWS, 46, WS_SIZE)
    srd(A, SX, 32, S * D * 2)
    A(vm.op("buffer_load_dword %s, v52, %s, 0 offen sc1" % (v(vTAG), s(SWS, 4)), "epoch"))
    A(vm.op("buffer_load_dwordx4 v[60:63], v50, %s, 0 offen" % s(SX, 4), "x"))
    A(vm.op("buffer_load_dwordx4 v[64:67], v50, %s, 0 offen offset:512" % s(SX, 4), "x"))
    A(vm.op("buffer_load_dwordx2 v[68:69], v51, %s, 0 offen offset:1024" % s(SX, 4), "x"))
    srd(A, SW1, 34, S * F * 2)

    def wdma(which, i):
        pitch = 3072 if which == 1 else 4096
        vw = VW1 if which == 1 else VW2
        sr = SW1 if which == 1 else SW2
        out = []
        for q in range(4):
            pre = "s_add_u32 m0, %s, %d\ns_nop 0\n" % (s(sRING), (i % NSLOT) * 4096) if q == 0 else ""
            post = ""
            if q == 3:
                post = "\ns_add_u32 %s, %s, %d\ns_cmp_eq_u32 %s, %s\ns_cselect_b32 %s, %s, %s" % (
                    s(sWOFF), s(sWOFF), 32 * pitch, s(sWOFF), s(sWEND), s(sWOFF), s(sWBASE), s(sWOFF))
            out.append((pre + "buffer_load_dwordx4 %s, %s, %s offen offset:%d lds" % (v(vw + q), s(sr, 4), s(sWOFF), q * 1024) + post, "w%d_%d" % (which, i)))
        return out

    def emit_w(which, i):
        for t, tag in wdma(which, i):
            A(vm.op(t, tag))

    def tr_reads(i):
        out = []
        for b in range(4):
            for t in range(2):
                out.append("ds_read_b64_tr_b16 %s, %s offset:%d" % (a(16 * i + b * 4 + 2 * t, 2), v(VT + b), (i % NSLOT) * 4096 + t * 2048))
        return out

    w1_next = 0
    for _ in range(N0):
        emit_w(1, w1_next)
        w1_next += 1
    srd(A, SW2, 38, S * F * 2)
    srd(A, SOUT, 42, S * D * 2)
    srd(A, SB1, 36, F * 2)
    srd(A, SB2, 40, S * 2)
    A("v_lshl_add_u32 %s, v53, 12, v54" % v(VW2))
    for q in range(1, 4):
        A("v_add_u32 %s, %d, %s" % (v(VW2 + q), q * (8 * 4096 - 1024), v(VW2)))
    A("v_and_b32 v57, 15, v0")
    A("v_lshrrev_b32 v53, 2, v57")
    A("v_lshl_add_u32 v54, v55, 2, v53")
    A("v_bfe_u32 v56, v54, 1, 2")
    A("v_lshlrev_b32 v54, 7, v54")
    A("v_and_b32 v58, 3, v57")
    A("v_lshl_add_u32 v54, v58, 3, v54")
    A("v_add_u32 v54, %s, v54" % s(sRING))
    for b in range(4):
        A("v_xor_b32 v59, %d, v56" % b)
        A("v_lshl_add_u32 %s, v59, 5, v54" % v(VT + b))
    A("v_lshrrev_b32 v54, 1, v48")
    A("v_and_b32 v56, 1, v48")
    A("v_mul_u32_u24 v56, %d, v56" % LNP)
    A("v_lshl_add_u32 v56, v54, 14, v56")
    A("v_and_b32 v54, 1, v54")
    A("v_lshl_add_u32 v56, v54, 7, v56")
    A("v_lshl_add_u32 v51, v49, 3, v56")
    A("v_lshl_add_u32 v50, v49, 4, v56")
    A("v_lshrrev_b32 v54, 1, v53")
    A("v_and_b32 v56, 1, v53")
    A("v_mul_u32_u24 v56, %d, v56" % LNP)
    A("v_mul_u32_u24 v54, %d, v54" % (16384 + 128))
    A("v_add_u32 v56, v56, v54")
    A("v_lshl_add_u32 v56, v58, 3, v56")
    A("v_lshl_add_u32 v56, v55, 5, v56")
    A("v_lshl_add_u32 v52, v30, 7, v56")
    A("v_lshlrev_b32 v53, 4, v57")
    A("v_lshl_add_u32 v53, v55, 10, v53")
    A("v_lshl_add_u32 v53, v30, 12, v53")
    A("v_lshlrev_b32 %s, 4, v0" % v(vT1))
    A("v_lshl_add_u32 %s, v30, 14, %s" % (v(vXW), v(vT1)))
    for j in range(1, 4):
        A("v_xor_b32 %s, %d, %s" % (v(vXR + j - 1), j << 14, v(vXW)))
    A("v_lshl_add_u32 %s, v30, 10, %s" % (v(vX4), v(vT1)))
    A("s_xor_b32 %s, %s, %s" % (s(sC), s(sC), s(sWAVE)))
    for j in range(4):
        A("s_xor_b32 %s, %s, %d" % (s(sT0), s(sC), j))
        A("s_lshl_b32 %s, %s, 10" % (s(sT0), s(sT0)))
        A("v_add_u32 %s, %s, %s" % (v(VA + j), s(sT0), v(vT1)))
    A("s_lshl_b32 %s, %s, 8" % (s(sT0), s(sWAVE)))
    A("s_add_u32 %s, %s, s2" % (s(sT0), s(sT0)))
    A("s_lshl_b32 %s, %s, 6" % (s(sT0), s(sT0)))
    A("s_add_u32 %s, %s, %d" % (s(sT0), s(sT0), FL1))
    A("v_add_u32 %s, %s, %s" % (v(vFA), s(sT0), v(vT1)))
    A("s_and_b32 %s, %s, 3" % (s(sT0), s(sDT)))
    A("s_lshl_b32 %s, %s, 2" % (s(sT0), s(sT0)))
    A("s_add_u32 %s, %s, %s" % (s(sT0), s(sT0), s(sWAVE)))
    A("s_lshl_b32 %s, %s, 12" % (s(sT0), s(sT0)))
    A("s_add_u32 %s, %s, %d" % (s(sT0), s(sT0), FL1))
    A("v_lshl_add_u32 %s, v0, 6, %s" % (v(vPA), s(sT0)))

    def build_table(ns, rot, base_code):
        base_code()
        A("s_add_u32 %s, %s, %d" % (s(sT1), s(sT0), ns * KSTEP_B))
        A("s_mul_i32 %s, %s, %d" % (s(ST), s(rot), KSTEP_B))
        A("s_add_u32 %s, %s, %s" % (s(ST), s(ST), s(sT0)))
        for i in range(1, ns):
            A("s_add_u32 %s, %s, %d" % (s(ST + i), s(ST + i - 1), KSTEP_B))
            A("s_cmp_eq_u32 %s, %s" % (s(ST + i), s(sT1)))
            A("s_cselect_b32 %s, %s, %s" % (s(ST + i), s(sT0), s(ST + i)))

    def base1():
        A("s_mul_i32 %s, %s, %d" % (s(sT0), s(sWAVE), 16 * KSTEP_B))
        A("s_lshl_b32 %s, %s, 12" % (s(sT1), s(sDT)))
        A("s_add_u32 %s, %s, %s" % (s(sT0), s(sT0), s(sT1)))

    build_table(16, sST, base1)
    A("s_lshr_b32 %s, s2, 2" % s(sT0))
    A("s_mul_i32 %s, %s, %d" % (s(sT0), s(sT0), KSTEP_B))
    A("s_and_b32 %s, s2, 3" % s(sT1))
    A("s_lshl_b32 %s, %s, 8" % (s(sT1), s(sT1)))
    A("s_add_u32 %s, %s, %s" % (s(sT0), s(sT0), s(sT1)))
    A("s_add_u32 %s, %s, 16384" % (s(sT1), s(sT0)))
    A("s_add_u32 %s, %s, 32768" % (s(sT2), s(sT0)))
    stamp(A, 1)
    A(vm.wait("x"))
    stamp(A, 2)
    X = 70
    for q in range(10):
        A("v_lshlrev_b32 %s, 16, %s" % (v(X + 2 * q), v(60 + q)))
        A("v_and_b32 %s, 0xffff0000, %s" % (v(X + 1 + 2 * q), v(60 + q)))
    A("v_pk_add_f32 v[60:61], %s, %s" % (v(X, 2), v(X + 2, 2)))
    A("v_pk_add_f32 v[62:63], %s, %s" % (v(X + 4, 2), v(X + 6, 2)))
    for q in range(8, 20, 4):
        A("v_pk_add_f32 v[60:61], v[60:61], %s" % v(X + q, 2))
        A("v_pk_add_f32 v[62:63], v[62:63], %s" % v(X + q + 2, 2))
    A("v_pk_add_f32 v[60:61], v[60:61], v[62:63]")
    A("v_mov_b32 v64, 0x41c64e6d")
    A("v_add_f32 v60, v60, v61")
    A("v_mul_lo_u32 %s, %s, v64" % (v(vTAG), v(vTAG)))
    reduce32(A, 60, 61)
    A("v_mul_f32 v60, %s, v60" % f32(-1.0 / 640))
    A("v_add_u32 %s, 0x3039, %s" % (v(vTAG), v(vTAG)))
    for q in range(0, 20, 2):
        A("v_pk_add_f32 %s, %s, v[60:61] op_sel_hi:[1,0]" % (v(X + q, 2), v(X + q, 2)))
    A("v_pk_mul_f32 v[62:63], %s, %s" % (v(X, 2), v(X, 2)))
    A("v_pk_mul_f32 v[64:65], %s, %s" % (v(X + 2, 2), v(X + 2, 2)))
    for q in range(4, 20, 4):
        A("v_pk_fma_f32 v[62:63], %s, %s, v[62:63]" % (v(X + q, 2), v(X + q, 2)))
        A("v_pk_fma_f32 v[64:65], %s, %s, v[64:65]" % (v(X + q + 2, 2), v(X + q + 2, 2)))
    A("v_pk_add_f32 v[62:63], v[62:63], v[64:65]")
    A("v_mov_b32 %s, %s" % (v(vTAG + 1), v(vTAG)))
    A("v_add_f32 v62, v62, v63")
    A("v_mov_b32 %s, %s" % (v(vTAG + 2), v(vTAG)))
    reduce32(A, 62, 63)
    A("v_mul_f32 v62, %s, v62" % f32(1.0 / 640))
    A("v_mov_b32 %s, %s" % (v(vTAG + 3), v(vTAG)))
    A("v_cvt_pk_bf16_f32 v64, v60, v62")
    A("v_lshlrev_b32 v66, 16, v64")
    A("v_and_b32 v64, 0xffff0000, v64")
    A("v_add_f32 v64, %s, v64" % f32(1e-5))
    A("v_cvt_pk_bf16_f32 v64, v64, v64")
    A("v_lshlrev_b32 v64, 16, v64")
    A("v_sqrt_f32 v64, v64")
    A("v_sub_f32 v66, v66, v60")
    A("v_cvt_pk_bf16_f32 v64, v64, v64")
    A("v_lshlrev_b32 v64, 16, v64")
    A("v_rcp_f32 v64, v64")
    A("s_nop 0")
    A("v_mul_f32 v66, v66, v64")
    for q in range(0, 20, 2):
        A("v_pk_fma_f32 %s, %s, v[64:65], v[66:67] op_sel_hi:[1,0,0]" % (v(X + q, 2), v(X + q, 2)))
    for q in range(10):
        A("v_cvt_pk_bf16_f32 %s, %s, %s" % (v(60 + q), v(X + 2 * q), v(X + 1 + 2 * q)))
    A("ds_write_b128 v50, v[60:63]")
    A("ds_write_b128 v50, v[64:67] offset:512")
    A("ds_write_b64 v51, v[68:69] offset:1024")
    A("s_waitcnt lgkmcnt(0)")
    A("s_barrier")
    A("ds_read_b64_tr_b16 v[60:61], v52")
    A("ds_read_b64_tr_b16 v[62:63], v52 offset:32768")
    A("ds_read_b64_tr_b16 v[64:65], v52 offset:512")
    A("ds_read_b64_tr_b16 v[66:67], v52 offset:%d" % (32768 + 512))
    A("s_cmp_ge_u32 %s, 2" % s(sWAVE))
    A("s_cbranch_scc1 L_ln_two")
    A("ds_read_b64_tr_b16 v[68:69], v52 offset:1024")
    A("ds_read_b64_tr_b16 v[70:71], v52 offset:%d" % (32768 + 1024))
    A("s_waitcnt lgkmcnt(0)")
    A(vm.op("buffer_store_dwordx4 v[68:71], v53, %s, %s offen sc1" % (s(SWS, 4), s(sT2)), "hst", True))
    A("L_ln_two:")
    A("s_waitcnt lgkmcnt(0)")
    A(vm.op("buffer_store_dwordx4 v[60:63], v53, %s, %s offen sc1" % (s(SWS, 4), s(sT0)), "hst"))
    A(vm.op("buffer_store_dwordx4 v[64:67], v53, %s, %s offen sc1" % (s(SWS, 4), s(sT1)), "hst"))
    stamp(A, 3)
    for _ in range(N1):
        emit_w(1, w1_next)
        w1_next += 1
    A("s_lshr_b32 %s, s2, 3" % s(sT0))
    A("s_and_b32 %s, %s, 3" % (s(sDT2), s(sT0)))
    A("s_lshr_b32 %s, %s, 2" % (s(sST), s(sT0)))
    A(vm.wait("hst"))
    A("s_mov_b64 exec, 15")
    A(vm.op("buffer_store_dwordx4 %s, %s, %s, 0 offen sc1" % (v(vTAG, 4), v(vFA), s(SWS, 4)), "fl1"))
    A("s_mov_b64 exec, -1")
    stamp(A, 4)

    def gemm2_setup_w():
        A("s_mul_i32 s101, %s, %d" % (s(sDT2), ROT2))
        if ROT2X:
            A("s_and_b32 %s, s2, 1" % s(sT1))
            A("s_mul_i32 %s, %s, %d" % (s(sT1), s(sT1), ROT2X))
            A("s_add_u32 s101, s101, %s" % s(sT1))
        if ROT2S:
            A("s_bfe_u32 %s, %s, 0x10001" % (s(sT1), s(sST)))
            A("s_mul_i32 %s, %s, %d" % (s(sT1), s(sT1), ROT2S))
            A("s_add_u32 s101, s101, %s" % s(sT1))
        A("s_cmp_ge_u32 s101, 12")
        A("s_cselect_b32 %s, 12, 0" % s(sT1))
        A("s_sub_u32 s101, s101, %s" % s(sT1))
        A("s_and_b32 %s, s2, 1" % s(sT1))
        A("s_lshl_b32 %s, %s, 2" % (s(sT1), s(sT1)))
        A("s_add_u32 %s, %s, %s" % (s(sDT2), s(sDT2), s(sT1)))
        A("s_bfe_u32 %s, s2, 0x20001" % s(sT1))
        A("s_lshl_b32 %s, %s, 3" % (s(sT1), s(sT1)))
        A("s_add_u32 %s, %s, %s" % (s(sST), s(sST), s(sT1)))

    gemm2_setup_w()
    A("v_lshlrev_b32 %s, 3, v55" % v(vT0))
    A("s_lshl_b32 %s, %s, 7" % (s(sT0), s(sFT)))
    for o in range(4):
        A(vm.op("buffer_load_dwordx2 %s, %s, %s, %s offen offset:%d" % (v(VB1 + 2 * o, 2), v(vT0), s(SB1, 4), s(sT0), 32 * o), "b1"))
    A("v_lshlrev_b32 %s, 1, v57" % v(vT0))
    A("s_lshl_b32 %s, %s, 7" % (s(sT0), s(sST)))
    for q in range(4):
        A(vm.op("buffer_load_ushort %s, %s, %s, %s offen offset:%d" % (v(VB2 + q), v(vT0), s(SB2, 4), s(sT0), 32 * q), "b2"))
    A("s_lshl_b32 %s, %s, 5" % (s(sT1), s(sWAVE)))
    A("s_add_u32 %s, %s, %s" % (s(sT0), s(sT0), s(sT1)))
    A(vm.op("buffer_load_ushort %s, %s, %s, %s offen" % (v(VB2 + 4), v(vT0), s(SB2, 4), s(sT0)), "b2"))

    def w2_offsets():
        A("s_mul_i32 %s, %s, %d" % (s(sWBASE), s(sWAVE), 12 * 32 * 4096))
        A("s_lshl_b32 %s, %s, 7" % (s(sT1), s(sST)))
        A("s_add_u32 %s, %s, %s" % (s(sWBASE), s(sWBASE), s(sT1)))
        A("s_add_u32 %s, %s, %d" % (s(sWEND), s(sWBASE), 12 * 32 * 4096))
        A("s_lshl_b32 %s, s101, 17" % s(sWOFF))
        A("s_add_u32 %s, %s, %s" % (s(sWOFF), s(sWOFF), s(sWBASE)))

    A("s_cmp_eq_u32 %s, 0" % s(sMAIN))
    A("s_cbranch_scc1 L_helper")

    def poll_issue(tag):
        A(vm.op("buffer_load_dword %s, %s, %s, 0 offen sc1" % (v(vPOLL), v(vPA), s(SWS, 4)), tag))

    def poll_check(tag, lab):
        A(vm.wait(tag))
        A("v_cmp_ne_u32 vcc, %s, %s" % (v(vPOLL), v(vTAG)))
        A("s_cbranch_vccz %s_ok" % lab)
        A("s_mov_b32 %s, 0" % s(sT0))
        A("%s_spin:" % lab)
        A("buffer_load_dword %s, %s, %s, 0 offen sc1" % (v(vPOLL), v(vPA), s(SWS, 4)))
        A("s_add_u32 %s, %s, 1" % (s(sT0), s(sT0)))
        A("s_cmp_ge_u32 %s, %d" % (s(sT0), SPIN))
        A("s_waitcnt vmcnt(0)")
        A("s_cbranch_scc1 %s_ok" % lab)
        A("v_cmp_ne_u32 vcc, %s, %s" % (v(vPOLL), v(vTAG)))
        A("s_cbranch_vccnz %s_spin" % lab)
        A("%s_ok:" % lab)

    def w_stream(which, ns, nxt, pe, lab, first_acts):
        acts = list(first_acts)
        polled = checked = False
        for i in range(ns):
            while nxt < ns and nxt < i + WD:
                if not polled and nxt >= ns - pe:
                    poll_issue("poll%d" % which)
                    polled = True
                assert nxt - NSLOT <= i - 3 or nxt < NSLOT
                emit_w(which, nxt)
                nxt += 1
            if nxt == ns and not polled:
                poll_issue("poll%d" % which)
                polled = True
            A(vm.wait("w%d_%d" % (which, i)))
            A("s_waitcnt lgkmcnt(7)")
            for x in tr_reads(i):
                A(x)
            if nxt == ns and i + WD > ns - 1:
                if not checked:
                    poll_check("poll%d" % which, lab)
                    stamp(A, 5 if which == 1 else 10)
                    checked = True
                k = len(acts) if i == ns - 1 else min(4, len(acts))
                for t, tag in acts[:k]:
                    A(vm.op(t, tag))
                acts = acts[k:]
        A("s_waitcnt lgkmcnt(0)")

    NBUF = DEPTH + 1
    assert NBUF <= 12

    def act_load(which, n, ns, va_of_block):
        blk, i = divmod(n, ns)
        return ("buffer_load_dwordx4 %s, %s, %s, %s offen sc1" % (v(AB + (n % NBUF) * 4, 4), v(va_of_block(blk)), s(SWS, 4), s(ST + i)), "a%d_%d" % (which, n))

    def units(which, ns, nblk, va_of_block, tail_vm, extra):
        nun = ns * nblk
        tail_vm = list(tail_vm)
        for n in range(nun):
            blk, i = divmod(n, ns)
            A(vm.wait("a%d_%d" % (which, n)))
            fill = []
            if n + DEPTH < nun:
                t, tag = act_load(which, n + DEPTH, ns, va_of_block)
                fill.append(vm.op(t, tag))
            elif tail_vm:
                t, tag = tail_vm.pop(0)
                fill.append(vm.op(t, tag))
            fill += extra.get(n, [])
            m = []
            ar = v(AB + (n % NBUF) * 4, 4)
            for o in range(4):
                d = v(ACC + blk * 16 + o * 4, 4)
                wr = a(16 * i + 4 * o, 4)
                c = "0" if i == 0 else d
                if which == 1:
                    m.append("v_mfma_f32_16x16x32_bf16 %s, %s, %s, %s" % (d, wr, ar, c))
                else:
                    m.append("v_mfma_f32_16x16x32_bf16 %s, %s, %s, %s" % (d, ar, wr, c))
            per = (len(fill) + 3) // 4
            for x in interleave(m, fill, 0, 1, max(per, 1)):
                A(x)
        return tail_vm

    def xwrites(blk, slot):
        return ["ds_write_b128 %s, %s offset:%d" % (v(vXW), v(ACC + blk * 16 + o * 4, 4), slot * 4096 + o * 1024) for o in range(4)]

    def add_extra(extra, n, lst):
        extra.setdefault(n, []).extend(lst)

    va1 = lambda blk: VA + 3 - blk
    w_stream(1, 16, w1_next, PE1, "L_p1", [act_load(1, n, 16, va1) for n in range(DEPTH)])
    stamp(A, 6)
    w2_offsets()
    extra = {}
    for blk in range(3):
        w = xwrites(blk, blk + 1)
        add_extra(extra, 16 * (blk + 1) + 2, w[:2])
        add_extra(extra, 16 * (blk + 1) + 3, w[2:])
    for o in range(4):
        l = []
        for r in range(4):
            src = v(VB1 + 2 * o + (r >> 1))
            l.append(("v_and_b32 %s, 0xffff0000, %s" if r & 1 else "v_lshlrev_b32 %s, 16, %s") % (v(PS + o * 4 + r), src))
        add_extra(extra, 40 + o, l)
    add_extra(extra, 48 + 5, ["s_waitcnt lgkmcnt(0)\ns_barrier"])
    for j in range(1, 4):
        add_extra(extra, 48 + 5 + j, ["ds_read_b128 %s, %s offset:%d" % (v(RB + (j - 1) * 16 + o * 4, 4), v(vXR + j - 1), (4 - j) * 4096 + o * 1024) for o in range(4)])
    for j in range(1, 4):
        l = ["v_pk_add_f32 %s, %s, %s" % (v(PS + 2 * e, 2), v(PS + 2 * e, 2), v(RB + (j - 1) * 16 + 2 * e, 2)) for e in range(8)]
        l[0] = "s_waitcnt lgkmcnt(%d)\n" % (4 * (3 - j)) + l[0]
        add_extra(extra, 48 + 8 + 2 * j, l[:4])
        add_extra(extra, 48 + 9 + 2 * j, l[4:])
    w2_ops = []
    for i in range(NSLOT):
        w2_ops += wdma(2, i)
    rest = units(1, 16, 4, va1, w2_ops, extra)
    stamp(A, 7)
    U = ACC + 48
    T = RB
    k1 = 2 * 0.7978845608028654 * 1.4426950408889634
    k3 = k1 * 0.044715
    A("v_mov_b32 %s, %s" % (v(vT0), f32(-k3)))
    A("v_mov_b32 %s, %s" % (v(vT1), f32(-k1)))
    A("s_lshl_b32 %s, %s, 2" % (s(sT2), s(sDT)))
    A("s_add_u32 %s, %s, %s" % (s(sT2), s(sT2), s(sC)))
    A("s_mul_i32 %s, %s, %d" % (s(sT0), s(sFT), 2 * KSTEP_B))
    A("s_lshl_b32 %s, %s, 10" % (s(sT1), s(sT2)))
    A("s_add_u32 %s, %s, %s" % (s(sT0), s(sT0), s(sT1)))
    A("s_add_u32 %s, %s, %d" % (s(sT0), s(sT0), G_OFF))
    A("s_add_u32 %s, %s, %d" % (s(sT1), s(sT0), KSTEP_B))
    A("s_mul_i32 %s, %s, 24" % (s(sT2), s(sT2)))
    A("s_add_u32 %s, %s, %s" % (s(sT2), s(sT2), s(sFT)))
    A("s_lshl_b32 %s, %s, 6" % (s(sT2), s(sT2)))
    A("s_add_u32 %s, %s, %d" % (s(sT2), s(sT2), FL2))
    A("v_lshlrev_b32 %s, 4, v0" % v(vFA))
    gel = []
    for e in range(0, 16, 2):
        gel.append("v_pk_add_f32 %s, %s, %s" % (v(U + e, 2), v(U + e, 2), v(PS + e, 2)))
    for e in range(0, 16, 2):
        gel.append("v_pk_mul_f32 %s, %s, %s" % (v(T + e, 2), v(U + e, 2), v(U + e, 2)))
    for e in range(0, 16, 2):
        gel.append("v_pk_fma_f32 %s, %s, %s, %s op_sel:[0,0,1] op_sel_hi:[1,0,1]" % (v(T + e, 2), v(T + e, 2), v(vT0, 2), v(vT0, 2)))
    for e in range(0, 16, 2):
        gel.append("v_pk_mul_f32 %s, %s, %s" % (v(T + e, 2), v(T + e, 2), v(U + e, 2)))
    for e in range(16):
        gel.append("v_exp_f32 %s, %s" % (v(T + e), v(T + e)))
    for e in range(0, 16, 2):
        gel.append("v_pk_add_f32 %s, %s, 1.0 op_sel_hi:[1,0]" % (v(T + e, 2), v(T + e, 2)))
    for e in range(16):
        gel.append("v_rcp_f32 %s, %s" % (v(T + e), v(T + e)))
    for e in range(0, 16, 2):
        gel.append("v_pk_mul_f32 %s, %s, %s" % (v(U + e, 2), v(U + e, 2), v(T + e, 2)))
    for e in range(8):
        gel.append("v_cvt_pk_bf16_f32 %s, %s, %s" % (v(T + e), v(U + 2 * e), v(U + 2 * e + 1)))
    done = len(w2_ops) - len(rest)
    k = min(len(rest), (-done) % 4 + 4 * M1)
    ins = rest[:k]
    rest = rest[k:]
    step = max(1, 70 // max(1, len(ins)))
    gi = 0
    for n, x in enumerate(gel):
        A(x)
        if n % step == step - 1 and gi < len(ins):
            A(vm.op(*ins[gi]))
            gi += 1
    for x in ins[gi:]:
        A(vm.op(*x))
    A(vm.op("buffer_store_dwordx4 %s, %s, %s, %s offen sc1" % (v(T, 4), v(vFA), s(SWS, 4), s(sT0)), "gst"))
    A(vm.op("buffer_store_dwordx4 %s, %s, %s, %s offen sc1" % (v(T + 4, 4), v(vFA), s(SWS, 4), s(sT1)), "gst"))
    stamp(A, 8)
    k = min(len(rest), 4 * M2)
    for x in rest[:k]:
        A(vm.op(*x))
    rest = rest[k:]
    w2_next = (len(w2_ops) - len(rest)) // 4
    A(vm.wait("gst"))
    A("s_mov_b64 exec, 15")
    A(vm.op("buffer_store_dwordx4 %s, %s, %s, %s offen sc1" % (v(vTAG, 4), v(vFA), s(SWS, 4), s(sT2)), "fl2", True))
    A("s_or_b32 %s, s2, %s" % (s(sT0), s(sWAVE)))
    A("s_cbranch_scc1 L_noepoch")
    A("s_mov_b32 %s, %d" % (s(sT0), EPOCH))
    A(vm.op("buffer_store_dwordx4 %s, %s, %s, %s offen sc1" % (v(vTAG, 4), v(vFA), s(SWS, 4), s(sT0)), "ep", True))
    A("L_noepoch:")
    A("s_mov_b64 exec, -1")
    stamp(A, 9)
    A("L_join:")
    if C2M == 2:
        A("s_and_b32 %s, %s, 1" % (s(sC), s(sST)))
        A("s_lshl_b32 %s, %s, 1" % (s(sC), s(sC)))
    else:
        A("s_and_b32 %s, %s, %d" % (s(sC), s(sST), C2M))
    A("s_xor_b32 %s, %s, %s" % (s(sC), s(sC), s(sWAVE)))
    A("v_lshlrev_b32 %s, 4, v0" % v(vT1))
    for j in range(4):
        A("s_xor_b32 %s, %s, %d" % (s(sT0), s(sC), j))
        A("s_lshl_b32 %s, %s, 10" % (s(sT0), s(sT0)))
        A("v_add_u32 %s, %s, %s" % (v(VA + j), s(sT0), v(vT1)))
    A("v_add_u32 %s, 4096, %s" % (v(VA + 4), v(vT1)))
    A("v_min_u32 %s, 29, v0" % v(vT0))
    A("v_mul_u32_u24 %s, 43, %s" % (v(vT1), v(vT0)))
    A("v_lshrrev_b32 %s, 8, %s" % (v(vT1), v(vT1)))
    A("v_mul_u32_u24 %s, 18, %s" % (v(vT1), v(vT1)))
    A("v_add_u32 %s, %s, %s" % (v(vT0), v(vT0), v(vT1)))
    A("s_mul_i32 %s, %s, 120" % (s(sT0), s(sDT2)))
    A("s_mul_i32 %s, %s, 6" % (s(sT1), s(sWAVE)))
    A("s_add_u32 %s, %s, %s" % (s(sT0), s(sT0), s(sT1)))
    A("s_lshl_b32 %s, %s, 6" % (s(sT0), s(sT0)))
    A("s_add_u32 %s, %s, %d" % (s(sT0), s(sT0), FL2))
    A("v_lshl_add_u32 %s, %s, 6, %s" % (v(vPA), v(vT0), s(sT0)))

    def base2():
        A("s_mul_i32 %s, %s, %d" % (s(sT0), s(sWAVE), 12 * KSTEP_B))
        A("s_mul_i32 %s, %s, 5120" % (s(sT1), s(sDT2)))
        A("s_add_u32 %s, %s, %s" % (s(sT0), s(sT0), s(sT1)))
        A("s_add_u32 %s, %s, %d" % (s(sT0), s(sT0), G_OFF))

    build_table(12, 101, base2)
    A("s_barrier")
    va2 = lambda blk: VA + 4 - blk
    w_stream(2, 12, w2_next, PE2, "L_p2", [act_load(2, n, 12, va2) for n in range(DEPTH)])
    stamp(A, 11)
    A("v_and_b32 %s, 15, v0" % v(vT0))
    A("v_mul_u32_u24 %s, 1280, %s" % (v(vT0), v(vT0)))
    A("v_lshrrev_b32 %s, 4, v0" % v(vT1))
    A("v_lshl_add_u32 %s, %s, 3, %s" % (v(vFA), v(vT1), v(vT0)))
    A("s_mul_i32 %s, %s, %d" % (s(sT0), s(sST), 64 * 1280))
    A("s_mul_i32 %s, %s, 160" % (s(sT1), s(sDT2)))
    A("s_add_u32 %s, %s, %s" % (s(sT0), s(sT0), s(sT1)))
    A("s_mul_i32 %s, %s, %d" % (s(sT2), s(sWAVE), 16 * 1280))
    A("s_add_u32 %s, %s, %s" % (s(sT2), s(sT2), s(sT0)))
    A("s_lshl_b32 %s, %s, 5" % (s(sT1), s(sC)))
    A("s_add_u32 %s, %s, %s" % (s(sT0), s(sT0), s(sT1)))
    extra = {}
    for blk in range(4):
        w = xwrites(blk, blk)
        add_extra(extra, 12 * (blk + 1) + 2, w[:2])
        add_extra(extra, 12 * (blk + 1) + 3, w[2:])
    for q in range(4):
        add_extra(extra, 40 + q, ["v_lshlrev_b32 %s, 16, %s" % (v(PS + q * 4 + r), v(VB2 + q)) for r in range(4)])
    add_extra(extra, 44, ["v_lshlrev_b32 %s, 16, %s" % (v(VB2 + 4), v(VB2 + 4))])
    add_extra(extra, 48 + 4, ["s_waitcnt lgkmcnt(0)\ns_barrier"] +
              ["ds_read_b128 %s, %s offset:%d" % (v(RB + o * 4, 4), v(vXR), 3 * 4096 + o * 1024) for o in range(4)])
    for j in range(2, 4):
        add_extra(extra, 48 + 3 + j, ["ds_read_b128 %s, %s offset:%d" % (v(RB + (j - 1) * 16 + o * 4, 4), v(vXR + j - 1), (4 - j) * 4096 + o * 1024) for o in range(4)])
    for j in range(1, 4):
        l = ["v_pk_add_f32 %s, %s, %s" % (v(PS + 2 * e, 2), v(PS + 2 * e, 2), v(RB + (j - 1) * 16 + 2 * e, 2)) for e in range(8)]
        l[0] = "s_waitcnt lgkmcnt(%d)\n" % (8 if j < 3 else 4) + l[0]
        if j == 1:
            l += ["ds_read_b128 %s, %s offset:%d" % (v(RB + 48 + sw * 4, 4), v(vX4), sw * 16384) for sw in range(4)]
        add_extra(extra, 48 + 6 + j, l)
    Y = RB + 48
    l = ["s_waitcnt lgkmcnt(0)\nv_pk_add_f32 %s, %s, %s" % (v(Y, 2), v(Y, 2), v(Y + 4, 2)),
         "v_pk_add_f32 %s, %s, %s" % (v(Y + 2, 2), v(Y + 2, 2), v(Y + 6, 2)),
         "v_pk_add_f32 %s, %s, %s" % (v(Y + 8, 2), v(Y + 8, 2), v(Y + 12, 2)),
         "v_pk_add_f32 %s, %s, %s" % (v(Y + 10, 2), v(Y + 10, 2), v(Y + 14, 2)),
         "v_pk_add_f32 %s, %s, %s op_sel_hi:[1,0]" % (v(Y, 2), v(Y, 2), v(VB2 + 4, 2)),
         "v_pk_add_f32 %s, %s, %s op_sel_hi:[1,0]" % (v(Y + 2, 2), v(Y + 2, 2), v(VB2 + 4, 2)),
         "v_pk_add_f32 %s, %s, %s" % (v(Y, 2), v(Y, 2), v(Y + 8, 2)),
         "v_pk_add_f32 %s, %s, %s" % (v(Y + 2, 2), v(Y + 2, 2), v(Y + 10, 2))]
    add_extra(extra, 48 + 10, l)
    add_extra(extra, 48 + 11, ["v_cvt_pk_bf16_f32 %s, %s, %s" % (v(Y), v(Y), v(Y + 1)),
                               "v_cvt_pk_bf16_f32 %s, %s, %s" % (v(Y + 1), v(Y + 2), v(Y + 3)),
                               "buffer_store_dwordx2 %s, %s, %s, %s offen offset:128" % (v(Y, 2), v(vFA), s(SOUT, 4), s(sT2))])
    units(2, 12, 5, va2, [], extra)
    stamp(A, 12)
    U = ACC + 64
    A("s_add_u32 %s, %s, %d" % (s(sT1), s(sT0), 16 * 1280))
    A("s_add_u32 %s, %s, %d" % (s(sT2), s(sT0), 32 * 1280))
    A("s_add_u32 %s, %s, %d" % (s(sWOFF), s(sT0), 48 * 1280))
    A("s_nop 2")
    so = [sT0, sT1, sT2, sWOFF]
    for q in range(4):
        A("v_pk_add_f32 %s, %s, %s" % (v(U + 4 * q, 2), v(U + 4 * q, 2), v(PS + 4 * q, 2)))
        A("v_pk_add_f32 %s, %s, %s" % (v(U + 4 * q + 2, 2), v(U + 4 * q + 2, 2), v(PS + 4 * q + 2, 2)))
        A("v_cvt_pk_bf16_f32 %s, %s, %s" % (v(RB + 2 * q), v(U + 4 * q), v(U + 4 * q + 1)))
        A("v_cvt_pk_bf16_f32 %s, %s, %s" % (v(RB + 2 * q + 1), v(U + 4 * q + 2), v(U + 4 * q + 3)))
        A("buffer_store_dwordx2 %s, %s, %s, %s offen" % (v(RB + 2 * q, 2), v(vFA), s(SOUT, 4), s(so[q])))
    stamp(A, 13)
    stamp_flush(A, 0, s(sWAVE), 14, "L_st", wave=E("SW", 0))
    A("L_done:")
    A("s_endpgm")
    A("L_helper:")
    A("s_waitcnt vmcnt(0)")
    w2_offsets()
    for i in range(w2_next):
        for t, _ in wdma(2, i):
            A(t)
    A("s_waitcnt vmcnt(0)")
    A("s_branch L_join")
    kernel_desc(A, NAME, 512, 256, 102)
    hdr = HEADER + "; @launch grid=(256,1,1) block=(256,1,1) lds=163840\n"
    return hdr + A.text()


if __name__ == "__main__":
    open(sys.argv[1], "w").write(gen())
```

```python
import struct

HEADER = """; Kernarg layout for this problem (64 bytes, ptrs only, base s[0:1]):
"""


def f32(x):
    return "0x%08x" % struct.unpack("<I", struct.pack("<f", x))[0]


class Asm:
    def __init__(self):
        self.lines = []

    def __call__(self, s, *a):
        for ln in s.strip("\n").split("\n"):
            ln = ln.strip()
            if not ln:
                continue
            if ln.endswith(":") or ln.startswith("."):
                self.lines.append(ln)
            else:
                self.lines.append("    " + ln)

    def c(self, s):
        self.lines.append("    ; " + s)

    def text(self):
        return "\n".join(self.lines) + "\n"


def v(i, n=1):
    return "v%d" % i if n == 1 else "v[%d:%d]" % (i, i + n - 1)


def a(i, n=1):
    return "a%d" % i if n == 1 else "a[%d:%d]" % (i, i + n - 1)


def s(i, n=1):
    return "s%d" % i if n == 1 else "s[%d:%d]" % (i, i + n - 1)


def kernel_begin(A, name):
    A(".text")
    A(".globl %s" % name)
    A(".p2align 8")
    A(".type %s,@function" % name)
    A("%s:" % name)


def kernel_desc(A, name, vgpr, accum, sgpr=96):
    A('.section .rodata,"a"')
    A(".p2align 6")
    A(".amdhsa_kernel %s" % name)
    A(".amdhsa_next_free_vgpr %d" % vgpr)
    A(".amdhsa_next_free_sgpr %d" % sgpr)
    A(".amdhsa_accum_offset %d" % accum)
    A(".amdhsa_group_segment_fixed_size 0")
    A(".amdhsa_kernarg_size 64")
    A(".amdhsa_user_sgpr_count 2")
    A(".amdhsa_user_sgpr_kernarg_segment_ptr 1")
    A(".amdhsa_system_sgpr_workgroup_id_x 1")
    A(".amdhsa_float_denorm_mode_32 3")
    A(".end_amdhsa_kernel")


def interleave(main, fill, start=0, every=1, per=1):
    out = []
    fi = 0
    for i, m in enumerate(main):
        out.append(m)
        if i >= start and (i - start) % every == 0:
            for _ in range(per):
                if fi < len(fill):
                    out.append(fill[fi])
                    fi += 1
    out.extend(fill[fi:])
    return out


STAMP_OFF = 0x8000000
STAMPS = False


def set_stamps(on):
    global STAMPS
    STAMPS = on


def stamp_init(A):
    if not STAMPS:
        return
    for k in range(1, 16):
        A("s_mov_b64 %s, 0" % s(64 + 2 * k, 2))
    A("s_memrealtime s[64:65]")
    A("s_load_dwordx2 s[56:57], s[0:1], 56")


def stamp(A, k):
    if STAMPS:
        A("s_memrealtime %s" % s(64 + 2 * k, 2))


def stamp_flush(A, kidx, wave_sgpr, last, label, wg="s2", wave=0):
    if not STAMPS:
        return
    A("s_waitcnt vmcnt(0) lgkmcnt(0)")
    A("s_memrealtime %s" % s(64 + 2 * last, 2))
    A("s_waitcnt lgkmcnt(0)")
    A("s_cmp_lg_u32 %s, %d" % (wave_sgpr, wave))
    A("s_cbranch_scc1 %s" % label)
    A("s_add_u32 s56, s56, %d" % STAMP_OFF)
    A("s_addc_u32 s57, s57, 0")
    A("s_and_b32 s57, s57, 0xffff")
    A("s_mov_b32 s58, 0x100000")
    A("s_mov_b32 s59, 0x20000")
    A("s_lshl_b32 s60, %s, 7" % wg)
    A("s_add_u32 s60, s60, %d" % (kidx * 256 * 128))
    A("s_mov_b64 exec, 1")
    A("v_mov_b32 v2, 0")
    for k in range(last + 1):
        A("v_mov_b32 v4, %s" % s(64 + 2 * k))
        A("v_mov_b32 v5, %s" % s(65 + 2 * k))
        A("buffer_store_dwordx2 v[4:5], v2, s[56:59], s60 offen offset:%d" % (8 * k))
        A("s_nop 1")
    A("%s:" % label)


def echo_init(A, vtmp, skern_dbg):
    A("s_mov_b32 s56, %s" % s(skern_dbg))
    A("s_and_b32 s57, %s, 0xffff" % s(skern_dbg + 1))
    A("s_mov_b32 s58, 256")
    A("s_mov_b32 s59, 0x20000")


def echo_end(A, k, mult, wave_sgpr):
    A("s_waitcnt vmcnt(0) lgkmcnt(0)")
    A("s_memrealtime s[92:93]")
    A("v_mov_b32 v2, 0")
    A("buffer_load_dword v3, v2, s[56:59], 0 offen sc1")
    A("s_waitcnt vmcnt(0) lgkmcnt(0)")
    A("v_readfirstlane_b32 s60, v3")
    A("s_nop 3")
    A("s_not_b32 s60, s60")
    A("s_sub_u32 s60, %s, s60" % s(64 + 2 * k))
    A("s_cmp_eq_u32 %s, 0" % s(64 + 2 * k))
    A("s_cselect_b32 s60, 0, s60")
    A("s_min_u32 s60, s60, 10000")
    A("s_mul_i32 s60, s60, %d" % mult)
    A("L_echo:")
    A("s_memrealtime s[62:63]")
    A("s_waitcnt lgkmcnt(0)")
    A("s_sub_u32 s61, s62, s92")
    A("s_cmp_lt_u32 s61, s60")
    A("s_cbranch_scc1 L_echo")
```

```python
import sys, os
from asmlib import *

E = lambda k, d: int(os.environ.get(k, d))
ECHO = E("ECHO", -1)
STAMPS_ON = bool(E("STAMPS", 0)) or ECHO >= 0
set_stamps(STAMPS_ON)

NAME = "standalone__mixer_token_mlp__prompt_kernel"
S, D, F = 2048, 640, 1536
KSTEP_B = 40960
H_OFF = 0
G_OFF = 0x280000
FL1 = 0x480000
FL2 = 0x490000
EPOCH = 0x4A0000
WS_SIZE = 0x4B0000
LNP = 1344
RING0 = 65536
NSLOT = 6
RINGB = NSLOT * 4096

DEPTH = E("DEPTH", 10)
WD = E("WD", 3)
N0 = E("N0", 2)
N1 = E("N1", 2)
ROT1 = E("ROT1", 3)
ROT1X = E("ROT1X", 0)
C1M = E("C1M", 2)
ROT2 = E("ROT2", 3)
ROT2X = E("ROT2X", 0)
ROT2S = E("ROT2S", 0)
C2M = E("C2M", 2)
M1 = E("M1", 1)
M2 = E("M2", 2)
PE1 = E("PE1", 3)
PE2 = E("PE2", 3)
SPIN = 1 << 17

SX, SW1, SW2, SWS, SOUT, SB1, SB2 = 4, 8, 12, 16, 20, 24, 28
ST = 32
sWAVE, sDT, sFT, sDT2, sST, sC, sRING, sWOFF = 48, 49, 50, 51, 52, 53, 54, 55
sT0, sT1, sT2, sWBASE, sWEND, sMAIN = 96, 97, 98, 99, 100, 3
VW1, VW2, VT, VA = 1, 5, 9, 13
vTAG = 20
vPOLL, vPA, vFA, vXW, vXR, vX4 = 18, 19, 24, 25, 26, 29
vT0, vT1 = 30, 31
VB1 = 32
VB2 = 40
AB = 48
RB = 96
PS = 160
ACC = 176


class VM:
    def __init__(self, A):
        self.A = A
        self.ops = []

    def op(self, text, tag, optional=False):
        self.ops.append((tag, optional))
        return text

    def count(self, tag):
        idx = max(i for i, (t, _) in enumerate(self.ops) if t == tag)
        n = sum(1 for (t, o) in self.ops[idx + 1:] if not o)
        assert n <= 63
        return n

    def wait(self, tag):
        return "s_waitcnt vmcnt(%d)" % self.count(tag)


def srd(A, dst, src, bytes_):
    A("s_mov_b32 %s, %s" % (s(dst), s(src)))
    A("s_and_b32 %s, %s, 0xffff" % (s(dst + 1), s(src + 1)))
    A("s_mov_b32 %s, %d" % (s(dst + 2), bytes_))
    A("s_mov_b32 %s, 0x20000" % s(dst + 3))


def reduce32(A, x, t):
    for mod in ("quad_perm:[1,0,3,2]", "quad_perm:[2,3,0,1]", "row_half_mirror", "row_mirror"):
        A("s_nop 1")
        A("v_add_f32_dpp %s, %s, %s %s row_mask:0xf bank_mask:0xf" % (v(x), v(x), v(x), mod))
    A("v_mov_b32 %s, %s" % (v(t), v(x)))
    A("s_nop 1")
    A("v_permlane16_swap_b32 %s, %s" % (v(t), v(x)))
    A("s_nop 1")
    A("v_add_f32 %s, %s, %s" % (v(x), v(x), v(t)))


def gen():
    A = Asm()
    vm = VM(A)
    A('.amdgcn_target "amdgcn-amd-amdhsa--gfx950"')
    kernel_begin(A, NAME)
    A("s_cmp_ge_u32 s2, 256")
    A("s_cbranch_scc1 L_done")
    stamp_init(A)
    A("s_load_dwordx16 s[32:47], s[0:1], 0")
    A("v_lshrrev_b32 v30, 6, v0")
    A("v_lshrrev_b32 v48, 5, v0")
    A("v_readfirstlane_b32 %s, v30" % s(sWAVE))
    A("v_and_b32 v49, 31, v0")
    A("v_and_b32 v0, 63, v0")
    A("s_lshr_b32 %s, s2, 2" % s(sT0))
    A("s_and_b32 %s, s2, 3" % s(sT1))
    A("s_lshl_b32 %s, %s, 5" % (s(sT2), s(sT0)))
    A("s_lshl_b32 %s, %s, 2" % (s(sT1), s(sT1)))
    A("s_add_u32 %s, %s, %s" % (s(sT2), s(sT2), s(sT1)))
    A("v_and_b32 v50, 3, v48")
    A("v_lshrrev_b32 v51, 2, v48")
    A("v_lshl_add_u32 v50, v51, 4, v50")
    A("v_add_u32 v50, %s, v50" % s(sT2))
    A("v_mul_u32_u24 v50, 1280, v50")
    A("v_lshl_add_u32 v51, v49, 3, v50")
    A("v_lshl_add_u32 v50, v49, 4, v50")
    A("v_mov_b32 v52, %d" % EPOCH)
    A("s_lshr_b32 %s, s2, 3" % s(sT0))
    A("s_cmp_lt_u32 %s, 30" % s(sT0))
    A("s_cselect_b32 %s, 1, 0" % s(sMAIN))
    A("s_min_u32 %s, %s, 29" % (s(sT1), s(sT0)))
    A("s_mul_i32 %s, %s, 52" % (s(sFT), s(sT1)))
    A("s_lshr_b32 %s, %s, 8" % (s(sFT), s(sFT)))
    A("s_mul_i32 %s, %s, 5" % (s(sT2), s(sFT)))
    A("s_sub_u32 %s, %s, %s" % (s(sDT), s(sT1), s(sT2)))
    if C1M == 2:
        A("s_and_b32 %s, %s, 1" % (s(sC), s(sFT)))
        A("s_lshl_b32 %s, %s, 1" % (s(sC), s(sC)))
    else:
        A("s_and_b32 %s, %s, %d" % (s(sC), s(sFT), C1M))
    A("s_mul_i32 %s, %s, %d" % (s(sWOFF), s(sDT), ROT1))
    A("s_and_b32 %s, s2, 1" % s(sT1))
    if ROT1X:
        A("s_mul_i32 %s, %s, %d" % (s(sT2), s(sT1), ROT1X))
        A("s_add_u32 %s, %s, %s" % (s(sWOFF), s(sWOFF), s(sT2)))
    A("s_and_b32 %s, %s, 15" % (s(sWOFF), s(sWOFF)))
    A("s_mul_i32 %s, %s, 5" % (s(sT2), s(sT1)))
    A("s_add_u32 %s, %s, %s" % (s(sDT), s(sDT), s(sT2)))
    A("s_bfe_u32 %s, s2, 0x20001" % s(sT1))
    A("s_mul_i32 %s, %s, 6" % (s(sT2), s(sT1)))
    A("s_add_u32 %s, %s, %s" % (s(sFT), s(sFT), s(sT2)))
    A("s_mov_b32 %s, %s" % (s(sST), s(sWOFF)))
    p1 = 3072
    A("s_mul_i32 %s, %s, %d" % (s(sWBASE), s(sWAVE), 16 * 32 * p1))
    A("s_lshl_b32 %s, %s, 7" % (s(sT2), s(sFT)))
    A("s_add_u32 %s, %s, %s" % (s(sWBASE), s(sWBASE), s(sT2)))
    A("s_add_u32 %s, %s, %d" % (s(sWEND), s(sWBASE), 16 * 32 * p1))
    A("s_mul_i32 %s, %s, %d" % (s(sWOFF), s(sWOFF), 32 * p1))
    A("s_add_u32 %s, %s, %s" % (s(sWOFF), s(sWOFF), s(sWBASE)))
    A("s_mul_i32 %s, %s, %d" % (s(sRING), s(sWAVE), RINGB))
    A("s_add_u32 %s, %s, %d" % (s(sRING), s(sRING), RING0))
    A("v_lshrrev_b32 v53, 3, v0")
    A("v_bfe_u32 v54, v0, 1, 2")
    A("v_lshrrev_b32 v55, 4, v0")
    A("v_xor_b32 v54, v54, v55")
    A("v_lshlrev_b32 v54, 5, v54")
    A("v_and_b32 v56, 1, v0")
    A("v_lshl_add_u32 v54, v56, 4, v54")
    A("v_mul_u32_u24 %s, %d, v53" % (v(VW1), p1))
    A("v_add_u32 %s, %s, v54" % (v(VW1), v(VW1)))
    for q in range(1, 4):
        A("v_add_u32 %s, %d, %s" % (v(VW1 + q), q * (8 * p1 - 1024), v(VW1)))
    A("s_waitcnt lgkmcnt(0)")
    srd(A, SWS, 46, WS_SIZE)
    if ECHO >= 0:
        echo_init(A, 0, 44)
    srd(A, SX, 32, S * D * 2)
    A(vm.op("buffer_load_dword %s, v52, %s, 0 offen sc1" % (v(vTAG), s(SWS, 4)), "epoch"))
    A(vm.op("buffer_load_dwordx4 v[60:63], v50, %s, 0 offen" % s(SX, 4), "x"))
    A(vm.op("buffer_load_dwordx4 v[64:67], v50, %s, 0 offen offset:512" % s(SX, 4), "x"))
    A(vm.op("buffer_load_dwordx2 v[68:69], v51, %s, 0 offen offset:1024" % s(SX, 4), "x"))
    srd(A, SW1, 34, S * F * 2)

    def wdma(which, i):
        pitch = 3072 if which == 1 else 4096
        vw = VW1 if which == 1 else VW2
        sr = SW1 if which == 1 else SW2
        out = []
        for q in range(4):
            pre = "s_add_u32 m0, %s, %d\ns_nop 0\n" % (s(sRING), (i % NSLOT) * 4096) if q == 0 else ""
            post = ""
            if q == 3:
                post = "\ns_add_u32 %s, %s, %d\ns_cmp_eq_u32 %s, %s\ns_cselect_b32 %s, %s, %s" % (
                    s(sWOFF), s(sWOFF), 32 * pitch, s(sWOFF), s(sWEND), s(sWOFF), s(sWBASE), s(sWOFF))
            out.append((pre + "buffer_load_dwordx4 %s, %s, %s offen offset:%d lds" % (v(vw + q), s(sr, 4), s(sWOFF), q * 1024) + post, "w%d_%d" % (which, i)))
        return out

    def emit_w(which, i):
        for t, tag in wdma(which, i):
            A(vm.op(t, tag))

    def tr_reads(i):
        out = []
        for b in range(4):
            for t in range(2):
                out.append("ds_read_b64_tr_b16 %s, %s offset:%d" % (a(16 * i + b * 4 + 2 * t, 2), v(VT + b), (i % NSLOT) * 4096 + t * 2048))
        return out

    w1_next = 0
    for _ in range(N0):
        emit_w(1, w1_next)
        w1_next += 1
    if ECHO >= 0:
        A("s_cmp_lg_u32 %s, 3" % s(sWAVE))
        A("s_cbranch_scc1 L_echo_skip")
        A("s_not_b32 s60, s64")
        A("v_mov_b32 v56, s60")
        A("v_mov_b32 v57, 0")
        A("s_mov_b64 exec, 1")
        A(vm.op("buffer_atomic_umax v56, v57, s[56:59], 0 offen", "echo", True))
        A("s_mov_b64 exec, -1")
        A("L_echo_skip:")
    srd(A, SW2, 38, S * F * 2)
    srd(A, SOUT, 42, S * D * 2)
    srd(A, SB1, 36, F * 2)
    srd(A, SB2, 40, S * 2)
    A("v_lshl_add_u32 %s, v53, 12, v54" % v(VW2))
    for q in range(1, 4):
        A("v_add_u32 %s, %d, %s" % (v(VW2 + q), q * (8 * 4096 - 1024), v(VW2)))
    A("v_and_b32 v57, 15, v0")
    A("v_lshrrev_b32 v53, 2, v57")
    A("v_lshl_add_u32 v54, v55, 2, v53")
    A("v_bfe_u32 v56, v54, 1, 2")
    A("v_lshlrev_b32 v54, 7, v54")
    A("v_and_b32 v58, 3, v57")
    A("v_lshl_add_u32 v54, v58, 3, v54")
    A("v_add_u32 v54, %s, v54" % s(sRING))
    for b in range(4):
        A("v_xor_b32 v59, %d, v56" % b)
        A("v_lshl_add_u32 %s, v59, 5, v54" % v(VT + b))
    A("v_lshrrev_b32 v54, 1, v48")
    A("v_and_b32 v56, 1, v48")
    A("v_mul_u32_u24 v56, %d, v56" % LNP)
    A("v_lshl_add_u32 v56, v54, 14, v56")
    A("v_and_b32 v54, 1, v54")
    A("v_lshl_add_u32 v56, v54, 7, v56")
    A("v_lshl_add_u32 v51, v49, 3, v56")
    A("v_lshl_add_u32 v50, v49, 4, v56")
    A("v_lshrrev_b32 v54, 1, v53")
    A("v_and_b32 v56, 1, v53")
    A("v_mul_u32_u24 v56, %d, v56" % LNP)
    A("v_mul_u32_u24 v54, %d, v54" % (16384 + 128))
    A("v_add_u32 v56, v56, v54")
    A("v_lshl_add_u32 v56, v58, 3, v56")
    A("v_lshl_add_u32 v56, v55, 5, v56")
    A("v_lshl_add_u32 v52, v30, 7, v56")
    A("v_lshlrev_b32 v53, 4, v57")
    A("v_lshl_add_u32 v53, v55, 10, v53")
    A("v_lshl_add_u32 v53, v30, 12, v53")
    A("v_lshlrev_b32 %s, 4, v0" % v(vT1))
    A("v_lshl_add_u32 %s, v30, 14, %s" % (v(vXW), v(vT1)))
    for j in range(1, 4):
        A("v_xor_b32 %s, %d, %s" % (v(vXR + j - 1), j << 14, v(vXW)))
    A("v_lshl_add_u32 %s, v30, 10, %s" % (v(vX4), v(vT1)))
    A("s_xor_b32 %s, %s, %s" % (s(sC), s(sC), s(sWAVE)))
    for j in range(4):
        A("s_xor_b32 %s, %s, %d" % (s(sT0), s(sC), j))
        A("s_lshl_b32 %s, %s, 10" % (s(sT0), s(sT0)))
        A("v_add_u32 %s, %s, %s" % (v(VA + j), s(sT0), v(vT1)))
    A("s_lshl_b32 %s, %s, 8" % (s(sT0), s(sWAVE)))
    A("s_add_u32 %s, %s, s2" % (s(sT0), s(sT0)))
    A("s_lshl_b32 %s, %s, 6" % (s(sT0), s(sT0)))
    A("s_add_u32 %s, %s, %d" % (s(sT0), s(sT0), FL1))
    A("v_add_u32 %s, %s, %s" % (v(vFA), s(sT0), v(vT1)))
    A("s_and_b32 %s, %s, 3" % (s(sT0), s(sDT)))
    A("s_lshl_b32 %s, %s, 2" % (s(sT0), s(sT0)))
    A("s_add_u32 %s, %s, %s" % (s(sT0), s(sT0), s(sWAVE)))
    A("s_lshl_b32 %s, %s, 12" % (s(sT0), s(sT0)))
    A("s_add_u32 %s, %s, %d" % (s(sT0), s(sT0), FL1))
    A("v_lshl_add_u32 %s, v0, 6, %s" % (v(vPA), s(sT0)))

    def build_table(ns, rot, base_code):
        base_code()
        A("s_add_u32 %s, %s, %d" % (s(sT1), s(sT0), ns * KSTEP_B))
        A("s_mul_i32 %s, %s, %d" % (s(ST), s(rot), KSTEP_B))
        A("s_add_u32 %s, %s, %s" % (s(ST), s(ST), s(sT0)))
        for i in range(1, ns):
            A("s_add_u32 %s, %s, %d" % (s(ST + i), s(ST + i - 1), KSTEP_B))
            A("s_cmp_eq_u32 %s, %s" % (s(ST + i), s(sT1)))
            A("s_cselect_b32 %s, %s, %s" % (s(ST + i), s(sT0), s(ST + i)))

    def base1():
        A("s_mul_i32 %s, %s, %d" % (s(sT0), s(sWAVE), 16 * KSTEP_B))
        A("s_lshl_b32 %s, %s, 12" % (s(sT1), s(sDT)))
        A("s_add_u32 %s, %s, %s" % (s(sT0), s(sT0), s(sT1)))

    build_table(16, sST, base1)
    A("s_lshr_b32 %s, s2, 2" % s(sT0))
    A("s_mul_i32 %s, %s, %d" % (s(sT0), s(sT0), KSTEP_B))
    A("s_and_b32 %s, s2, 3" % s(sT1))
    A("s_lshl_b32 %s, %s, 8" % (s(sT1), s(sT1)))
    A("s_add_u32 %s, %s, %s" % (s(sT0), s(sT0), s(sT1)))
    A("s_add_u32 %s, %s, 16384" % (s(sT1), s(sT0)))
    A("s_add_u32 %s, %s, 32768" % (s(sT2), s(sT0)))
    stamp(A, 1)
    A(vm.wait("x"))
    stamp(A, 2)
    X = 70
    for q in range(10):
        A("v_lshlrev_b32 %s, 16, %s" % (v(X + 2 * q), v(60 + q)))
        A("v_and_b32 %s, 0xffff0000, %s" % (v(X + 1 + 2 * q), v(60 + q)))
    A("v_pk_add_f32 v[60:61], %s, %s" % (v(X, 2), v(X + 2, 2)))
    A("v_pk_add_f32 v[62:63], %s, %s" % (v(X + 4, 2), v(X + 6, 2)))
    for q in range(8, 20, 4):
        A("v_pk_add_f32 v[60:61], v[60:61], %s" % v(X + q, 2))
        A("v_pk_add_f32 v[62:63], v[62:63], %s" % v(X + q + 2, 2))
    A("v_pk_add_f32 v[60:61], v[60:61], v[62:63]")
    A("v_mov_b32 v64, 0x41c64e6d")
    A("v_add_f32 v60, v60, v61")
    A("v_mul_lo_u32 %s, %s, v64" % (v(vTAG), v(vTAG)))
    reduce32(A, 60, 61)
    A("v_mul_f32 v60, %s, v60" % f32(-1.0 / 640))
    A("v_add_u32 %s, 0x3039, %s" % (v(vTAG), v(vTAG)))
    for q in range(0, 20, 2):
        A("v_pk_add_f32 %s, %s, v[60:61] op_sel_hi:[1,0]" % (v(X + q, 2), v(X + q, 2)))
    A("v_pk_mul_f32 v[62:63], %s, %s" % (v(X, 2), v(X, 2)))
    A("v_pk_mul_f32 v[64:65], %s, %s" % (v(X + 2, 2), v(X + 2, 2)))
    for q in range(4, 20, 4):
        A("v_pk_fma_f32 v[62:63], %s, %s, v[62:63]" % (v(X + q, 2), v(X + q, 2)))
        A("v_pk_fma_f32 v[64:65], %s, %s, v[64:65]" % (v(X + q + 2, 2), v(X + q + 2, 2)))
    A("v_pk_add_f32 v[62:63], v[62:63], v[64:65]")
    A("v_mov_b32 %s, %s" % (v(vTAG + 1), v(vTAG)))
    A("v_add_f32 v62, v62, v63")
    A("v_mov_b32 %s, %s" % (v(vTAG + 2), v(vTAG)))
    reduce32(A, 62, 63)
    A("v_mul_f32 v62, %s, v62" % f32(1.0 / 640))
    A("v_mov_b32 %s, %s" % (v(vTAG + 3), v(vTAG)))
    A("v_cvt_pk_bf16_f32 v64, v60, v62")
    A("v_lshlrev_b32 v66, 16, v64")
    A("v_and_b32 v64, 0xffff0000, v64")
    A("v_add_f32 v64, %s, v64" % f32(1e-5))
    A("v_cvt_pk_bf16_f32 v64, v64, v64")
    A("v_lshlrev_b32 v64, 16, v64")
    A("v_sqrt_f32 v64, v64")
    A("v_sub_f32 v66, v66, v60")
    A("v_cvt_pk_bf16_f32 v64, v64, v64")
    A("v_lshlrev_b32 v64, 16, v64")
    A("v_rcp_f32 v64, v64")
    A("s_nop 0")
    A("v_mul_f32 v66, v66, v64")
    for q in range(0, 20, 2):
        A("v_pk_fma_f32 %s, %s, v[64:65], v[66:67] op_sel_hi:[1,0,0]" % (v(X + q, 2), v(X + q, 2)))
    for q in range(10):
        A("v_cvt_pk_bf16_f32 %s, %s, %s" % (v(60 + q), v(X + 2 * q), v(X + 1 + 2 * q)))
    A("ds_write_b128 v50, v[60:63]")
    A("ds_write_b128 v50, v[64:67] offset:512")
    A("ds_write_b64 v51, v[68:69] offset:1024")
    A("s_waitcnt lgkmcnt(0)")
    A("s_barrier")
    A("ds_read_b64_tr_b16 v[60:61], v52")
    A("ds_read_b64_tr_b16 v[62:63], v52 offset:32768")
    A("ds_read_b64_tr_b16 v[64:65], v52 offset:512")
    A("ds_read_b64_tr_b16 v[66:67], v52 offset:%d" % (32768 + 512))
    A("s_cmp_ge_u32 %s, 2" % s(sWAVE))
    A("s_cbranch_scc1 L_ln_two")
    A("ds_read_b64_tr_b16 v[68:69], v52 offset:1024")
    A("ds_read_b64_tr_b16 v[70:71], v52 offset:%d" % (32768 + 1024))
    A("s_waitcnt lgkmcnt(0)")
    A(vm.op("buffer_store_dwordx4 v[68:71], v53, %s, %s offen sc1" % (s(SWS, 4), s(sT2)), "hst", True))
    A("L_ln_two:")
    A("s_waitcnt lgkmcnt(0)")
    A(vm.op("buffer_store_dwordx4 v[60:63], v53, %s, %s offen sc1" % (s(SWS, 4), s(sT0)), "hst"))
    A(vm.op("buffer_store_dwordx4 v[64:67], v53, %s, %s offen sc1" % (s(SWS, 4), s(sT1)), "hst"))
    stamp(A, 3)
    for _ in range(N1):
        emit_w(1, w1_next)
        w1_next += 1
    A("s_lshr_b32 %s, s2, 3" % s(sT0))
    A("s_and_b32 %s, %s, 3" % (s(sDT2), s(sT0)))
    A("s_lshr_b32 %s, %s, 2" % (s(sST), s(sT0)))
    A(vm.wait("hst"))
    A("s_mov_b64 exec, 15")
    A(vm.op("buffer_store_dwordx4 %s, %s, %s, 0 offen sc1" % (v(vTAG, 4), v(vFA), s(SWS, 4)), "fl1"))
    A("s_mov_b64 exec, -1")
    stamp(A, 4)

    def gemm2_setup_w():
        A("s_mul_i32 s101, %s, %d" % (s(sDT2), ROT2))
        if ROT2X:
            A("s_and_b32 %s, s2, 1" % s(sT1))
            A("s_mul_i32 %s, %s, %d" % (s(sT1), s(sT1), ROT2X))
            A("s_add_u32 s101, s101, %s" % s(sT1))
        if ROT2S:
            A("s_bfe_u32 %s, %s, 0x10001" % (s(sT1), s(sST)))
            A("s_mul_i32 %s, %s, %d" % (s(sT1), s(sT1), ROT2S))
            A("s_add_u32 s101, s101, %s" % s(sT1))
        A("s_cmp_ge_u32 s101, 12")
        A("s_cselect_b32 %s, 12, 0" % s(sT1))
        A("s_sub_u32 s101, s101, %s" % s(sT1))
        A("s_and_b32 %s, s2, 1" % s(sT1))
        A("s_lshl_b32 %s, %s, 2" % (s(sT1), s(sT1)))
        A("s_add_u32 %s, %s, %s" % (s(sDT2), s(sDT2), s(sT1)))
        A("s_bfe_u32 %s, s2, 0x20001" % s(sT1))
        A("s_lshl_b32 %s, %s, 3" % (s(sT1), s(sT1)))
        A("s_add_u32 %s, %s, %s" % (s(sST), s(sST), s(sT1)))

    gemm2_setup_w()
    A("v_lshlrev_b32 %s, 3, v55" % v(vT0))
    A("s_lshl_b32 %s, %s, 7" % (s(sT0), s(sFT)))
    for o in range(4):
        A(vm.op("buffer_load_dwordx2 %s, %s, %s, %s offen offset:%d" % (v(VB1 + 2 * o, 2), v(vT0), s(SB1, 4), s(sT0), 32 * o), "b1"))
    A("v_lshlrev_b32 %s, 1, v57" % v(vT0))
    A("s_lshl_b32 %s, %s, 7" % (s(sT0), s(sST)))
    for q in range(4):
        A(vm.op("buffer_load_ushort %s, %s, %s, %s offen offset:%d" % (v(VB2 + q), v(vT0), s(SB2, 4), s(sT0), 32 * q), "b2"))
    A("s_lshl_b32 %s, %s, 5" % (s(sT1), s(sWAVE)))
    A("s_add_u32 %s, %s, %s" % (s(sT0), s(sT0), s(sT1)))
    A(vm.op("buffer_load_ushort %s, %s, %s, %s offen" % (v(VB2 + 4), v(vT0), s(SB2, 4), s(sT0)), "b2"))

    def w2_offsets():
        A("s_mul_i32 %s, %s, %d" % (s(sWBASE), s(sWAVE), 12 * 32 * 4096))
        A("s_lshl_b32 %s, %s, 7" % (s(sT1), s(sST)))
        A("s_add_u32 %s, %s, %s" % (s(sWBASE), s(sWBASE), s(sT1)))
        A("s_add_u32 %s, %s, %d" % (s(sWEND), s(sWBASE), 12 * 32 * 4096))
        A("s_lshl_b32 %s, s101, 17" % s(sWOFF))
        A("s_add_u32 %s, %s, %s" % (s(sWOFF), s(sWOFF), s(sWBASE)))

    A("s_cmp_eq_u32 %s, 0" % s(sMAIN))
    A("s_cbranch_scc1 L_helper")

    def poll_issue(tag):
        A(vm.op("buffer_load_dword %s, %s, %s, 0 offen sc1" % (v(vPOLL), v(vPA), s(SWS, 4)), tag))

    def poll_check(tag, lab):
        A(vm.wait(tag))
        A("v_cmp_ne_u32 vcc, %s, %s" % (v(vPOLL), v(vTAG)))
        A("s_cbranch_vccz %s_ok" % lab)
        A("s_mov_b32 %s, 0" % s(sT0))
        A("%s_spin:" % lab)
        A("buffer_load_dword %s, %s, %s, 0 offen sc1" % (v(vPOLL), v(vPA), s(SWS, 4)))
        A("s_add_u32 %s, %s, 1" % (s(sT0), s(sT0)))
        A("s_cmp_ge_u32 %s, %d" % (s(sT0), SPIN))
        A("s_waitcnt vmcnt(0)")
        A("s_cbranch_scc1 %s_ok" % lab)
        A("v_cmp_ne_u32 vcc, %s, %s" % (v(vPOLL), v(vTAG)))
        A("s_cbranch_vccnz %s_spin" % lab)
        A("%s_ok:" % lab)

    def w_stream(which, ns, nxt, pe, lab, first_acts):
        acts = list(first_acts)
        polled = checked = False
        for i in range(ns):
            while nxt < ns and nxt < i + WD:
                if not polled and nxt >= ns - pe:
                    poll_issue("poll%d" % which)
                    polled = True
                assert nxt - NSLOT <= i - 3 or nxt < NSLOT
                emit_w(which, nxt)
                nxt += 1
            if nxt == ns and not polled:
                poll_issue("poll%d" % which)
                polled = True
            A(vm.wait("w%d_%d" % (which, i)))
            A("s_waitcnt lgkmcnt(7)")
            for x in tr_reads(i):
                A(x)
            if nxt == ns and i + WD > ns - 1:
                if not checked:
                    poll_check("poll%d" % which, lab)
                    stamp(A, 5 if which == 1 else 10)
                    checked = True
                k = len(acts) if i == ns - 1 else min(4, len(acts))
                for t, tag in acts[:k]:
                    A(vm.op(t, tag))
                acts = acts[k:]
        A("s_waitcnt lgkmcnt(0)")

    NBUF = DEPTH + 1
    assert NBUF <= 12

    def act_load(which, n, ns, va_of_block):
        blk, i = divmod(n, ns)
        return ("buffer_load_dwordx4 %s, %s, %s, %s offen sc1" % (v(AB + (n % NBUF) * 4, 4), v(va_of_block(blk)), s(SWS, 4), s(ST + i)), "a%d_%d" % (which, n))

    def units(which, ns, nblk, va_of_block, tail_vm, extra):
        nun = ns * nblk
        tail_vm = list(tail_vm)
        for n in range(nun):
            blk, i = divmod(n, ns)
            A(vm.wait("a%d_%d" % (which, n)))
            fill = []
            if n + DEPTH < nun:
                t, tag = act_load(which, n + DEPTH, ns, va_of_block)
                fill.append(vm.op(t, tag))
            elif tail_vm:
                t, tag = tail_vm.pop(0)
                fill.append(vm.op(t, tag))
            fill += extra.get(n, [])
            m = []
            ar = v(AB + (n % NBUF) * 4, 4)
            for o in range(4):
                d = v(ACC + blk * 16 + o * 4, 4)
                wr = a(16 * i + 4 * o, 4)
                c = "0" if i == 0 else d
                if which == 1:
                    m.append("v_mfma_f32_16x16x32_bf16 %s, %s, %s, %s" % (d, wr, ar, c))
                else:
                    m.append("v_mfma_f32_16x16x32_bf16 %s, %s, %s, %s" % (d, ar, wr, c))
            per = (len(fill) + 3) // 4
            for x in interleave(m, fill, 0, 1, max(per, 1)):
                A(x)
        return tail_vm

    def xwrites(blk, slot):
        return ["ds_write_b128 %s, %s offset:%d" % (v(vXW), v(ACC + blk * 16 + o * 4, 4), slot * 4096 + o * 1024) for o in range(4)]

    def add_extra(extra, n, lst):
        extra.setdefault(n, []).extend(lst)

    va1 = lambda blk: VA + 3 - blk
    w_stream(1, 16, w1_next, PE1, "L_p1", [act_load(1, n, 16, va1) for n in range(DEPTH)])
    stamp(A, 6)
    w2_offsets()
    extra = {}
    for blk in range(3):
        w = xwrites(blk, blk + 1)
        add_extra(extra, 16 * (blk + 1) + 2, w[:2])
        add_extra(extra, 16 * (blk + 1) + 3, w[2:])
    for o in range(4):
        l = []
        for r in range(4):
            src = v(VB1 + 2 * o + (r >> 1))
            l.append(("v_and_b32 %s, 0xffff0000, %s" if r & 1 else "v_lshlrev_b32 %s, 16, %s") % (v(PS + o * 4 + r), src))
        add_extra(extra, 40 + o, l)
    add_extra(extra, 48 + 5, ["s_waitcnt lgkmcnt(0)\ns_barrier"])
    for j in range(1, 4):
        add_extra(extra, 48 + 5 + j, ["ds_read_b128 %s, %s offset:%d" % (v(RB + (j - 1) * 16 + o * 4, 4), v(vXR + j - 1), (4 - j) * 4096 + o * 1024) for o in range(4)])
    for j in range(1, 4):
        l = ["v_pk_add_f32 %s, %s, %s" % (v(PS + 2 * e, 2), v(PS + 2 * e, 2), v(RB + (j - 1) * 16 + 2 * e, 2)) for e in range(8)]
        l[0] = "s_waitcnt lgkmcnt(%d)\n" % (4 * (3 - j)) + l[0]
        add_extra(extra, 48 + 8 + 2 * j, l[:4])
        add_extra(extra, 48 + 9 + 2 * j, l[4:])
    w2_ops = []
    for i in range(NSLOT):
        w2_ops += wdma(2, i)
    rest = units(1, 16, 4, va1, w2_ops, extra)
    stamp(A, 7)
    U = ACC + 48
    T = RB
    k1 = 2 * 0.7978845608028654 * 1.4426950408889634
    k3 = k1 * 0.044715
    A("v_mov_b32 %s, %s" % (v(vT0), f32(-k3)))
    A("v_mov_b32 %s, %s" % (v(vT1), f32(-k1)))
    A("s_lshl_b32 %s, %s, 2" % (s(sT2), s(sDT)))
    A("s_add_u32 %s, %s, %s" % (s(sT2), s(sT2), s(sC)))
    A("s_mul_i32 %s, %s, %d" % (s(sT0), s(sFT), 2 * KSTEP_B))
    A("s_lshl_b32 %s, %s, 10" % (s(sT1), s(sT2)))
    A("s_add_u32 %s, %s, %s" % (s(sT0), s(sT0), s(sT1)))
    A("s_add_u32 %s, %s, %d" % (s(sT0), s(sT0), G_OFF))
    A("s_add_u32 %s, %s, %d" % (s(sT1), s(sT0), KSTEP_B))
    A("s_mul_i32 %s, %s, 24" % (s(sT2), s(sT2)))
    A("s_add_u32 %s, %s, %s" % (s(sT2), s(sT2), s(sFT)))
    A("s_lshl_b32 %s, %s, 6" % (s(sT2), s(sT2)))
    A("s_add_u32 %s, %s, %d" % (s(sT2), s(sT2), FL2))
    A("v_lshlrev_b32 %s, 4, v0" % v(vFA))
    gel = []
    for e in range(0, 16, 2):
        gel.append("v_pk_add_f32 %s, %s, %s" % (v(U + e, 2), v(U + e, 2), v(PS + e, 2)))
    for e in range(0, 16, 2):
        gel.append("v_pk_mul_f32 %s, %s, %s" % (v(T + e, 2), v(U + e, 2), v(U + e, 2)))
    for e in range(0, 16, 2):
        gel.append("v_pk_fma_f32 %s, %s, %s, %s op_sel:[0,0,1] op_sel_hi:[1,0,1]" % (v(T + e, 2), v(T + e, 2), v(vT0, 2), v(vT0, 2)))
    for e in range(0, 16, 2):
        gel.append("v_pk_mul_f32 %s, %s, %s" % (v(T + e, 2), v(T + e, 2), v(U + e, 2)))
    for e in range(16):
        gel.append("v_exp_f32 %s, %s" % (v(T + e), v(T + e)))
    for e in range(0, 16, 2):
        gel.append("v_pk_add_f32 %s, %s, 1.0 op_sel_hi:[1,0]" % (v(T + e, 2), v(T + e, 2)))
    for e in range(16):
        gel.append("v_rcp_f32 %s, %s" % (v(T + e), v(T + e)))
    for e in range(0, 16, 2):
        gel.append("v_pk_mul_f32 %s, %s, %s" % (v(U + e, 2), v(U + e, 2), v(T + e, 2)))
    for e in range(8):
        gel.append("v_cvt_pk_bf16_f32 %s, %s, %s" % (v(T + e), v(U + 2 * e), v(U + 2 * e + 1)))
    done = len(w2_ops) - len(rest)
    k = min(len(rest), (-done) % 4 + 4 * M1)
    ins = rest[:k]
    rest = rest[k:]
    step = max(1, 70 // max(1, len(ins)))
    gi = 0
    for n, x in enumerate(gel):
        A(x)
        if n % step == step - 1 and gi < len(ins):
            A(vm.op(*ins[gi]))
            gi += 1
    for x in ins[gi:]:
        A(vm.op(*x))
    A(vm.op("buffer_store_dwordx4 %s, %s, %s, %s offen sc1" % (v(T, 4), v(vFA), s(SWS, 4), s(sT0)), "gst"))
    A(vm.op("buffer_store_dwordx4 %s, %s, %s, %s offen sc1" % (v(T + 4, 4), v(vFA), s(SWS, 4), s(sT1)), "gst"))
    stamp(A, 8)
    k = min(len(rest), 4 * M2)
    for x in rest[:k]:
        A(vm.op(*x))
    rest = rest[k:]
    w2_next = (len(w2_ops) - len(rest)) // 4
    A(vm.wait("gst"))
    A("s_mov_b64 exec, 15")
    A(vm.op("buffer_store_dwordx4 %s, %s, %s, %s offen sc1" % (v(vTAG, 4), v(vFA), s(SWS, 4), s(sT2)), "fl2", True))
    A("s_or_b32 %s, s2, %s" % (s(sT0), s(sWAVE)))
    A("s_cbranch_scc1 L_noepoch")
    A("s_mov_b32 %s, %d" % (s(sT0), EPOCH))
    A(vm.op("buffer_store_dwordx4 %s, %s, %s, %s offen sc1" % (v(vTAG, 4), v(vFA), s(SWS, 4), s(sT0)), "ep", True))
    A("L_noepoch:")
    A("s_mov_b64 exec, -1")
    stamp(A, 9)
    A("L_join:")
    if C2M == 2:
        A("s_and_b32 %s, %s, 1" % (s(sC), s(sST)))
        A("s_lshl_b32 %s, %s, 1" % (s(sC), s(sC)))
    else:
        A("s_and_b32 %s, %s, %d" % (s(sC), s(sST), C2M))
    A("s_xor_b32 %s, %s, %s" % (s(sC), s(sC), s(sWAVE)))
    A("v_lshlrev_b32 %s, 4, v0" % v(vT1))
    for j in range(4):
        A("s_xor_b32 %s, %s, %d" % (s(sT0), s(sC), j))
        A("s_lshl_b32 %s, %s, 10" % (s(sT0), s(sT0)))
        A("v_add_u32 %s, %s, %s" % (v(VA + j), s(sT0), v(vT1)))
    A("v_add_u32 %s, 4096, %s" % (v(VA + 4), v(vT1)))
    A("v_min_u32 %s, 29, v0" % v(vT0))
    A("v_mul_u32_u24 %s, 43, %s" % (v(vT1), v(vT0)))
    A("v_lshrrev_b32 %s, 8, %s" % (v(vT1), v(vT1)))
    A("v_mul_u32_u24 %s, 18, %s" % (v(vT1), v(vT1)))
    A("v_add_u32 %s, %s, %s" % (v(vT0), v(vT0), v(vT1)))
    A("s_mul_i32 %s, %s, 120" % (s(sT0), s(sDT2)))
    A("s_mul_i32 %s, %s, 6" % (s(sT1), s(sWAVE)))
    A("s_add_u32 %s, %s, %s" % (s(sT0), s(sT0), s(sT1)))
    A("s_lshl_b32 %s, %s, 6" % (s(sT0), s(sT0)))
    A("s_add_u32 %s, %s, %d" % (s(sT0), s(sT0), FL2))
    A("v_lshl_add_u32 %s, %s, 6, %s" % (v(vPA), v(vT0), s(sT0)))

    def base2():
        A("s_mul_i32 %s, %s, %d" % (s(sT0), s(sWAVE), 12 * KSTEP_B))
        A("s_mul_i32 %s, %s, 5120" % (s(sT1), s(sDT2)))
        A("s_add_u32 %s, %s, %s" % (s(sT0), s(sT0), s(sT1)))
        A("s_add_u32 %s, %s, %d" % (s(sT0), s(sT0), G_OFF))

    build_table(12, 101, base2)
    A("s_barrier")
    va2 = lambda blk: VA + 4 - blk
    w_stream(2, 12, w2_next, PE2, "L_p2", [act_load(2, n, 12, va2) for n in range(DEPTH)])
    stamp(A, 11)
    A("v_and_b32 %s, 15, v0" % v(vT0))
    A("v_mul_u32_u24 %s, 1280, %s" % (v(vT0), v(vT0)))
    A("v_lshrrev_b32 %s, 4, v0" % v(vT1))
    A("v_lshl_add_u32 %s, %s, 3, %s" % (v(vFA), v(vT1), v(vT0)))
    A("s_mul_i32 %s, %s, %d" % (s(sT0), s(sST), 64 * 1280))
    A("s_mul_i32 %s, %s, 160" % (s(sT1), s(sDT2)))
    A("s_add_u32 %s, %s, %s" % (s(sT0), s(sT0), s(sT1)))
    A("s_mul_i32 %s, %s, %d" % (s(sT2), s(sWAVE), 16 * 1280))
    A("s_add_u32 %s, %s, %s" % (s(sT2), s(sT2), s(sT0)))
    A("s_lshl_b32 %s, %s, 5" % (s(sT1), s(sC)))
    A("s_add_u32 %s, %s, %s" % (s(sT0), s(sT0), s(sT1)))
    extra = {}
    for blk in range(4):
        w = xwrites(blk, blk)
        add_extra(extra, 12 * (blk + 1) + 2, w[:2])
        add_extra(extra, 12 * (blk + 1) + 3, w[2:])
    for q in range(4):
        add_extra(extra, 40 + q, ["v_lshlrev_b32 %s, 16, %s" % (v(PS + q * 4 + r), v(VB2 + q)) for r in range(4)])
    add_extra(extra, 44, ["v_lshlrev_b32 %s, 16, %s" % (v(VB2 + 4), v(VB2 + 4))])
    add_extra(extra, 48 + 4, ["s_waitcnt lgkmcnt(0)\ns_barrier"] +
              ["ds_read_b128 %s, %s offset:%d" % (v(RB + o * 4, 4), v(vXR), 3 * 4096 + o * 1024) for o in range(4)])
    for j in range(2, 4):
        add_extra(extra, 48 + 3 + j, ["ds_read_b128 %s, %s offset:%d" % (v(RB + (j - 1) * 16 + o * 4, 4), v(vXR + j - 1), (4 - j) * 4096 + o * 1024) for o in range(4)])
    for j in range(1, 4):
        l = ["v_pk_add_f32 %s, %s, %s" % (v(PS + 2 * e, 2), v(PS + 2 * e, 2), v(RB + (j - 1) * 16 + 2 * e, 2)) for e in range(8)]
        l[0] = "s_waitcnt lgkmcnt(%d)\n" % (8 if j < 3 else 4) + l[0]
        if j == 1:
            l += ["ds_read_b128 %s, %s offset:%d" % (v(RB + 48 + sw * 4, 4), v(vX4), sw * 16384) for sw in range(4)]
        add_extra(extra, 48 + 6 + j, l)
    Y = RB + 48
    l = ["s_waitcnt lgkmcnt(0)\nv_pk_add_f32 %s, %s, %s" % (v(Y, 2), v(Y, 2), v(Y + 4, 2)),
         "v_pk_add_f32 %s, %s, %s" % (v(Y + 2, 2), v(Y + 2, 2), v(Y + 6, 2)),
         "v_pk_add_f32 %s, %s, %s" % (v(Y + 8, 2), v(Y + 8, 2), v(Y + 12, 2)),
         "v_pk_add_f32 %s, %s, %s" % (v(Y + 10, 2), v(Y + 10, 2), v(Y + 14, 2)),
         "v_pk_add_f32 %s, %s, %s op_sel_hi:[1,0]" % (v(Y, 2), v(Y, 2), v(VB2 + 4, 2)),
         "v_pk_add_f32 %s, %s, %s op_sel_hi:[1,0]" % (v(Y + 2, 2), v(Y + 2, 2), v(VB2 + 4, 2)),
         "v_pk_add_f32 %s, %s, %s" % (v(Y, 2), v(Y, 2), v(Y + 8, 2)),
         "v_pk_add_f32 %s, %s, %s" % (v(Y + 2, 2), v(Y + 2, 2), v(Y + 10, 2))]
    add_extra(extra, 48 + 10, l)
    add_extra(extra, 48 + 11, ["v_cvt_pk_bf16_f32 %s, %s, %s" % (v(Y), v(Y), v(Y + 1)),
                               "v_cvt_pk_bf16_f32 %s, %s, %s" % (v(Y + 1), v(Y + 2), v(Y + 3)),
                               "buffer_store_dwordx2 %s, %s, %s, %s offen offset:128" % (v(Y, 2), v(vFA), s(SOUT, 4), s(sT2))])
    units(2, 12, 5, va2, [], extra)
    stamp(A, 12)
    U = ACC + 64
    A("s_add_u32 %s, %s, %d" % (s(sT1), s(sT0), 16 * 1280))
    A("s_add_u32 %s, %s, %d" % (s(sT2), s(sT0), 32 * 1280))
    A("s_add_u32 %s, %s, %d" % (s(sWOFF), s(sT0), 48 * 1280))
    A("s_nop 2")
    so = [sT0, sT1, sT2, sWOFF]
    for q in range(4):
        A("v_pk_add_f32 %s, %s, %s" % (v(U + 4 * q, 2), v(U + 4 * q, 2), v(PS + 4 * q, 2)))
        A("v_pk_add_f32 %s, %s, %s" % (v(U + 4 * q + 2, 2), v(U + 4 * q + 2, 2), v(PS + 4 * q + 2, 2)))
        A("v_cvt_pk_bf16_f32 %s, %s, %s" % (v(RB + 2 * q), v(U + 4 * q), v(U + 4 * q + 1)))
        A("v_cvt_pk_bf16_f32 %s, %s, %s" % (v(RB + 2 * q + 1), v(U + 4 * q + 2), v(U + 4 * q + 3)))
        A("buffer_store_dwordx2 %s, %s, %s, %s offen" % (v(RB + 2 * q, 2), v(vFA), s(SOUT, 4), s(so[q])))
    stamp(A, 13)
    if ECHO >= 0:
        echo_end(A, ECHO, E("EM", 3), s(sWAVE))
    else:
        stamp_flush(A, 0, s(sWAVE), 14, "L_st", wave=E("SW", 0))
    A("L_done:")
    A("s_endpgm")
    A("L_helper:")
    A("s_waitcnt vmcnt(0)")
    w2_offsets()
    for i in range(w2_next):
        for t, _ in wdma(2, i):
            A(t)
    A("s_waitcnt vmcnt(0)")
    A("s_branch L_join")
    kernel_desc(A, NAME, 512, 256, 102)
    hdr = HEADER + "; @launch grid=(256,1,1) block=(256,1,1) lds=163840\n"
    return hdr + A.text()


if __name__ == "__main__":
    open(sys.argv[1], "w").write(gen())
```

```python
import struct

HEADER = """; Kernarg layout for this problem (64 bytes, ptrs only, base s[0:1]):
"""


def f32(x):
    return "0x%08x" % struct.unpack("<I", struct.pack("<f", x))[0]


class Asm:
    def __init__(self):
        self.lines = []

    def __call__(self, s, *a):
        for ln in s.strip("\n").split("\n"):
            ln = ln.strip()
            if not ln:
                continue
            if ln.endswith(":") or ln.startswith("."):
                self.lines.append(ln)
            else:
                self.lines.append("    " + ln)

    def c(self, s):
        self.lines.append("    ; " + s)

    def text(self):
        return "\n".join(self.lines) + "\n"


def v(i, n=1):
    return "v%d" % i if n == 1 else "v[%d:%d]" % (i, i + n - 1)


def a(i, n=1):
    return "a%d" % i if n == 1 else "a[%d:%d]" % (i, i + n - 1)


def s(i, n=1):
    return "s%d" % i if n == 1 else "s[%d:%d]" % (i, i + n - 1)


def kernel_begin(A, name):
    A(".text")
    A(".globl %s" % name)
    A(".p2align 8")
    A(".type %s,@function" % name)
    A("%s:" % name)


def kernel_desc(A, name, vgpr, accum, sgpr=96):
    A('.section .rodata,"a"')
    A(".p2align 6")
    A(".amdhsa_kernel %s" % name)
    A(".amdhsa_next_free_vgpr %d" % vgpr)
    A(".amdhsa_next_free_sgpr %d" % sgpr)
    A(".amdhsa_accum_offset %d" % accum)
    A(".amdhsa_group_segment_fixed_size 0")
    A(".amdhsa_kernarg_size 64")
    A(".amdhsa_user_sgpr_count 2")
    A(".amdhsa_user_sgpr_kernarg_segment_ptr 1")
    A(".amdhsa_system_sgpr_workgroup_id_x 1")
    A(".amdhsa_float_denorm_mode_32 3")
    A(".end_amdhsa_kernel")


def interleave(main, fill, start=0, every=1, per=1):
    out = []
    fi = 0
    for i, m in enumerate(main):
        out.append(m)
        if i >= start and (i - start) % every == 0:
            for _ in range(per):
                if fi < len(fill):
                    out.append(fill[fi])
                    fi += 1
    out.extend(fill[fi:])
    return out


STAMP_OFF = 0x8000000
STAMPS = False


def set_stamps(on):
    global STAMPS
    STAMPS = on


def stamp_init(A):
    if not STAMPS:
        return
    for k in range(1, 16):
        A("s_mov_b64 %s, 0" % s(64 + 2 * k, 2))
    A("s_memrealtime s[64:65]")
    A("s_load_dwordx2 s[56:57], s[0:1], 56")


def stamp(A, k):
    if STAMPS:
        A("s_memrealtime %s" % s(64 + 2 * k, 2))


def stamp_flush(A, kidx, wave_sgpr, last, label, wg="s2", wave=0):
    if not STAMPS:
        return
    A("s_waitcnt vmcnt(0) lgkmcnt(0)")
    A("s_memrealtime %s" % s(64 + 2 * last, 2))
    A("s_waitcnt lgkmcnt(0)")
    if wave >= 0:
        A("s_cmp_lg_u32 %s, %d" % (wave_sgpr, wave))
        A("s_cbranch_scc1 %s" % label)
    A("s_add_u32 s56, s56, %d" % STAMP_OFF)
    A("s_addc_u32 s57, s57, 0")
    A("s_and_b32 s57, s57, 0xffff")
    A("s_mov_b32 s58, 0x100000")
    A("s_mov_b32 s59, 0x20000")
    A("s_lshl_b32 s60, %s, 7" % wg)
    A("s_add_u32 s60, s60, %d" % (kidx * 256 * 128))
    if wave < 0:
        A("s_lshl_b32 s61, %s, 15" % wave_sgpr)
        A("s_add_u32 s60, s60, s61")
    A("s_mov_b64 exec, 1")
    A("v_mov_b32 v2, 0")
    for k in range(last + 1):
        A("v_mov_b32 v4, %s" % s(64 + 2 * k))
        A("v_mov_b32 v5, %s" % s(65 + 2 * k))
        A("buffer_store_dwordx2 v[4:5], v2, s[56:59], s60 offen offset:%d" % (8 * k))
        A("s_nop 1")
    A("%s:" % label)


def echo_init(A, vtmp, skern_dbg):
    A("s_mov_b32 s56, %s" % s(skern_dbg))
    A("s_and_b32 s57, %s, 0xffff" % s(skern_dbg + 1))
    A("s_mov_b32 s58, 256")
    A("s_mov_b32 s59, 0x20000")


def echo_end(A, k, mult, wave_sgpr):
    A("s_waitcnt vmcnt(0) lgkmcnt(0)")
    A("s_memrealtime s[92:93]")
    A("v_mov_b32 v2, 0")
    A("buffer_load_dword v3, v2, s[56:59], 0 offen sc1")
    A("s_waitcnt vmcnt(0) lgkmcnt(0)")
    A("v_readfirstlane_b32 s60, v3")
    A("s_nop 3")
    A("s_not_b32 s60, s60")
    A("s_sub_u32 s60, %s, s60" % s(64 + 2 * k))
    A("s_cmp_eq_u32 %s, 0" % s(64 + 2 * k))
    A("s_cselect_b32 s60, 0, s60")
    A("s_min_u32 s60, s60, 10000")
    A("s_mul_i32 s60, s60, %d" % mult)
    A("L_echo:")
    A("s_memrealtime s[62:63]")
    A("s_waitcnt lgkmcnt(0)")
    A("s_sub_u32 s61, s62, s92")
    A("s_cmp_lt_u32 s61, s60")
    A("s_cbranch_scc1 L_echo")
```

```python
import sys, os
from asmlib import *

E = lambda k, d: int(os.environ.get(k, d))
STAMPS_ON = bool(E("STAMPS", 0))
set_stamps(STAMPS_ON)
_STL = os.environ.get("STL", "setup,x,hst,fl1,poll1,w1,g1,gst,fl2,poll2,w2,g2,ost").split(",")


def st(A, name):
    if name in _STL:
        stamp(A, 1 + _STL.index(name))


NAME = "standalone__mixer_token_mlp__prompt_kernel"
S, D, F = 2048, 640, 1536
KSTEP_B = 40960
G_OFF = 0x280000
FL1 = 0x480000
FL2 = 0x490000
EPOCH = 0x4A0000
WS_SIZE = 0x4B0000
LNP = 1344
REG = 40960
SLOT = {1: [1 + i % 9 for i in range(16)], 2: [4, 5, 6, 7, 8, 9, 0, 1, 2, 4, 5, 6]}

DEPTH = E("DEPTH", 9)
N0 = E("N0", 8)
NL = E("NL", 0)
DW1A = E("DW1A", 12)
DW1B = E("DW1B", 20)
DW2B = E("DW2B", 20)
DW1 = E("DW1", 10)
T0 = E("T0", 8)
DW2A = E("DW2A", 8)
DW2 = E("DW2", 10)
PE1 = E("PE1", 10)
PE2 = E("PE2", 10)
ROT1 = E("ROT1", 3)
ROT1X = E("ROT1X", 0)
ROT1T = os.environ.get("ROT1T", "")
C1M = E("C1M", 0)
ROT2 = E("ROT2", 3)
ROT2X = E("ROT2X", 0)
C2M = E("C2M", 0)
FS1 = E("FS1", 16)
FS2 = E("FS2", 64)
CP = E("CP", 2)
HP = E("HP", 0)
XA1 = E("XA1", 1)
XA2 = E("XA2", 1)
RM1, RS1 = E("RM1", 13), E("RS1", 3)
RP1 = E("RP1", 0)
RM2, RS2, RP2 = E("RM2", 3), E("RS2", 1), E("RP2", 0)
PRE = E("PRE", 100)
NF = E("NF", 14)
BL = E("BL", 6)
SA = E("SA", 1)
MG = E("MG", 0)
PF = E("PF", 1)
SL = E("SL", 0)
SPIN = 1 << 17
lg = lambda x: x.bit_length() - 1

SX, SW1, SW2, SWS, SOUT, SB1, SB2 = 4, 8, 12, 16, 20, 24, 28
ST = 32
sWAVE, sDT, sFT, sDT2, sST, sC, sRING, sWOFF = 48, 49, 50, 51, 52, 53, 54, 55
sT0, sT1, sT2, sWBASE, sWEND, sROT, sMAIN = 96, 97, 98, 99, 100, 101, 3
sTAG, sF1, sZ = 7, 62, 63
sU0, sU1, sU2 = 4, 5, 6
VW1, VW2, VT, VA = 1, 5, 9, 13
vTAG = 20
vPOLL, vPA, vFA, vXW, vXR, vX4 = 18, 19, 24, 25, 26, 29
vT0, vT1 = 30, 31
VB1 = 32
VB2 = 40
vX4B = 45
vWV, vL16 = 46, 47
AB = 48
RB = 96
PS = 160
ACC = 176
vR8, vINR, vG, vI16, vB1R, vB2R = 150, 151, 152, 153, 155, 156


class VM:
    def __init__(self, A):
        self.A = A
        self.ops = []
        self.done = 0
        self.actions = []

    def op(self, text, tag, optional=False):
        self.ops.append((tag, optional))
        return text

    def last(self, tag):
        return max(i for i, (t, _) in enumerate(self.ops) if t == tag)

    def count(self, tag):
        n = sum(1 for (t, o) in self.ops[self.last(tag) + 1:] if not o)
        assert n <= 63
        return n

    def waitbig(self, n, only=None):
        k, c, m = len(self.ops), 0, 0
        small = lambda t: t in ("b", "fl1", "fl2", "ep", "poll1", "poll2")
        while k > 0 and (self.ops[k - 1][1] or small(self.ops[k - 1][0]) or c < n):
            if not self.ops[k - 1][1]:
                m += 1
                if not small(self.ops[k - 1][0]):
                    c += 1
            k -= 1
        self.waitn(m, only)

    def waitn(self, n, only=None):
        k, c = len(self.ops), 0
        while k > 0 and (self.ops[k - 1][1] or c < n):
            if not self.ops[k - 1][1]:
                c += 1
            k -= 1
        if k > self.done:
            self.A("s_waitcnt vmcnt(%d)" % n)
            self.done = k
        self.fire(only)

    def wait(self, tag):
        self.waitn(self.count(tag))

    def on(self, tag, fn):
        self.actions.append((tag, fn))

    def fire(self, only=None):
        again = True
        while again:
            again = False
            for j, (tag, fn) in enumerate(self.actions):
                if only not in (None, tag):
                    continue
                if any(t == tag for t, _ in self.ops) and self.last(tag) < self.done:
                    self.actions.pop(j)
                    fn()
                    again = True
                    break


def srd(dst, src, bytes_):
    return ["s_mov_b32 %s, %s" % (s(dst), s(src)), "s_and_b32 %s, %s, 0xffff" % (s(dst + 1), s(src + 1)),
            "s_mov_b32 %s, %d" % (s(dst + 2), bytes_), "s_mov_b32 %s, 0x20000" % s(dst + 3)]


def reduce32(x, t):
    o = []
    for mod in ("quad_perm:[1,0,3,2]", "quad_perm:[2,3,0,1]", "row_half_mirror", "row_mirror"):
        o.append("s_nop 1\nv_add_f32_dpp %s, %s, %s %s row_mask:0xf bank_mask:0xf" % (v(x), v(x), v(x), mod))
    o.append("v_mov_b32 %s, %s\ns_nop 1\nv_permlane16_swap_b32 %s, %s\ns_nop 1\nv_add_f32 %s, %s, %s" % (v(t), v(x), v(t), v(x), v(x), v(x), v(t)))
    return o


def gen():
    A = Asm()
    vm = VM(A)

    def L(lst):
        for x in lst:
            A(x)

    A('.amdgcn_target "amdgcn-amd-amdhsa--gfx950"')
    kernel_begin(A, NAME)
    A("s_cmp_ge_u32 s2, 256")
    A("s_cbranch_scc1 L_done")
    A("s_load_dwordx16 s[32:47], s[0:1], 0")
    stamp_init(A)
    if CP:
        A("s_cmp_ge_u32 s2, %d" % (8 * CP))
        A("s_cbranch_scc1 L_nocp")
        A("s_getpc_b64 s[4:5]")
        A("L_pc:")
        A("v_lshlrev_b32 v1, 7, v0")
        A("v_min_u32 v1, L_end - L_pc - 4, v1")
        A(vm.op("global_load_dword v154, v1, s[4:5]", "cp", True))
        A("L_nocp:")
    A("v_lshrrev_b32 %s, 6, v0" % v(vWV))
    A("v_lshrrev_b32 v48, 5, v0")
    A("v_readfirstlane_b32 %s, %s" % (s(sWAVE), v(vWV)))
    A("v_and_b32 v49, 31, v0")
    A("v_and_b32 v0, 63, v0")
    A("s_lshr_b32 %s, s2, 2" % s(sT0))
    A("s_and_b32 %s, s2, 3" % s(sT1))
    A("s_lshl_b32 %s, %s, 5" % (s(sT2), s(sT0)))
    A("s_lshl2_add_u32 %s, %s, %s" % (s(sT2), s(sT1), s(sT2)))
    A("v_and_b32 v50, 3, v48")
    A("v_lshrrev_b32 v51, 2, v48")
    A("v_lshl_add_u32 v50, v51, 4, v50")
    A("v_add_u32 v50, %s, v50" % s(sT2))
    A("v_mul_u32_u24 v50, 1280, v50")
    A("v_lshl_add_u32 v51, v49, 3, v50")
    A("v_lshl_add_u32 v50, v49, 4, v50")
    A("v_mov_b32 v52, %d" % EPOCH)
    A("s_lshr_b32 %s, s2, 3" % s(sT0))
    A("s_cmp_lt_u32 %s, 30" % s(sT0))
    A("s_cselect_b32 %s, 1, 0" % s(sMAIN))
    A("s_min_u32 %s, %s, 29" % (s(sT1), s(sT0)))
    if XA1 == 2:
        A("s_mul_i32 %s, %s, 52" % (s(sFT), s(sT1)))
        A("s_lshr_b32 %s, %s, 8" % (s(sFT), s(sFT)))
        A("s_mul_i32 %s, %s, 5" % (s(sT2), s(sFT)))
        A("s_sub_u32 %s, %s, %s" % (s(sDT), s(sT1), s(sT2)))
        if ROT1T:
            tb = sum(int(x) << (4 * i) for i, x in enumerate(ROT1T.split(",")))
            A("s_lshl_b32 %s, %s, 2" % (s(sT2), s(sDT)))
            A("s_lshr_b32 %s, %d, %s" % (s(sROT), tb, s(sT2)))
        else:
            A("s_mul_i32 %s, %s, %d" % (s(sROT), s(sDT), ROT1))
        A("s_and_b32 %s, s2, 1" % s(sT1))
        if ROT1X:
            A("s_mul_i32 %s, %s, %d" % (s(sT2), s(sT1), ROT1X))
            A("s_add_u32 %s, %s, %s" % (s(sROT), s(sROT), s(sT2)))
        A("s_and_b32 %s, %s, 15" % (s(sROT), s(sROT)))
        A("s_mul_i32 %s, %s, 5" % (s(sT2), s(sT1)))
        A("s_add_u32 %s, %s, %s" % (s(sDT), s(sDT), s(sT2)))
        A("s_bfe_u32 %s, s2, 0x20001" % s(sT1))
        A("s_mul_i32 %s, %s, 6" % (s(sT2), s(sT1)))
        A("s_add_u32 %s, %s, %s" % (s(sFT), s(sFT), s(sT2)))
    else:
        A("s_mul_i32 %s, %s, 26" % (s(sFT), s(sT1)))
        A("s_lshr_b32 %s, %s, 8" % (s(sFT), s(sFT)))
        A("s_mul_i32 %s, %s, 10" % (s(sT2), s(sFT)))
        A("s_sub_u32 %s, %s, %s" % (s(sDT), s(sT1), s(sT2)))
        A("s_lshr_b32 %s, %s, %d" % (s(sROT), s(sDT), RP1))
        A("s_mul_i32 %s, %s, %d" % (s(sROT), s(sROT), RM1))
        A("s_lshr_b32 %s, %s, %d" % (s(sROT), s(sROT), RS1))
        A("s_and_b32 %s, %s, 15" % (s(sROT), s(sROT)))
        A("s_and_b32 %s, s2, 7" % s(sT1))
        A("s_mul_i32 %s, %s, 3" % (s(sT2), s(sT1)))
        A("s_add_u32 %s, %s, %s" % (s(sFT), s(sFT), s(sT2)))
    p1 = 3072
    A("s_mul_i32 %s, %s, %d" % (s(sWBASE), s(sWAVE), 16 * 32 * p1))
    A("s_lshl_b32 %s, %s, 7" % (s(sT2), s(sFT)))
    A("s_add_u32 %s, %s, %s" % (s(sWBASE), s(sWBASE), s(sT2)))
    A("s_add_u32 %s, %s, %d" % (s(sWEND), s(sWBASE), 16 * 32 * p1))
    A("s_mul_i32 %s, %s, %d" % (s(sWOFF), s(sROT), 32 * p1))
    A("s_add_u32 %s, %s, %s" % (s(sWOFF), s(sWOFF), s(sWBASE)))
    A("s_mul_i32 %s, %s, %d" % (s(sRING), s(sWAVE), REG))
    A("s_waitcnt lgkmcnt(0)")
    L(srd(SX, 32, S * D * 2))
    A(vm.op("buffer_load_dwordx4 v[60:63], v50, %s, 0 offen" % s(SX, 4), "x"))
    A(vm.op("buffer_load_dwordx4 v[64:67], v50, %s, 0 offen offset:512" % s(SX, 4), "x"))
    A(vm.op("buffer_load_dwordx2 v[68:69], v51, %s, 0 offen offset:1024" % s(SX, 4), "x"))
    L(srd(SWS, 46, WS_SIZE))
    A(vm.op("buffer_load_dword %s, v52, %s, 0 offen sc1" % (v(vTAG), s(SWS, 4)), "x"))
    L(srd(SW1, 34, S * F * 2))
    A("v_lshrrev_b32 %s, 3, v0" % v(vR8))
    A("v_bfe_u32 v54, v0, 1, 2")
    A("v_lshrrev_b32 %s, 4, v0" % v(vG))
    A("v_xor_b32 v54, v54, %s" % v(vG))
    A("v_lshlrev_b32 v54, 5, v54")
    A("v_and_b32 v56, 1, v0")
    A("v_lshl_add_u32 %s, v56, 4, v54" % v(vINR))
    A("v_mul_u32_u24 %s, %d, %s" % (v(VW1), p1, v(vR8)))
    A("v_add_u32 %s, %s, %s" % (v(VW1), v(VW1), v(vINR)))
    for q in range(1, 4):
        A("v_add_u32 %s, %d, %s" % (v(VW1 + q), q * (8 * p1 - 1024), v(VW1)))

    def wdma(which, i):
        pitch = 3072 if which == 1 else 4096
        vw = VW1 if which == 1 else VW2
        sr = SW1 if which == 1 else SW2
        out = []
        for q in range(4):
            pre = "s_add_u32 m0, %s, %d\ns_nop 0\n" % (s(sRING), SLOT[which][i] * 4096) if q == 0 else ""
            post = ""
            if q == 3:
                post = "\ns_add_u32 %s, %s, %d\ns_cmp_eq_u32 %s, %s\ns_cselect_b32 %s, %s, %s" % (
                    s(sWOFF), s(sWOFF), 32 * pitch, s(sWOFF), s(sWEND), s(sWOFF), s(sWBASE), s(sWOFF))
            out.append((pre + "buffer_load_dwordx4 %s, %s, %s offen offset:%d lds" % (v(vw + q), s(sr, 4), s(sWOFF), q * 1024) + post,
                        "w%d_%d%s" % (which, i, "" if q == 3 else "_p")))
        return out

    def tr_reads(which, i):
        return ["ds_read_b64_tr_b16 %s, %s offset:%d" % (a(16 * i + b * 4 + 2 * t, 2), v(VT + b), SLOT[which][i] * 4096 + t * 2048)
                for b in range(4) for t in range(2)]

    w1 = [x for i in range(16) for x in wdma(1, i)]
    w2 = [x for i in range(12) for x in wdma(2, i)]
    for x in w1[:N0]:
        A(vm.op(*x))
    A("v_and_b32 v56, 1, v48")
    A("v_mul_u32_u24 v56, %d, v56" % LNP)
    A("v_add_u32 v56, %s, v56" % s(sRING))
    A("v_and_b32 v54, 1, %s" % v(vWV))
    A("v_lshl_add_u32 v56, v54, 7, v56")
    A("v_lshl_add_u32 v51, v49, 3, v56")
    A("v_lshl_add_u32 v50, v49, 4, v56")
    A("v_and_b32 %s, 15, v0" % v(vI16))
    A("v_bfe_u32 v54, v0, 3, 1")
    A("v_bfe_u32 v56, v0, 2, 1")
    A("v_mul_u32_u24 v56, %d, v56" % LNP)
    A("v_mul_u32_u24 v54, %d, v54" % (REG + 128))
    A("v_and_b32 v58, 3, v0")
    A("v_add_u32 v56, v56, v54")
    A("v_lshl_add_u32 v56, v58, 3, v56")
    A("v_lshl_add_u32 v56, %s, 5, v56" % v(vG))
    A("v_lshl_add_u32 v52, %s, 7, v56" % v(vWV))
    A("v_add_u32 v55, %d, v52" % (2 * REG))
    A("v_lshlrev_b32 v53, 4, %s" % v(vI16))
    A("v_lshl_add_u32 v53, %s, 10, v53" % v(vG))
    A("v_lshl_add_u32 v53, %s, 12, v53" % v(vWV))
    A("s_lshr_b32 %s, s2, 2" % s(sT0))
    A("s_mul_i32 %s, %s, %d" % (s(sT0), s(sT0), KSTEP_B))
    A("s_and_b32 %s, s2, 3" % s(sT1))
    A("s_lshl_b32 %s, %s, 8" % (s(sT1), s(sT1)))
    A("s_add_u32 %s, %s, %s" % (s(sT0), s(sT0), s(sT1)))
    A("s_add_u32 %s, %s, 16384" % (s(sT1), s(sT0)))
    A("s_add_u32 %s, %s, 32768" % (s(sT2), s(sT0)))
    A("v_lshrrev_b32 v54, 2, v0")
    A("v_bfe_u32 v56, v0, 3, 2")
    A("v_lshlrev_b32 v54, 7, v54")
    A("v_lshl_add_u32 v54, v58, 3, v54")
    A("v_add_u32 v54, %s, v54" % s(sRING))
    for b in range(4):
        A("v_xor_b32 v59, %d, v56" % b)
        A("v_lshl_add_u32 %s, v59, 5, v54" % v(VT + b))
    A("v_lshlrev_b32 %s, 4, v0" % v(vL16))
    A("s_lshl_b32 %s, %s, 8" % (s(sC), s(sWAVE)))
    A("s_add_u32 %s, %s, s2" % (s(sC), s(sC)))
    A("s_lshl_b32 %s, %s, %d" % (s(sC), s(sC), lg(FS1)))
    A("s_add_u32 %s, %s, %d" % (s(sC), s(sC), FL1))
    A("v_add_u32 %s, %s, %s" % (v(vFA), s(sC), v(vL16)))
    A("s_mov_b32 %s, %s" % (s(sF1), s(sC)))
    def flag_store(size, soff):
        if SA:
            return "s_buffer_atomic_swap %s, %s, %s" % (s(sTAG), s(SWS, 4), s(sF1) if soff == "0" else soff)
        return "s_mov_b64 exec, %d\nbuffer_store_dwordx4 %s, %s, %s, %s offen sc1\ns_mov_b64 exec, -1" % (
            (1 << (size // 16)) - 1, v(vTAG, 4), v(vFA), s(SWS, 4), soff)

    def table(ns, rot):
        o = ["s_add_u32 %s, %s, %d" % (s(sU1), s(sU0), ns * KSTEP_B),
             "s_mul_i32 %s, %s, %d" % (s(ST), s(rot), KSTEP_B),
             "s_add_u32 %s, %s, %s" % (s(ST), s(ST), s(sU0))]
        for i in range(1, ns):
            o.append("s_add_u32 %s, %s, %d\ns_cmp_eq_u32 %s, %s\ns_cselect_b32 %s, %s, %s" % (
                s(ST + i), s(ST + i - 1), KSTEP_B, s(ST + i), s(sU1), s(ST + i), s(sU0), s(ST + i)))
        return o

    def twist(mask, src):
        if mask == 2:
            o = ["s_and_b32 %s, %s, 1" % (s(sC), s(src)), "s_lshl_b32 %s, %s, 1" % (s(sC), s(sC))]
        else:
            o = ["s_and_b32 %s, %s, %d" % (s(sC), s(src), mask)]
        o.append("s_xor_b32 %s, %s, %s" % (s(sC), s(sC), s(sWAVE)))
        for j in range(4):
            o.append("s_xor_b32 %s, %s, %d\ns_lshl_b32 %s, %s, 10\nv_add_u32 %s, %s, %s" % (
                s(sU0), s(sC), j, s(sU0), s(sU0), v(VA + j), s(sU0), v(vL16)))
        return o

    common = srd(SW2, 38, S * F * 2) + srd(SOUT, 42, S * D * 2) + srd(SB2, 40, S * 2) + srd(SB1, 36, F * 2)
    common += ["s_lshr_b32 %s, s2, 3" % s(sU0),
               "s_and_b32 %s, %s, %d" % (s(sDT2), s(sU0), 3 if XA2 == 2 else 7),
               "s_lshr_b32 %s, %s, %d" % (s(sST), s(sU0), 2 if XA2 == 2 else 3),
               "s_bfe_u32 %s, s2, %s" % (s(sU0), "0x20001" if XA2 == 2 else "0x30000"),
               "s_lshl%d_add_u32 %s, %s, %s" % (3 if XA2 == 2 else 2, s(sST), s(sU0), s(sST)),
               "v_lshl_add_u32 %s, %s, 12, %s" % (v(VW2), v(vR8), v(vINR))]
    common += ["v_add_u32 %s, %d, %s" % (v(VW2 + q), q * (8 * 4096 - 1024), v(VW2)) for q in range(1, 4)]
    common += ["v_add_u32 %s, %s, %s" % (v(vXW), s(sRING), v(vL16))]
    common += ["s_xor_b32 %s, %s, %d\ns_mul_i32 %s, %s, %d\nv_add_u32 %s, %s, %s" % (
        s(sU0), s(sWAVE), j, s(sU0), s(sU0), REG, v(vXR + j - 1), s(sU0), v(vL16)) for j in range(1, 4)]
    common += ["v_lshl_add_u32 %s, %s, 10, %s" % (v(vX4), v(vWV), v(vL16)), "v_add_u32 %s, %d, %s" % (v(vX4B), 2 * REG, v(vX4))]
    common += ["v_lshlrev_b32 %s, 2, v0" % v(vT0), "v_lshlrev_b32 %s, 1, v0" % v(vT1),
               "s_lshl_b32 %s, %s, 7" % (s(sU0), s(sFT)), "s_lshl_b32 %s, %s, 7" % (s(sU1), s(sST))]
    bias_ops = [("buffer_load_dword %s, %s, %s, %s offen" % (v(vB1R), v(vT0), s(SB1, 4), s(sU0)), "b"),
                ("buffer_load_ushort %s, %s, %s, %s offen" % (v(vB2R), v(vT1), s(SB2, 4), s(sU1)), "b")]
    bias_perm = ["v_lshlrev_b32 %s, 3, %s" % (v(vT0), v(vG)), "v_lshlrev_b32 %s, 2, %s" % (v(vT1), v(vI16))]
    bias_perm += ["ds_bpermute_b32 %s, %s, %s offset:%d" % (v(VB1 + e), v(vT0), v(vB1R), (8 * (e >> 1) + (e & 1)) * 4) for e in range(8)]
    bias_perm += ["ds_bpermute_b32 %s, %s, %s offset:%d" % (v(VB2 + q), v(vT1), v(vB2R), 64 * q) for q in range(4)]
    main1 = ["s_mul_i32 %s, %s, %d" % (s(sU0), s(sWAVE), 16 * KSTEP_B),
             "s_lshl_b32 %s, %s, 12" % (s(sU1), s(sDT)),
             "s_add_u32 %s, %s, %s" % (s(sU0), s(sU0), s(sU1))] + table(16, sROT) + twist(C1M, sFT)
    main1 += ["s_and_b32 %s, %s, 3" % (s(sU0), s(sDT)),
              "s_lshl2_add_u32 %s, %s, %s" % (s(sU0), s(sU0), s(sWAVE)),
              "s_lshl_b32 %s, %s, %d" % (s(sU0), s(sU0), 6 + lg(FS1)),
              "s_add_u32 %s, %s, %d" % (s(sU0), s(sU0), FL1),
              "v_lshl_add_u32 %s, v0, %d, %s" % (v(vPA), lg(FS1), s(sU0))]
    w2_off = ["s_mul_i32 %s, %s, %d" % (s(sROT), s(sDT2), ROT2), "s_and_b32 %s, s2, 1" % s(sU0)]
    if ROT2X:
        w2_off += ["s_mul_i32 %s, %s, %d" % (s(sU1), s(sU0), ROT2X), "s_add_u32 %s, %s, %s" % (s(sROT), s(sROT), s(sU1))]
    w2_off += ["s_cmp_ge_u32 %s, 12\ns_cselect_b32 %s, 12, 0\ns_sub_u32 %s, %s, %s" % (s(sROT), s(sU1), s(sROT), s(sROT), s(sU1))] * (2 if ROT2 * 3 + ROT2X >= 24 else 1)
    if XA2 == 2:
        w2_off += ["s_lshl2_add_u32 %s, %s, %s" % (s(sDT2), s(sU0), s(sDT2))]
    else:
        w2_off = ["s_lshr_b32 %s, %s, %d" % (s(sROT), s(sDT2), RP2), "s_mul_i32 %s, %s, %d" % (s(sROT), s(sROT), RM2),
                  "s_lshr_b32 %s, %s, %d" % (s(sROT), s(sROT), RS2)]
        assert ((7 >> RP2) * RM2) >> RS2 < 12
    w2_off += [
               "s_mul_i32 %s, %s, %d" % (s(sWBASE), s(sWAVE), 12 * 32 * 4096),
               "s_lshl_b32 %s, %s, 7" % (s(sU1), s(sST)),
               "s_add_u32 %s, %s, %s" % (s(sWBASE), s(sWBASE), s(sU1)),
               "s_add_u32 %s, %s, %d" % (s(sWEND), s(sWBASE), 12 * 32 * 4096),
               "s_lshl_b32 %s, %s, 17" % (s(sWOFF), s(sROT)),
               "s_add_u32 %s, %s, %s" % (s(sWOFF), s(sWOFF), s(sWBASE))]

    L(common)
    for x in bias_ops:
        A(vm.op(*x))
    npre = len(main1) * PRE // 100
    L(main1[:npre])
    st(A, "setup")
    vm.wait("x")
    st(A, "x")
    X = 70
    ln = []
    for q in range(10):
        ln.append("v_lshlrev_b32 %s, 16, %s" % (v(X + 2 * q), v(60 + q)))
        ln.append("v_and_b32 %s, 0xffff0000, %s" % (v(X + 1 + 2 * q), v(60 + q)))
    ln.append("v_pk_add_f32 v[60:61], %s, %s" % (v(X, 2), v(X + 2, 2)))
    ln.append("v_pk_add_f32 v[62:63], %s, %s" % (v(X + 4, 2), v(X + 6, 2)))
    for q in range(8, 20, 4):
        ln.append("v_pk_add_f32 v[60:61], v[60:61], %s" % v(X + q, 2))
        ln.append("v_pk_add_f32 v[62:63], v[62:63], %s" % v(X + q + 2, 2))
    ln.append("v_pk_add_f32 v[60:61], v[60:61], v[62:63]")
    ln.append("v_mov_b32 v64, 0x41c64e6d")
    ln.append("v_add_f32 v60, v60, v61")
    ln.append("v_mul_lo_u32 %s, %s, v64" % (v(vTAG), v(vTAG)))
    ln += reduce32(60, 61)
    ln.append("v_mul_f32 v60, %s, v60" % f32(-1.0 / 640))
    ln.append("v_add_u32 %s, 0x3039, %s" % (v(vTAG), v(vTAG)))
    for q in range(0, 20, 2):
        ln.append("v_pk_add_f32 %s, %s, v[60:61] op_sel_hi:[1,0]" % (v(X + q, 2), v(X + q, 2)))
    ln.append("v_pk_mul_f32 v[62:63], %s, %s" % (v(X, 2), v(X, 2)))
    ln.append("v_pk_mul_f32 v[64:65], %s, %s" % (v(X + 2, 2), v(X + 2, 2)))
    for q in range(4, 20, 4):
        ln.append("v_pk_fma_f32 v[62:63], %s, %s, v[62:63]" % (v(X + q, 2), v(X + q, 2)))
        ln.append("v_pk_fma_f32 v[64:65], %s, %s, v[64:65]" % (v(X + q + 2, 2), v(X + q + 2, 2)))
    ln.append("v_pk_add_f32 v[62:63], v[62:63], v[64:65]")
    ln.append("v_readfirstlane_b32 %s, %s" % (s(sTAG), v(vTAG)))
    if not SA:
        ln.append("v_mov_b32 %s, %s" % (v(vTAG + 1), v(vTAG)))
    ln.append("v_add_f32 v62, v62, v63")
    ln.append("v_mov_b32 %s, %s" % (v(vTAG + 2), v(vTAG)))
    ln += reduce32(62, 63)
    ln.append("v_mul_f32 v62, %s, v62" % f32(1.0 / 640))
    ln.append("v_mov_b32 %s, %s" % (v(vTAG + 3), v(vTAG)))
    ln.append("v_cvt_pk_bf16_f32 v64, v60, v62")
    ln.append("v_lshlrev_b32 v66, 16, v64")
    ln.append("v_and_b32 v64, 0xffff0000, v64")
    ln.append("v_add_f32 v64, %s, v64" % f32(1e-5))
    ln.append("v_cvt_pk_bf16_f32 v64, v64, v64")
    ln.append("v_lshlrev_b32 v64, 16, v64")
    ln.append("v_sqrt_f32 v64, v64\nv_sub_f32 v66, v66, v60")
    ln.append("v_cvt_pk_bf16_f32 v64, v64, v64")
    ln.append("v_lshlrev_b32 v64, 16, v64")
    ln.append("v_rcp_f32 v64, v64\ns_nop 0")
    ln.append("v_mul_f32 v66, v66, v64")
    for q in range(0, 20, 2):
        ln.append("v_pk_fma_f32 %s, %s, v[64:65], v[66:67] op_sel_hi:[1,0,0]" % (v(X + q, 2), v(X + q, 2)))
    for q in range(10):
        ln.append("v_cvt_pk_bf16_f32 %s, %s, %s" % (v(60 + q), v(X + 2 * q), v(X + 1 + 2 * q)))
    k = N0
    stepn = len(ln) // (NL + 1)
    for n, x in enumerate(ln):
        A(x)
        if n % stepn == 0 and k < N0 + NL:
            A(vm.op(*w1[k]))
            k += 1
    A("ds_write_b128 v50, v[60:63]")
    A("ds_write_b128 v50, v[64:67] offset:512")
    A("ds_write_b64 v51, v[68:69] offset:1024")
    A("s_waitcnt lgkmcnt(0)")
    A("s_barrier")
    A("ds_read_b64_tr_b16 v[60:61], v52")
    A("ds_read_b64_tr_b16 v[62:63], v55")
    A("ds_read_b64_tr_b16 v[64:65], v52 offset:512")
    A("ds_read_b64_tr_b16 v[66:67], v55 offset:512")
    A("s_cmp_ge_u32 %s, 2" % s(sWAVE))
    A("s_cbranch_scc1 L_ln_two")
    A("ds_read_b64_tr_b16 v[68:69], v52 offset:1024")
    A("ds_read_b64_tr_b16 v[70:71], v55 offset:1024")
    A("s_waitcnt lgkmcnt(0)")
    A(vm.op("buffer_store_dwordx4 v[68:71], v53, %s, %s offen sc1" % (s(SWS, 4), s(sT2)), "hst", True))
    A("L_ln_two:")
    A("s_waitcnt lgkmcnt(0)")
    A(vm.op("buffer_store_dwordx4 v[60:63], v53, %s, %s offen sc1" % (s(SWS, 4), s(sT0)), "hst"))
    A(vm.op("buffer_store_dwordx4 v[64:67], v53, %s, %s offen sc1" % (s(SWS, 4), s(sT1)), "hst"))
    st(A, "hst")
    A("s_cmp_eq_u32 %s, 0" % s(sMAIN))
    A("s_cbranch_scc1 L_helper")

    def poll_check(lab):
        A("v_cmp_ne_u32 vcc, %s, %s" % (v(vPOLL), v(vTAG)))
        A("s_cbranch_vccz %s_ok" % lab)
        A("s_mov_b32 %s, 0" % s(sU2))
        A("%s_spin:" % lab)
        A("buffer_load_dword %s, %s, %s, 0 offen sc1" % (v(vPOLL), v(vPA), s(SWS, 4)))
        A("s_add_u32 %s, %s, 1" % (s(sU2), s(sU2)))
        A("s_cmp_ge_u32 %s, %d" % (s(sU2), SPIN))
        A("s_waitcnt vmcnt(0)")
        A("s_cbranch_scc1 %s_ok" % lab)
        if SL:
            A("s_sleep %d" % SL)
        A("v_cmp_ne_u32 vcc, %s, %s" % (v(vPOLL), v(vTAG)))
        A("s_cbranch_vccnz %s_spin" % lab)
        A("%s_ok:" % lab)

    def w_stream(which, ns, ops, k0, da, db, d, pe, acts, fill, sttag, flag_fn, after_flag, late):
        state = {"read": -1, "safe": -1, "flag": False}

        def mk(i):
            def fn():
                st(A, "w%d_%d" % (which, i))
                if state["read"] >= 0:
                    A("s_waitcnt lgkmcnt(7)")
                    state["safe"] = state["read"] - 1
                L(tr_reads(which, i))
                state["read"] = i
            return fn

        def flag():
            flag_fn()
            state["flag"] = True

        vm.on(sttag, flag)
        for i in range(ns):
            vm.on("w%d_%d" % (which, i), mk(i))
        fill = list(fill)
        seq = list(ops[k0:])
        seq.insert(max(0, len(seq) - pe), ("buffer_load_dword %s, %s, %s, 0 offen sc1" % (v(vPOLL), v(vPA), s(SWS, 4)), "poll%d" % which))
        nfill = (len(fill) + NF - 1) // NF
        after = list(after_flag)
        while seq:
            if state["flag"] and after and not fill:
                for x in after:
                    A(vm.op(*x) if x[1] else x[0])
                after = []
            t, tag = seq.pop(0)
            slow = [j for j, (tg, _) in enumerate(vm.ops) if tg in ("b", "fl1", "fl2", "ep")]
            if not state["flag"]:
                cur = da
            elif after or (slow and max(slow) >= vm.done):
                cur = db
            else:
                cur = max(d, cur - 2)
            vm.waitbig(cur - 1, sttag)
            if tag.startswith("poll"):
                assert not fill and state["flag"]
            if t.startswith("s_add_u32 m0"):
                i = int(tag.split("_")[1])
                prev = max([j for j in range(i) if SLOT[which][j] == SLOT[which][i]] + [-1])
                if prev > state["safe"]:
                    vm.wait("w%d_%d" % (which, prev))
                    A("s_waitcnt lgkmcnt(0)")
                    state["safe"] = state["read"]
            A(vm.op(t, tag))
            vm.fire()
            L(fill[:nfill])
            fill = fill[nfill:]
        assert not after
        L(late)
        vm.wait("poll%d" % which)
        poll_check("L_p%d" % which)
        st(A, "poll%d" % which)
        for t, tag in acts:
            vm.waitbig(max(d, DEPTH) - 1, sttag)
            A(vm.op(t, tag))
            vm.fire()
        vm.wait("w%d_%d" % (which, ns - 1))
        assert not vm.actions
        A("s_waitcnt lgkmcnt(0)")

    NBUF = DEPTH + 1
    assert NBUF <= 12

    def act_load(which, n, ns, va_of_block):
        blk, i = divmod(n, ns)
        return ("buffer_load_dwordx4 %s, %s, %s, %s offen sc1" % (v(AB + (n % NBUF) * 4, 4), v(va_of_block(blk)), s(SWS, 4), s(ST + i)), "a%d_%d" % (which, n))

    def units(which, ns, nblk, va_of_block, tail_vm, extra, preset):
        nun = ns * nblk
        tail_vm = list(tail_vm)
        for n in range(nun):
            blk, i = divmod(n, ns)
            vm.wait("a%d_%d" % (which, n))
            st(A, "u%d_%d" % (which, n))
            fill = []
            if n + DEPTH < nun:
                fill.append(vm.op(*act_load(which, n + DEPTH, ns, va_of_block)))
            elif tail_vm:
                fill.append(vm.op(*tail_vm.pop(0)))
            fill += [vm.op(*x) if isinstance(x, tuple) else x for x in extra.get(n, [])]
            m = []
            ar = v(AB + (n % NBUF) * 4, 4)
            for o in range(4):
                d = v(ACC + blk * 16 + o * 4, 4)
                wr = a(16 * i + 4 * o, 4)
                c = "0" if i == 0 and blk not in preset else d
                m.append("v_mfma_f32_16x16x32_bf16 %s, %s, %s, %s" % ((d, wr, ar, c) if which == 1 else (d, ar, wr, c)))
            L(interleave(m, fill, 0, 1, max((len(fill) + 3) // 4, 1)))
        assert not tail_vm

    def xwrites(blk, slot):
        return ["ds_write_b128 %s, %s offset:%d" % (v(vXW), v(ACC + blk * 16 + o * 4, 4), slot * 4096 + o * 1024) for o in range(4)]

    def add_extra(extra, n, lst):
        extra.setdefault(n, []).extend(lst)

    va1 = lambda blk: VA + 3 - blk

    bias1 = [("v_and_b32 %s, 0xffff0000, %s" if e & 1 else "v_lshlrev_b32 %s, 16, %s") % (v(ACC + e), v(VB1 + e // 2)) for e in range(16)]

    def flag1():
        A(flag_store(FS1, "0") if SA else vm.op(flag_store(FS1, "0"), "fl1"))
        st(A, "fl1")

    w_stream(1, 16, w1, N0 + NL, DW1A, DW1B, DW1, PE1, [act_load(1, n, 16, va1) for n in range(DEPTH)], main1[npre:], "hst", flag1, [("s_waitcnt lgkmcnt(3)\n" + "\n".join(bias_perm), None)], bias1)
    st(A, "w1")
    extra = {}
    for n, x in enumerate(w2_off):
        add_extra(extra, 2 + n // 2, [x])
    for blk in range(3):
        w = xwrites(blk, blk + 1)
        for o in range(4):
            add_extra(extra, 16 * (blk + 1) + 2 + (o // 2 if blk == 2 else o), [w[o]])
    k1 = 2 * 0.7978845608028654 * 1.4426950408889634
    k3 = k1 * 0.044715
    gs = ["v_mov_b32 %s, %s" % (v(vT0), f32(-k3)), "v_mov_b32 %s, %s" % (v(vT1), f32(-k1)),
          "s_lshl2_add_u32 %s, %s, %s" % (s(sT2), s(sDT), s(sC)),
          "s_mul_i32 %s, %s, %d" % (s(sT0), s(sFT), 2 * KSTEP_B),
          "s_lshl_b32 %s, %s, 10" % (s(sT1), s(sT2)),
          "s_add_u32 %s, %s, %s" % (s(sT0), s(sT0), s(sT1)),
          "s_add_u32 %s, %s, %d" % (s(sT0), s(sT0), G_OFF),
          "s_add_u32 %s, %s, %d" % (s(sT1), s(sT0), KSTEP_B),
          "s_mul_i32 %s, %s, 24" % (s(sT2), s(sT2)),
          "s_add_u32 %s, %s, %s" % (s(sT2), s(sT2), s(sFT)),
          "s_lshl_b32 %s, %s, %d" % (s(sT2), s(sT2), lg(FS2)),
          "s_add_u32 %s, %s, %d" % (s(sT2), s(sT2), FL2),
          "v_mov_b32 %s, %s" % (v(vFA), v(vL16))]
    if PF:
        gs += ["s_mov_b32 %s, 0" % s(sZ), "s_buffer_atomic_or %s, %s, %s" % (s(sZ), s(SWS, 4), s(sT2))]
    for n, x in enumerate(gs):
        add_extra(extra, 23 + n // 2, [x])

    def xread(dst, j):
        return ["ds_read_b128 %s, %s offset:%d" % (v(dst + o * 4, 4), v(vXR + j - 1), (4 - j) * 4096 + o * 1024) for o in range(4)]

    def exchange(extra, own, first_own, nb):
        add_extra(extra, nb, ["s_waitcnt lgkmcnt(0)\ns_barrier"])
        add_extra(extra, nb + 1, xread(own, 3))
        add_extra(extra, nb + 2, xread(RB, 2))
        adds = ["v_add_f32 %s, %s, %s" % (v(own + e), v(own + e), v(RB + e)) for e in range(16)]
        return adds

    adds = exchange(extra, ACC + 48, 48, 39)
    adds[0] = "s_waitcnt lgkmcnt(0)\n" + adds[0]
    for e in range(16):
        add_extra(extra, 43 + e // 4, [adds[e]])
    add_extra(extra, 64 - BL, ["s_waitcnt lgkmcnt(0)\ns_barrier"])
    for o, x in enumerate(xread(PS, 1)):
        add_extra(extra, 65 - BL + o // 2, [x])
    add_extra(extra, 47, ["s_or_b32 %s, s2, %s\ns_cbranch_scc1 L_noepoch\ns_mov_b32 %s, %d\ns_buffer_atomic_swap %s, %s, %s\nL_noepoch:" % (
        s(sZ), s(sWAVE), s(sZ), EPOCH, s(sTAG), s(SWS, 4), s(sZ))])
    assert T0 <= DEPTH
    units(1, 16, 4, va1, w2[:T0], extra, (0, 3))
    st(A, "g1")
    U = ACC + 48
    T = RB
    A("s_waitcnt lgkmcnt(0)")
    A("s_nop 3")
    for h in range(2):
        r2 = range(8 * h, 8 * h + 8, 2)
        r1 = range(8 * h, 8 * h + 8)
        gl = []
        gl += ["v_pk_add_f32 %s, %s, %s" % (v(U + e, 2), v(U + e, 2), v(PS + e, 2)) for e in r2]
        gl += ["v_pk_mul_f32 %s, %s, %s" % (v(T + e, 2), v(U + e, 2), v(U + e, 2)) for e in r2]
        gl += ["v_pk_fma_f32 %s, %s, %s, %s op_sel:[0,0,1] op_sel_hi:[1,0,1]" % (v(T + e, 2), v(T + e, 2), v(vT0, 2), v(vT0, 2)) for e in r2]
        gl += ["v_pk_mul_f32 %s, %s, %s" % (v(T + e, 2), v(T + e, 2), v(U + e, 2)) for e in r2]
        gl += ["v_exp_f32 %s, %s" % (v(T + e), v(T + e)) for e in r1]
        gl += ["v_pk_add_f32 %s, %s, 1.0 op_sel_hi:[1,0]" % (v(T + e, 2), v(T + e, 2)) for e in r2]
        gl += ["v_rcp_f32 %s, %s" % (v(T + e), v(T + e)) for e in r1]
        gl += ["v_pk_mul_f32 %s, %s, %s" % (v(U + e, 2), v(U + e, 2), v(T + e, 2)) for e in r2]
        gl += ["v_cvt_pk_bf16_f32 %s, %s, %s" % (v(T + 16 + e // 2), v(U + e), v(U + e + 1)) for e in r2]
        ins = w2[T0:T0 + MG] if h == 1 else []
        for n, x in enumerate(gl):
            if ins and n % max(1, 36 // MG) == 0:
                A(vm.op(*ins.pop(0)))
            A(x)
        assert not ins
        A(vm.op("buffer_store_dwordx4 %s, %s, %s, %s offen sc1" % (v(T + 16 + 4 * h, 4), v(vFA), s(SWS, 4), s(sT0 + h)), "gst"))
    st(A, "gst")
    A("L_join:")

    def flag2():
        A("s_cmp_eq_u32 %s, 0" % s(sMAIN))
        A("s_cbranch_scc1 L_noflag")
        A(flag_store(FS2, s(sT2)) if SA else vm.op(flag_store(FS2, s(sT2)), "fl2", True))
        A("L_noflag:")
        st(A, "fl2")

    setup2 = twist(C2M, sST) + ["v_add_u32 %s, 4096, %s" % (v(VA + 4), v(vL16)),
                                "v_min_u32 %s, 29, v0" % v(vT0),
                                "v_mul_u32_u24 %s, 43, %s" % (v(vT1), v(vT0)),
                                "v_lshrrev_b32 %s, 8, %s" % (v(vT1), v(vT1)),
                                "v_mul_u32_u24 %s, 18, %s" % (v(vT1), v(vT1)),
                                "v_add_u32 %s, %s, %s" % (v(vT0), v(vT0), v(vT1)),
                                "s_mul_i32 %s, %s, 120" % (s(sU0), s(sDT2)),
                                "s_mul_i32 %s, %s, 6" % (s(sU1), s(sWAVE)),
                                "s_add_u32 %s, %s, %s" % (s(sU0), s(sU0), s(sU1)),
                                "s_lshl_b32 %s, %s, %d" % (s(sU0), s(sU0), lg(FS2)),
                                "s_add_u32 %s, %s, %d" % (s(sU0), s(sU0), FL2),
                                "v_lshl_add_u32 %s, %s, %d, %s" % (v(vPA), v(vT0), lg(FS2), s(sU0)),
                                "s_mul_i32 %s, %s, %d" % (s(sU0), s(sWAVE), 12 * KSTEP_B),
                                "s_mul_i32 %s, %s, 5120" % (s(sU1), s(sDT2)),
                                "s_add_u32 %s, %s, %s" % (s(sU0), s(sU0), s(sU1)),
                                "s_add_u32 %s, %s, %d" % (s(sU0), s(sU0), G_OFF)] + table(12, sROT)
    bias2 = ["v_lshlrev_b32 %s, 16, %s" % (v(ACC + 16 + e), v(VB2 + e // 4)) for e in range(16)]
    bias2 += ["v_mul_f32 %s, 0x3e800000, %s" % (v(ACC + e), v(ACC + 16 + e)) for e in range(16)]
    va2 = lambda blk: VA + 4 - blk
    w_stream(2, 12, w2, T0 + MG, DW2A, DW2B, DW2, PE2, [act_load(2, n, 12, va2) for n in range(DEPTH)], setup2, "gst", flag2, [], bias2)
    st(A, "w2")
    extra = {}
    oa = ["v_and_b32 %s, 15, v0" % v(vT0),
          "v_mul_u32_u24 %s, 1280, %s" % (v(vT0), v(vT0)),
          "v_lshrrev_b32 %s, 4, v0" % v(vT1),
          "v_lshl_add_u32 %s, %s, 3, %s" % (v(vFA), v(vT1), v(vT0)),
          "s_mul_i32 %s, %s, %d" % (s(sT0), s(sST), 64 * 1280),
          "s_mul_i32 %s, %s, 160" % (s(sT1), s(sDT2)),
          "s_add_u32 %s, %s, %s" % (s(sT0), s(sT0), s(sT1)),
          "s_mul_i32 %s, %s, %d" % (s(sU2), s(sWAVE), 16 * 1280),
          "s_add_u32 %s, %s, %s" % (s(sU2), s(sU2), s(sT0)),
          "s_lshl_b32 %s, %s, 5" % (s(sT1), s(sC)),
          "s_add_u32 %s, %s, %s" % (s(sT0), s(sT0), s(sT1)),
          "s_add_u32 %s, %s, %d" % (s(sT1), s(sT0), 16 * 1280),
          "s_add_u32 %s, %s, %d" % (s(sT2), s(sT0), 32 * 1280),
          "s_add_u32 %s, %s, %d" % (s(sU0), s(sT0), 48 * 1280)]
    for n, x in enumerate(oa):
        add_extra(extra, 1 + n // 2, [x])
    for blk in range(4):
        w = xwrites(blk, blk)
        for o in range(4):
            add_extra(extra, 12 * (blk + 1) + 2 + (o // 2 if blk >= 2 else o), [w[o]])
    adds = exchange(extra, ACC + 64, 48, 41)
    adds[0] = "s_waitcnt lgkmcnt(4)\n" + adds[0]
    Y = RB + 16
    add_extra(extra, 44, ["ds_read_b128 %s, %s offset:%d" % (v(Y + sw * 4, 4), v(vX4B if sw & 2 else vX4), (sw & 1) * REG) for sw in range(4)])
    for e in range(16):
        add_extra(extra, 45 + e // 6, [adds[e]])
    add_extra(extra, 47, ["s_nop 0"])
    add_extra(extra, 60 - BL, ["s_waitcnt lgkmcnt(0)\ns_barrier"])
    for o, x in enumerate(xread(PS, 1)):
        add_extra(extra, 61 - BL + o // 2, [x])
    l = ["v_add_f32 %s, %s, %s" % (v(Y + e), v(Y + e), v(Y + 4 + e)) for e in (0, 1, 2, 3, 8, 9, 10, 11)]
    l[0] = "s_waitcnt lgkmcnt(0)\n" + l[0]
    add_extra(extra, 48, l[:4])
    add_extra(extra, 49, l[4:])
    add_extra(extra, 52, ["v_add_f32 %s, %s, %s" % (v(Y + e), v(Y + e), v(Y + 8 + e)) for e in range(4)])
    add_extra(extra, 53, ["v_cvt_pk_bf16_f32 %s, %s, %s" % (v(Y), v(Y), v(Y + 1)),
                          "v_cvt_pk_bf16_f32 %s, %s, %s" % (v(Y + 1), v(Y + 2), v(Y + 3))])
    tile4 = ("buffer_store_dwordx2 %s, %s, %s, %s offen offset:128" % (v(Y, 2), v(vFA), s(SOUT, 4), s(sU2)), "o4")
    add_extra(extra, 54, [tile4])
    units(2, 12, 5, va2, [], extra, (0, 1, 4))
    st(A, "g2")
    U = ACC + 64
    A("s_waitcnt lgkmcnt(0)")
    A("s_nop 3")
    so = [sT0, sT1, sT2, sU0]
    for q in range(4):
        A("v_pk_add_f32 %s, %s, %s" % (v(U + 4 * q, 2), v(U + 4 * q, 2), v(PS + 4 * q, 2)))
        A("v_pk_add_f32 %s, %s, %s" % (v(U + 4 * q + 2, 2), v(U + 4 * q + 2, 2), v(PS + 4 * q + 2, 2)))
        A("v_cvt_pk_bf16_f32 %s, %s, %s" % (v(RB + 2 * q), v(U + 4 * q), v(U + 4 * q + 1)))
        A("v_cvt_pk_bf16_f32 %s, %s, %s" % (v(RB + 2 * q + 1), v(U + 4 * q + 2), v(U + 4 * q + 3)))
        A("buffer_store_dwordx2 %s, %s, %s, %s offen" % (v(RB + 2 * q, 2), v(vFA), s(SOUT, 4), s(so[q])))
    st(A, "ost")
    stamp_flush(A, 0, s(sWAVE), 14, "L_st", wave=-1)
    A("L_done:")
    A("s_endpgm")
    A("L_helper:")
    A("s_waitcnt vmcnt(0)")
    A(flag_store(FS1, "0"))
    A("s_barrier")
    L(bias_perm)
    L(w2_off)
    if HP:
        assert XA2 == 1
        A("v_and_b32 %s, 3, v0" % v(vT0))
        A("v_lshlrev_b32 %s, 7, %s" % (v(vT0), v(vT0)))
        A("v_lshrrev_b32 %s, 2, v0" % v(vT1))
        A("v_lshl_add_u32 %s, %s, 12, %s" % (v(vT0), v(vT1), v(vT0)))
        A("s_and_b32 %s, s2, 7" % s(sU0))
        A("s_lshl_b32 %s, %s, 9" % (s(sU0), s(sU0)))
        A("s_mul_i32 %s, %s, %d" % (s(sU1), s(sWAVE), 12 * 32 * 4096))
        A("s_add_u32 %s, %s, %s" % (s(sU0), s(sU0), s(sU1)))
        A("s_bfe_u32 %s, s2, 0x10003" % s(sU1))
        A("s_lshl_b32 %s, %s, 16" % (s(sU1), s(sU1)))
        A("s_add_u32 %s, %s, %s" % (s(sU0), s(sU0), s(sU1)))
        order = [int(x) for x in os.environ.get("HPO", "0,1,2,3,4,5,6,7,8,9,10,11").split(",")]
        for n in order[:HP]:
            A("s_add_u32 %s, %s, %d" % (s(sU1), s(sU0), n * 32 * 4096))
            A("buffer_load_dword %s, %s, %s, %s offen" % (v(vPOLL), v(vT0), s(SW2, 4), s(sU1)))
    L([t for t, _ in w2[:T0 + MG]])
    A("v_mov_b32 %s, %d" % (v(vPA), EPOCH))
    A("v_not_b32 %s, %s" % (v(vPOLL), v(vTAG)))
    if E("HW", 1):
        poll_check("L_ph")
    A("s_waitcnt vmcnt(0) lgkmcnt(0)")
    A("s_branch L_join")
    A("L_end:")
    kernel_desc(A, NAME, 512, 256, 102)
    hdr = HEADER + "; @launch grid=(256,1,1) block=(256,1,1) lds=163840\n"
    txt = A.text()
    dbg = os.environ.get("DBG", "")
    if dbg:
        out = []
        for ln_ in txt.split("\n"):
            if "nohst" in dbg and "buffer_store_dwordx4" in ln_ and "v53" in ln_:
                ln_ = ln_.replace("buffer_store_dwordx4", "buffer_load_dwordx4").replace("v53", "v47").replace("s96", "0").replace("s97", "0").replace("s98", "0")
            if "plainh" in dbg and "buffer_store_dwordx4" in ln_ and "v53" in ln_:
                ln_ = ln_.replace(" sc1", "")
            if "nofl" in dbg and "buffer_store_dwordx4 v[20:23]" in ln_:
                ln_ = "    buffer_load_dword v154, v47, s[16:19], 0 offen"
            if "nobias" in dbg and ("s[24:27]" in ln_ or "s[28:31]" in ln_) and "buffer" in ln_:
                ln_ = "    buffer_load_dword v154, v47, s[16:19], 0 offen"
            if "nopoll" in dbg and "s_cbranch_vccz" in ln_:
                ln_ = ln_.replace("s_cbranch_vccz", "s_branch")
            if "nopoll" in dbg and "buffer_load_dword v18" in ln_:
                ln_ = "    buffer_load_dword v154, v47, s[16:19], 0 offen"
            if "w2hot" in dbg and "s[12:15]" in ln_ and " lds" in ln_:
                ln_ = ln_.replace(" lds", " sc1 lds").replace("s55", "s99")
            if "w1hot" in dbg and "s[8:11]" in ln_ and " lds" in ln_:
                ln_ = ln_.replace(" lds", " sc1 lds").replace("s55", "s99")
            if "acthot" in dbg and "buffer_load_dwordx4 v[" in ln_ and "s[16:19]" in ln_:
                import re
                ln_ = re.sub(r"s\[16:19\], s\d+", "s[16:19], s32", ln_)
            if "cyc" in dbg:
                ln_ = ln_.replace("s_memrealtime", "s_memtime")
            if "nomfma" in dbg and "v_mfma" in ln_:
                continue
            out.append(ln_)
        txt = "\n".join(out)
    return hdr + txt


if __name__ == "__main__":
    open(sys.argv[1], "w").write(gen())
```

```python
import sys, os
from asmlib import *

E = lambda k, d: int(os.environ.get(k, d))
STAMPS_ON = bool(E("STAMPS", 0))
set_stamps(STAMPS_ON)
_STL = os.environ.get("STL", "setup,x,hst,fl1,poll1,w1,g1,gst,fl2,poll2,w2,g2,ost").split(",")


def st(A, name):
    if name in _STL:
        stamp(A, 1 + _STL.index(name))


NAME = "standalone__mixer_token_mlp__prompt_kernel"
S, D, F = 2048, 640, 1536
KSTEP_B = 40960
G_OFF = 0x280000
FL1 = 0x480000
FL2 = 0x490000
EPOCH = 0x4A0000
WS_SIZE = 0x4B0000
LNP = 1344
REG = 40960
SLOT = {1: [1 + i % 9 for i in range(16)], 2: [4, 5, 6, 7, 8, 9, 0, 1, 2, 4, 5, 6]}

DEPTH = E("DEPTH", 9)
N0 = E("N0", 8)
N0A = min(N0, E("N0A", 6))
NL = E("NL", 0)
DW1A = E("DW1A", 12)
DW1B = E("DW1B", 20)
DW2B = E("DW2B", 20)
DW1 = E("DW1", 10)
T0 = E("T0", 6)
DW2A = E("DW2A", 7)
DW2 = E("DW2", 10)
PE1 = E("PE1", 10)
PE2 = E("PE2", 7)
ROT1 = E("ROT1", 3)
ROT1X = E("ROT1X", 0)
ROT1T = os.environ.get("ROT1T", "")
C1M = E("C1M", 0)
ROT2 = E("ROT2", 3)
ROT2X = E("ROT2X", 0)
C2M = E("C2M", 0)
FS1 = E("FS1", 8)
FS2 = E("FS2", 64)
CP = E("CP", 2)
HP = E("HP", 0)
XA1 = E("XA1", 1)
XA2 = E("XA2", 1)
RM1, RS1 = E("RM1", 13), E("RS1", 3)
RP1 = E("RP1", 0)
RM2, RS2, RP2 = E("RM2", 3), E("RS2", 1), E("RP2", 0)
PRE = E("PRE", 100)
NF = E("NF", 14)
BL = E("BL", 6)
SA = E("SA", 1)
MG = E("MG", 0)
MG0 = E("MG0", 0)
PF = E("PF", 1)
SL = E("SL", 0)
EW = E("EW", 0)
EP = E("EP", 2)
NTX = " nt" if E("NTX", 0) else ""
NTW = E("NTW", 0)
if EW:
    SLOT = {1: [1 + i % 7 for i in range(16)], 2: [8, 9, 4, 5, 6, 7, 0, 1, 2, 8, 9, 4]}
FM, SM = E("FM", 0), E("SM", 0)
SPIN = 1 << 17
lg = lambda x: x.bit_length() - 1

SX, SW1, SW2, SWS, SOUT, SB1, SB2 = 4, 8, 12, 16, 20, 24, 28
ST = 32
sWAVE, sDT, sFT, sDT2, sST, sC, sRING, sWOFF = 48, 49, 50, 51, 52, 53, 54, 55
sT0, sT1, sT2, sWBASE, sWEND, sROT, sMAIN = 96, 97, 98, 99, 100, 101, 3
sTAG, sF1, sZ, sEP = 7, 62, 63, 0
sW2OFF, sW2BASE, sW2END, sROT2 = 58, 59, 60, 61
sU0, sU1, sU2 = 4, 5, 6
VW1, VW2, VT, VA = 1, 5, 9, 13
vTAG = 20
vPOLL, vPA, vFA, vXW, vXR, vX4 = 18, 19, 24, 25, 26, 29
vT0, vT1 = 30, 31
VB1 = 32
VB2 = 40
vX4B = 45
vS0, vS1, vEA = 157, 158, 159
vWV, vL16 = 46, 47
AB = 48
RB = 96
PS = 160
ACC = 176
vR8, vINR, vG, vI16, vB1R, vB2R = 150, 151, 152, 153, 155, 156


class VM:
    def __init__(self, A):
        self.A = A
        self.ops = []
        self.done = 0
        self.actions = []

    def op(self, text, tag, optional=False):
        self.ops.append((tag, optional))
        return text

    def last(self, tag):
        return max(i for i, (t, _) in enumerate(self.ops) if t == tag)

    def count(self, tag):
        n = sum(1 for (t, o) in self.ops[self.last(tag) + 1:] if not o)
        assert n <= 63
        return n

    def waitbig(self, n, only=None):
        k, c, m = len(self.ops), 0, 0
        small = lambda t: t in ("b", "fl1", "fl2", "ep", "poll1", "poll2")
        while k > 0 and (self.ops[k - 1][1] or small(self.ops[k - 1][0]) or c < n):
            if not self.ops[k - 1][1]:
                m += 1
                if not small(self.ops[k - 1][0]):
                    c += 1
            k -= 1
        self.waitn(m, only)

    def waitn(self, n, only=None):
        k, c = len(self.ops), 0
        while k > 0 and (self.ops[k - 1][1] or c < n):
            if not self.ops[k - 1][1]:
                c += 1
            k -= 1
        if k > self.done:
            self.A("s_waitcnt vmcnt(%d)" % n)
            self.done = k
        self.fire(only)

    def wait(self, tag):
        self.waitn(self.count(tag))

    def on(self, tag, fn):
        self.actions.append((tag, fn))

    def fire(self, only=None, limit=99):
        again = True
        while again and limit > 0:
            again = False
            limit -= 1
            for j, (tag, fn) in enumerate(self.actions):
                if only not in (None, tag):
                    continue
                if any(t == tag for t, _ in self.ops) and self.last(tag) < self.done:
                    self.actions.pop(j)
                    fn()
                    again = True
                    break


def srd(dst, src, bytes_):
    return ["s_mov_b32 %s, %s" % (s(dst), s(src)), "s_and_b32 %s, %s, 0xffff" % (s(dst + 1), s(src + 1)),
            "s_mov_b32 %s, %d" % (s(dst + 2), bytes_), "s_mov_b32 %s, 0x20000" % s(dst + 3)]


def reduce32(x, t):
    o = []
    for mod in ("quad_perm:[1,0,3,2]", "quad_perm:[2,3,0,1]", "row_half_mirror", "row_mirror"):
        o.append("s_nop 1\nv_add_f32_dpp %s, %s, %s %s row_mask:0xf bank_mask:0xf" % (v(x), v(x), v(x), mod))
    o.append("v_mov_b32 %s, %s\ns_nop 1\nv_permlane16_swap_b32 %s, %s\ns_nop 1\nv_add_f32 %s, %s, %s" % (v(t), v(x), v(t), v(x), v(x), v(x), v(t)))
    return o


def gen():
    A = Asm()
    vm = VM(A)

    def L(lst):
        for x in lst:
            A(x)

    A('.amdgcn_target "amdgcn-amd-amdhsa--gfx950"')
    kernel_begin(A, NAME)
    A("s_cmp_ge_u32 s2, 256")
    A("s_cbranch_scc1 L_done")
    A("s_load_dwordx16 s[32:47], s[0:1], 0")
    if E("XD", 0):
        A("s_memrealtime s[64:65]")
        A("s_load_dwordx2 s[68:69], s[0:1], 48")
    stamp_init(A)
    if CP:
        A("s_cmp_ge_u32 s2, %d" % (8 * CP))
        A("s_cbranch_scc1 L_nocp")
        A("s_getpc_b64 s[4:5]")
        A("L_pc:")
        A("v_lshlrev_b32 v1, 7, v0")
        A("v_min_u32 v1, L_end - L_pc - 4, v1")
        A(vm.op("global_load_dword v154, v1, s[4:5]", "cp", True))
        A("L_nocp:")
    A("v_lshrrev_b32 %s, 6, v0" % v(vWV))
    A("v_lshrrev_b32 v48, 5, v0")
    A("v_readfirstlane_b32 %s, %s" % (s(sWAVE), v(vWV)))
    A("v_and_b32 v49, 31, v0")
    A("v_and_b32 v0, 63, v0")
    A("s_lshr_b32 %s, s2, 2" % s(sT0))
    A("s_and_b32 %s, s2, 3" % s(sT1))
    A("s_lshl_b32 %s, %s, 5" % (s(sT2), s(sT0)))
    A("s_lshl2_add_u32 %s, %s, %s" % (s(sT2), s(sT1), s(sT2)))
    A("v_and_b32 v50, 3, v48")
    A("v_lshrrev_b32 v51, 2, v48")
    A("v_lshl_add_u32 v50, v51, 4, v50")
    A("v_add_u32 v50, %s, v50" % s(sT2))
    A("v_mul_u32_u24 v50, 1280, v50")
    A("v_lshl_add_u32 v51, v49, 3, v50")
    A("v_lshl_add_u32 v50, v49, 4, v50")
    A("s_lshr_b32 %s, s2, 3" % s(sT0))
    A("s_cmp_lt_u32 %s, 30" % s(sT0))
    A("s_cselect_b32 %s, 1, 0" % s(sMAIN))
    A("s_min_u32 %s, %s, 29" % (s(sT1), s(sT0)))
    if XA1 == 2:
        A("s_mul_i32 %s, %s, 52" % (s(sFT), s(sT1)))
        A("s_lshr_b32 %s, %s, 8" % (s(sFT), s(sFT)))
        A("s_mul_i32 %s, %s, 5" % (s(sT2), s(sFT)))
        A("s_sub_u32 %s, %s, %s" % (s(sDT), s(sT1), s(sT2)))
        if ROT1T:
            tb = sum(int(x) << (4 * i) for i, x in enumerate(ROT1T.split(",")))
            A("s_lshl_b32 %s, %s, 2" % (s(sT2), s(sDT)))
            A("s_lshr_b32 %s, %d, %s" % (s(sROT), tb, s(sT2)))
        else:
            A("s_mul_i32 %s, %s, %d" % (s(sROT), s(sDT), ROT1))
        A("s_and_b32 %s, s2, 1" % s(sT1))
        if ROT1X:
            A("s_mul_i32 %s, %s, %d" % (s(sT2), s(sT1), ROT1X))
            A("s_add_u32 %s, %s, %s" % (s(sROT), s(sROT), s(sT2)))
        A("s_and_b32 %s, %s, 15" % (s(sROT), s(sROT)))
        A("s_mul_i32 %s, %s, 5" % (s(sT2), s(sT1)))
        A("s_add_u32 %s, %s, %s" % (s(sDT), s(sDT), s(sT2)))
        A("s_bfe_u32 %s, s2, 0x20001" % s(sT1))
        A("s_mul_i32 %s, %s, 6" % (s(sT2), s(sT1)))
        A("s_add_u32 %s, %s, %s" % (s(sFT), s(sFT), s(sT2)))
    else:
        A("s_mul_i32 %s, %s, 26" % (s(sFT), s(sT1)))
        A("s_lshr_b32 %s, %s, 8" % (s(sFT), s(sFT)))
        A("s_mul_i32 %s, %s, 10" % (s(sT2), s(sFT)))
        A("s_sub_u32 %s, %s, %s" % (s(sDT), s(sT1), s(sT2)))
        A("s_lshr_b32 %s, %s, %d" % (s(sROT), s(sDT), RP1))
        A("s_mul_i32 %s, %s, %d" % (s(sROT), s(sROT), RM1))
        A("s_lshr_b32 %s, %s, %d" % (s(sROT), s(sROT), RS1))
        A("s_and_b32 %s, %s, 15" % (s(sROT), s(sROT)))
        A("s_and_b32 %s, s2, 7" % s(sT1))
        if FM == 0:
            A("s_mul_i32 %s, %s, 3" % (s(sT2), s(sT1)))
            A("s_add_u32 %s, %s, %s" % (s(sFT), s(sFT), s(sT2)))
        else:
            A("s_xor_b32 %s, %s, %d" % (s(sT1), s(sT1), FM - 1))
            A("s_lshl3_add_u32 %s, %s, %s" % (s(sFT), s(sFT), s(sT1)))
    p1 = 3072
    A("s_mul_i32 %s, %s, %d" % (s(sWBASE), s(sWAVE), 16 * 32 * p1))
    A("s_lshl_b32 %s, %s, 7" % (s(sT2), s(sFT)))
    A("s_add_u32 %s, %s, %s" % (s(sWBASE), s(sWBASE), s(sT2)))
    A("s_add_u32 %s, %s, %d" % (s(sWEND), s(sWBASE), 16 * 32 * p1))
    A("s_mul_i32 %s, %s, %d" % (s(sWOFF), s(sROT), 32 * p1))
    A("s_add_u32 %s, %s, %s" % (s(sWOFF), s(sWOFF), s(sWBASE)))
    A("s_mul_i32 %s, %s, %d" % (s(sRING), s(sWAVE), REG))
    A("v_lshrrev_b32 %s, 3, v0" % v(vR8))
    A("v_bfe_u32 v54, v0, 1, 2")
    A("v_lshrrev_b32 %s, 4, v0" % v(vG))
    A("v_xor_b32 v54, v54, %s" % v(vG))
    A("v_lshlrev_b32 v54, 5, v54")
    A("v_and_b32 v56, 1, v0")
    A("v_lshl_add_u32 %s, v56, 4, v54" % v(vINR))
    A("v_mul_u32_u24 %s, %d, %s" % (v(VW1), p1, v(vR8)))
    A("v_add_u32 %s, %s, %s" % (v(VW1), v(VW1), v(vINR)))
    for q in range(1, 4):
        A("v_add_u32 %s, %d, %s" % (v(VW1 + q), q * (8 * p1 - 1024), v(VW1)))

    A("s_lshr_b32 %s, s2, 3" % s(sT0))
    A("s_and_b32 %s, %s, 7" % (s(sDT2), s(sT0)))
    A("s_lshr_b32 %s, %s, 3" % (s(sST), s(sT0)))
    A("s_and_b32 %s, s2, 7" % s(sT0))
    if SM == 0:
        A("s_lshl2_add_u32 %s, %s, %s" % (s(sST), s(sT0), s(sST)))
    elif SM == 1:
        A("s_lshl3_add_u32 %s, %s, %s" % (s(sST), s(sST), s(sT0)))
    else:
        A("s_and_b32 %s, %s, 1" % (s(sT1), s(sST)))
        A("s_lshr_b32 %s, %s, 1" % (s(sST), s(sST)))
        A("s_lshl3_add_u32 %s, %s, %s" % (s(sST), s(sST), s(sT0)))
        A("s_lshl1_add_u32 %s, %s, %s" % (s(sST), s(sST), s(sT1)))
    A("v_lshlrev_b32 %s, 2, v0" % v(vT0))
    A("v_lshlrev_b32 %s, 1, v0" % v(vT1))
    A("s_lshl_b32 %s, %s, 7" % (s(sT0), s(sFT)))
    A("s_lshl_b32 %s, %s, 7" % (s(sT1), s(sST)))
    A("s_mov_b32 %s, %d" % (s(sZ), EPOCH))
    srds = [(SX, 32, S * D * 2), (SB1, 36, F * 2), (SB2, 40, S * 2), (SW1, 34, S * F * 2), (SWS, 46, WS_SIZE), (SW2, 38, S * F * 2), (SOUT, 42, S * D * 2)]
    for d_, _, n_ in srds:
        L(srd(d_, 0, n_)[2:])
    st(A, "pre")
    A("s_waitcnt lgkmcnt(0)")
    st(A, "ka")
    L(srd(*srds[0])[:2])
    A(vm.op("buffer_load_dwordx4 v[60:63], v50, %s, 0 offen%s" % (s(SX, 4), NTX), "x"))
    A(vm.op("buffer_load_dwordx4 v[64:67], v50, %s, 0 offen offset:512%s" % (s(SX, 4), NTX), "x"))
    A(vm.op("buffer_load_dwordx2 v[68:69], v51, %s, 0 offen offset:1024%s" % (s(SX, 4), NTX), "x"))
    L(srd(*srds[1])[:2] + srd(*srds[2])[:2])
    bias_ops = [("buffer_load_dword %s, %s, %s, %s offen" % (v(vB1R), v(vT0), s(SB1, 4), s(sT0)), "b"),
                ("buffer_load_ushort %s, %s, %s, %s offen" % (v(vB2R), v(vT1), s(SB2, 4), s(sT1)), "b")]
    for x in bias_ops:
        A(vm.op(*x))
    L(srd(*srds[3])[:2] + srd(*srds[4])[:2])
    A("s_buffer_load_dword %s, %s, %s" % (s(sEP), s(SWS, 4), s(sZ)))
    st(A, "xi")

    def wdma(which, i):
        pitch = 3072 if which == 1 else 4096
        vw = VW1 if which == 1 else VW2
        sr = SW1 if which == 1 else SW2
        sWOFF, sWBASE, sWEND = (55, 99, 100) if which == 1 else (sW2OFF, sW2BASE, sW2END)
        nt = " nt" if which == 1 and i >= 16 - NTW else ""
        out = []
        for q in range(4):
            pre = "s_add_u32 m0, %s, %d\ns_nop 0\n" % (s(sRING), SLOT[which][i] * 4096) if q == 0 else ""
            post = ""
            if q == 3:
                post = "\ns_add_u32 %s, %s, %d\ns_cmp_eq_u32 %s, %s\ns_cselect_b32 %s, %s, %s" % (
                    s(sWOFF), s(sWOFF), 32 * pitch, s(sWOFF), s(sWEND), s(sWOFF), s(sWBASE), s(sWOFF))
            out.append((pre + "buffer_load_dwordx4 %s, %s, %s offen offset:%d%s lds" % (v(vw + q), s(sr, 4), s(sWOFF), q * 1024, nt) + post,
                        "w%d_%d%s" % (which, i, "" if q == 3 else "_p")))
        return out

    def tr_reads(which, i):
        return ["ds_read_b64_tr_b16 %s, %s offset:%d" % (a(16 * i + b * 4 + 2 * t, 2), v(VT + b), SLOT[which][i] * 4096 + t * 2048)
                for b in range(4) for t in range(2)]

    w1 = [x for i in range(16) for x in wdma(1, i)]
    w2 = [x for i in range(12) for x in wdma(2, i)]
    for x in w1[:N0A]:
        A(vm.op(*x))
    st(A, "wi")
    A("v_and_b32 v56, 1, v48")
    A("v_mul_u32_u24 v56, %d, v56" % LNP)
    A("v_add_u32 v56, %s, v56" % s(sRING))
    A("v_and_b32 v54, 1, %s" % v(vWV))
    A("v_lshl_add_u32 v56, v54, 7, v56")
    A("v_lshl_add_u32 v51, v49, 3, v56")
    A("v_lshl_add_u32 v50, v49, 4, v56")
    A("v_and_b32 %s, 15, v0" % v(vI16))
    A("v_bfe_u32 v54, v0, 3, 1")
    A("v_bfe_u32 v56, v0, 2, 1")
    A("v_mul_u32_u24 v56, %d, v56" % LNP)
    A("v_mul_u32_u24 v54, %d, v54" % (REG + 128))
    A("v_and_b32 v58, 3, v0")
    A("v_add_u32 v56, v56, v54")
    A("v_lshl_add_u32 v56, v58, 3, v56")
    A("v_lshl_add_u32 v56, %s, 5, v56" % v(vG))
    A("v_lshl_add_u32 v52, %s, 7, v56" % v(vWV))
    A("v_add_u32 v55, %d, v52" % (2 * REG))
    A("v_lshlrev_b32 v53, 4, %s" % v(vI16))
    A("v_lshl_add_u32 v53, %s, 10, v53" % v(vG))
    A("v_lshl_add_u32 v53, %s, 12, v53" % v(vWV))
    A("s_lshr_b32 %s, s2, 2" % s(sT0))
    A("s_mul_i32 %s, %s, %d" % (s(sT0), s(sT0), KSTEP_B))
    A("s_and_b32 %s, s2, 3" % s(sT1))
    A("s_lshl_b32 %s, %s, 8" % (s(sT1), s(sT1)))
    A("s_add_u32 %s, %s, %s" % (s(sT0), s(sT0), s(sT1)))
    A("s_add_u32 %s, %s, 16384" % (s(sT1), s(sT0)))
    A("s_add_u32 %s, %s, 32768" % (s(sT2), s(sT0)))
    A("v_lshrrev_b32 v54, 2, v0")
    A("v_bfe_u32 v56, v0, 3, 2")
    A("v_lshlrev_b32 v54, 7, v54")
    A("v_lshl_add_u32 v54, v58, 3, v54")
    A("v_add_u32 v54, %s, v54" % s(sRING))
    for b in range(4):
        A("v_xor_b32 v59, %d, v56" % b)
        A("v_lshl_add_u32 %s, v59, 5, v54" % v(VT + b))
    A("v_lshlrev_b32 %s, 4, v0" % v(vL16))
    A("s_lshl_b32 %s, %s, 8" % (s(sC), s(sWAVE)))
    A("s_add_u32 %s, %s, s2" % (s(sC), s(sC)))
    A("s_lshl_b32 %s, %s, %d" % (s(sC), s(sC), lg(FS1)))
    A("s_add_u32 %s, %s, %d" % (s(sC), s(sC), FL1))
    A("s_mov_b32 %s, %s" % (s(sF1), s(sC)))
    def flag_store(size, soff):
        if SA:
            return "s_buffer_atomic_swap %s, %s, %s" % (s(sTAG), s(SWS, 4), s(sF1) if soff == "0" else soff)
        return "s_mov_b64 exec, %d\nbuffer_store_dwordx4 %s, %s, %s, %s offen sc1\ns_mov_b64 exec, -1" % (
            (1 << (size // 16)) - 1, v(vTAG, 4), v(vFA), s(SWS, 4), soff)

    def table(ns, rot):
        o = ["s_add_u32 %s, %s, %d" % (s(sU1), s(sU0), ns * KSTEP_B),
             "s_mul_i32 %s, %s, %d" % (s(ST), s(rot), KSTEP_B),
             "s_add_u32 %s, %s, %s" % (s(ST), s(ST), s(sU0))]
        for i in range(1, ns):
            o.append("s_add_u32 %s, %s, %d\ns_cmp_eq_u32 %s, %s\ns_cselect_b32 %s, %s, %s" % (
                s(ST + i), s(ST + i - 1), KSTEP_B, s(ST + i), s(sU1), s(ST + i), s(sU0), s(ST + i)))
        return o

    def twist(mask, src):
        if mask == 2:
            o = ["s_and_b32 %s, %s, 1" % (s(sC), s(src)), "s_lshl_b32 %s, %s, 1" % (s(sC), s(sC))]
        else:
            o = ["s_and_b32 %s, %s, %d" % (s(sC), s(src), mask)]
        o.append("s_xor_b32 %s, %s, %s" % (s(sC), s(sC), s(sWAVE)))
        for j in range(4):
            o.append("s_xor_b32 %s, %s, %d\ns_lshl_b32 %s, %s, 10\nv_add_u32 %s, %s, %s" % (
                s(sU0), s(sC), j, s(sU0), s(sU0), v(VA + j), s(sU0), v(vL16)))
        return o

    assert XA2 == 1 and SA and PRE == 100
    common = srd(*srds[5])[:2] + srd(*srds[6])[:2] + ["v_lshl_add_u32 %s, %s, 12, %s" % (v(VW2), v(vR8), v(vINR))]
    common += ["v_add_u32 %s, %d, %s" % (v(VW2 + q), q * (8 * 4096 - 1024), v(VW2)) for q in range(1, 4)]
    common += ["v_add_u32 %s, %s, %s" % (v(vXW), s(sRING), v(vL16))]
    common += ["s_xor_b32 %s, %s, %d\ns_mul_i32 %s, %s, %d\nv_add_u32 %s, %s, %s" % (
        s(sU0), s(sWAVE), j, s(sU0), s(sU0), REG, v(vXR + j - 1), s(sU0), v(vL16)) for j in range(1, 4)]
    common += ["v_lshl_add_u32 %s, %s, 10, %s" % (v(vX4), v(vWV), v(vL16)), "v_add_u32 %s, %d, %s" % (v(vX4B), 2 * REG, v(vX4))]
    bias_perm = ["v_lshlrev_b32 %s, 3, %s" % (v(vT0), v(vG)), "v_lshlrev_b32 %s, 2, %s" % (v(vT1), v(vI16))]
    bias_perm += ["ds_bpermute_b32 %s, %s, %s offset:%d" % (v(VB1 + e), v(vT0), v(vB1R), (8 * (e >> 1) + (e & 1)) * 4) for e in range(8)]
    bias_perm += ["ds_bpermute_b32 %s, %s, %s offset:%d" % (v(VB2 + q), v(vT1), v(vB2R), 64 * q) for q in range(4)]
    main1 = ["s_mul_i32 %s, %s, %d" % (s(sU0), s(sWAVE), 16 * KSTEP_B),
             "s_lshl_b32 %s, %s, 12" % (s(sU1), s(sDT)),
             "s_add_u32 %s, %s, %s" % (s(sU0), s(sU0), s(sU1))] + table(16, sROT) + twist(C1M, sFT)
    main1 += ["s_and_b32 %s, %s, 3" % (s(sU0), s(sDT)),
              "s_lshl2_add_u32 %s, %s, %s" % (s(sU0), s(sU0), s(sWAVE)),
              "s_lshl_b32 %s, %s, %d" % (s(sU0), s(sU0), 6 + lg(FS1)),
              "s_add_u32 %s, %s, %d" % (s(sU0), s(sU0), FL1),
              "v_lshl_add_u32 %s, v0, %d, %s" % (v(vPA), lg(FS1), s(sU0))]
    w2_off = ["s_mul_i32 %s, %s, %d" % (s(sROT2), s(sDT2), ROT2), "s_and_b32 %s, s2, 1" % s(sU0)]
    if ROT2X:
        w2_off += ["s_mul_i32 %s, %s, %d" % (s(sU1), s(sU0), ROT2X), "s_add_u32 %s, %s, %s" % (s(sROT2), s(sROT2), s(sU1))]
    w2_off += ["s_cmp_ge_u32 %s, 12\ns_cselect_b32 %s, 12, 0\ns_sub_u32 %s, %s, %s" % (s(sROT2), s(sU1), s(sROT2), s(sROT2), s(sU1))] * (2 if ROT2 * 3 + ROT2X >= 24 else 1)
    if XA2 == 2:
        w2_off += ["s_lshl2_add_u32 %s, %s, %s" % (s(sDT2), s(sU0), s(sDT2))]
    else:
        w2_off = ["s_lshr_b32 %s, %s, %d" % (s(sROT2), s(sDT2), RP2), "s_mul_i32 %s, %s, %d" % (s(sROT2), s(sROT2), RM2),
                  "s_lshr_b32 %s, %s, %d" % (s(sROT2), s(sROT2), RS2)]
        assert ((7 >> RP2) * RM2) >> RS2 < 12
    w2_off += [
               "s_mul_i32 %s, %s, %d" % (s(sW2BASE), s(sWAVE), 12 * 32 * 4096),
               "s_lshl_b32 %s, %s, 7" % (s(sU1), s(sST)),
               "s_add_u32 %s, %s, %s" % (s(sW2BASE), s(sW2BASE), s(sU1)),
               "s_add_u32 %s, %s, %d" % (s(sW2END), s(sW2BASE), 12 * 32 * 4096),
               "s_lshl_b32 %s, %s, 17" % (s(sW2OFF), s(sROT2)),
               "s_add_u32 %s, %s, %s" % (s(sW2OFF), s(sW2OFF), s(sW2BASE))]

    st(A, "s1")
    L(common)
    st(A, "s2")
    if EW:
        L(w2_off)
        w2_off = []
    npre = len(main1) * PRE // 100
    L(main1[:npre])
    for x in w1[N0A:N0]:
        A(vm.op(*x))
    st(A, "setup")
    vm.wait("x")
    st(A, "x")
    X = 70
    ln = []
    for q in range(10):
        ln.append("v_lshlrev_b32 %s, 16, %s" % (v(X + 2 * q), v(60 + q)))
        ln.append("v_and_b32 %s, 0xffff0000, %s" % (v(X + 1 + 2 * q), v(60 + q)))
    ln.append("v_pk_add_f32 v[60:61], %s, %s" % (v(X, 2), v(X + 2, 2)))
    ln.append("v_pk_add_f32 v[62:63], %s, %s" % (v(X + 4, 2), v(X + 6, 2)))
    for q in range(8, 20, 4):
        ln.append("v_pk_add_f32 v[60:61], v[60:61], %s" % v(X + q, 2))
        ln.append("v_pk_add_f32 v[62:63], v[62:63], %s" % v(X + q + 2, 2))
    ln.append("v_pk_add_f32 v[60:61], v[60:61], v[62:63]")
    ln.append("v_add_f32 v60, v60, v61")
    ln += reduce32(60, 61)
    ln.append("v_mul_f32 v60, %s, v60" % f32(-1.0 / 640))
    for q in range(0, 20, 2):
        ln.append("v_pk_add_f32 %s, %s, v[60:61] op_sel_hi:[1,0]" % (v(X + q, 2), v(X + q, 2)))
    ln.append("v_pk_mul_f32 v[62:63], %s, %s" % (v(X, 2), v(X, 2)))
    ln.append("v_pk_mul_f32 v[64:65], %s, %s" % (v(X + 2, 2), v(X + 2, 2)))
    for q in range(4, 20, 4):
        ln.append("v_pk_fma_f32 v[62:63], %s, %s, v[62:63]" % (v(X + q, 2), v(X + q, 2)))
        ln.append("v_pk_fma_f32 v[64:65], %s, %s, v[64:65]" % (v(X + q + 2, 2), v(X + q + 2, 2)))
    ln.append("v_pk_add_f32 v[62:63], v[62:63], v[64:65]")
    ln.append("v_add_f32 v62, v62, v63")
    ln += reduce32(62, 63)
    ln.append("v_mul_f32 v62, %s, v62" % f32(1.0 / 640))
    ln.append("v_cvt_pk_bf16_f32 v64, v60, v62")
    ln.append("v_lshlrev_b32 v66, 16, v64")
    ln.append("v_and_b32 v64, 0xffff0000, v64")
    ln.append("v_add_f32 v64, %s, v64" % f32(1e-5))
    ln.append("v_cvt_pk_bf16_f32 v64, v64, v64")
    ln.append("v_lshlrev_b32 v64, 16, v64")
    ln.append("v_sqrt_f32 v64, v64\nv_sub_f32 v66, v66, v60")
    ln.append("v_cvt_pk_bf16_f32 v64, v64, v64")
    ln.append("v_lshlrev_b32 v64, 16, v64")
    ln.append("v_rcp_f32 v64, v64\ns_nop 0")
    ln.append("v_mul_f32 v66, v66, v64")
    for q in range(0, 20, 2):
        ln.append("v_pk_fma_f32 %s, %s, v[64:65], v[66:67] op_sel_hi:[1,0,0]" % (v(X + q, 2), v(X + q, 2)))
    for q in range(10):
        ln.append("v_cvt_pk_bf16_f32 %s, %s, %s" % (v(60 + q), v(X + 2 * q), v(X + 1 + 2 * q)))
    k = N0
    stepn = len(ln) // (NL + 1)
    for n, x in enumerate(ln):
        A(x)
        if n % stepn == 0 and k < N0 + NL:
            A(vm.op(*w1[k]))
            k += 1
    st(A, "lnm")
    A("ds_write_b128 v50, v[60:63]")
    A("ds_write_b128 v50, v[64:67] offset:512")
    A("ds_write_b64 v51, v[68:69] offset:1024")
    A("s_waitcnt lgkmcnt(0)")
    A("s_barrier")
    st(A, "lnb")
    A("ds_read_b64_tr_b16 v[60:61], v52")
    A("ds_read_b64_tr_b16 v[62:63], v55")
    A("ds_read_b64_tr_b16 v[64:65], v52 offset:512")
    A("ds_read_b64_tr_b16 v[66:67], v55 offset:512")
    A("s_mul_i32 %s, %s, 0x41c64e6d" % (s(sTAG), s(sEP)))
    A("s_add_u32 %s, %s, 0x3039" % (s(sTAG), s(sTAG)))
    A("v_mov_b32 %s, %s" % (v(vTAG), s(sTAG)))
    A("s_cmp_ge_u32 %s, 2" % s(sWAVE))
    A("s_cbranch_scc1 L_ln_two")
    A("ds_read_b64_tr_b16 v[68:69], v52 offset:1024")
    A("ds_read_b64_tr_b16 v[70:71], v55 offset:1024")
    A("s_waitcnt lgkmcnt(0)")
    A(vm.op("buffer_store_dwordx4 v[68:71], v53, %s, %s offen sc1" % (s(SWS, 4), s(sT2)), "hst", True))
    A("L_ln_two:")
    A("s_waitcnt lgkmcnt(0)")
    A(vm.op("buffer_store_dwordx4 v[60:63], v53, %s, %s offen sc1" % (s(SWS, 4), s(sT0)), "hst"))
    A(vm.op("buffer_store_dwordx4 v[64:67], v53, %s, %s offen sc1" % (s(SWS, 4), s(sT1)), "hst"))
    st(A, "hst")
    A("s_cmp_eq_u32 %s, 0" % s(sMAIN))
    A("s_cbranch_scc1 L_helper")

    def poll_check(lab, vPA=vPA, also=""):
        A("v_cmp_ne_u32 vcc, %s, %s" % (v(vPOLL), v(vTAG)))
        A("s_cbranch_vccz %s_ok" % lab)
        A("s_mov_b32 %s, 0" % s(sU2))
        A("%s_spin:" % lab)
        A(also)
        A("buffer_load_dword %s, %s, %s, 0 offen sc1" % (v(vPOLL), v(vPA), s(SWS, 4)))
        A("s_add_u32 %s, %s, 1" % (s(sU2), s(sU2)))
        A("s_cmp_ge_u32 %s, %d" % (s(sU2), SPIN))
        A("s_waitcnt vmcnt(0)")
        A("s_cbranch_scc1 %s_ok" % lab)
        if SL:
            A("s_sleep %d" % SL)
        A("v_cmp_ne_u32 vcc, %s, %s" % (v(vPOLL), v(vTAG)))
        A("s_cbranch_vccnz %s_spin" % lab)
        A("%s_ok:" % lab)

    def w_stream(which, ns, ops, k0, da, db, d, pe, acts, fill, sttag, flag_fn, after_flag, late):
        state = {"read": -1, "safe": -1, "flag": False}

        def mk(i):
            def fn():
                st(A, "w%d_%d" % (which, i))
                if state["read"] >= 0:
                    A("s_waitcnt lgkmcnt(7)")
                    state["safe"] = state["read"] - 1
                L(tr_reads(which, i))
                state["read"] = i
            return fn

        def flag():
            flag_fn()
            state["flag"] = True

        vm.on(sttag, flag)
        for i in range(ns):
            vm.on("w%d_%d" % (which, i), mk(i))
        fill = list(fill)
        seq = list(ops[k0:])
        seq.insert(max(0, len(seq) - pe), ("buffer_load_dword %s, %s, %s, 0 offen sc1" % (v(vPOLL), v(vPA), s(SWS, 4)), "poll%d" % which))
        nfill = (len(fill) + NF - 1) // NF
        after = list(after_flag)
        while seq:
            if state["flag"] and after and not fill:
                for x in after:
                    A(vm.op(*x) if x[1] else x[0])
                after = []
            t, tag = seq.pop(0)
            slow = [j for j, (tg, _) in enumerate(vm.ops) if tg in ("b", "fl1", "fl2", "ep")]
            if not state["flag"]:
                cur = da
            elif after or (slow and max(slow) >= vm.done):
                cur = db
            else:
                cur = max(d, cur - 2)
            vm.waitbig(cur - 1, sttag)
            if tag.startswith("poll"):
                assert not fill and state["flag"]
            if t.startswith("s_add_u32 m0") and tag.startswith("w%d" % which):
                i = int(tag.split("_")[1])
                prev = max([j for j in range(i) if SLOT[which][j] == SLOT[which][i]] + [-1])
                if prev > state["safe"]:
                    vm.wait("w%d_%d" % (which, prev))
                    A("s_waitcnt lgkmcnt(0)")
                    state["safe"] = state["read"]
            A(vm.op(t, tag))
            vm.fire(limit=1)
            L(fill[:nfill])
            fill = fill[nfill:]
        assert not after
        L(late)
        vm.wait("poll%d" % which)
        poll_check("L_p%d" % which)
        st(A, "poll%d" % which)
        for t, tag in acts:
            vm.waitbig(max(d, DEPTH) - 1, sttag)
            A(vm.op(t, tag))
            vm.fire()
        vm.wait("w%d_%d" % (which, ns - 1))
        assert not vm.actions
        A("s_waitcnt lgkmcnt(0)")

    NBUF = DEPTH + 1
    assert NBUF <= 12

    def act_load(which, n, ns, va_of_block):
        blk, i = divmod(n, ns)
        return ("buffer_load_dwordx4 %s, %s, %s, %s offen sc1" % (v(AB + (n % NBUF) * 4, 4), v(va_of_block(blk)), s(SWS, 4), s(ST + i)), "a%d_%d" % (which, n))

    def units(which, ns, nblk, va_of_block, tail_vm, extra, preset):
        nun = ns * nblk
        tail_vm = list(tail_vm)
        for n in range(nun):
            blk, i = divmod(n, ns)
            vm.wait("a%d_%d" % (which, n))
            st(A, "u%d_%d" % (which, n))
            fill = []
            if n + DEPTH < nun:
                fill.append(vm.op(*act_load(which, n + DEPTH, ns, va_of_block)))
            elif tail_vm:
                fill.append(vm.op(*tail_vm.pop(0)))
            fill += [vm.op(*x) if isinstance(x, tuple) else x for x in extra.get(n, [])]
            m = []
            ar = v(AB + (n % NBUF) * 4, 4)
            for o in range(4):
                d = v(ACC + blk * 16 + o * 4, 4)
                wr = a(16 * i + 4 * o, 4)
                c = "0" if i == 0 and blk not in preset else d
                m.append("v_mfma_f32_16x16x32_bf16 %s, %s, %s, %s" % ((d, wr, ar, c) if which == 1 else (d, ar, wr, c)))
            L(interleave(m, fill, 0, 1, max((len(fill) + 3) // 4, 1)))
        assert not tail_vm

    def xwrites(blk, slot):
        return ["ds_write_b128 %s, %s offset:%d" % (v(vXW), v(ACC + blk * 16 + o * 4, 4), slot * 4096 + o * 1024) for o in range(4)]

    def add_extra(extra, n, lst):
        extra.setdefault(n, []).extend(lst)

    va1 = lambda blk: VA + 3 - blk

    bias1 = [("v_and_b32 %s, 0xffff0000, %s" if e & 1 else "v_lshlrev_b32 %s, 16, %s") % (v(ACC + e), v(VB1 + e // 2)) for e in range(16)]

    def flag1():
        A(flag_store(FS1, "0") if SA else vm.op(flag_store(FS1, "0"), "fl1"))
        st(A, "fl1")

    assert 4 * EP >= N0 + NL or not EW
    w1 = w1[:4 * EP] + w2[:4 * EW] + w1[4 * EP:]
    w_stream(1, 16, w1, N0 + NL, DW1A, DW1B, DW1, PE1, [act_load(1, n, 16, va1) for n in range(DEPTH)], main1[npre:], "hst", flag1, [("s_waitcnt lgkmcnt(3)\n" + "\n".join(bias_perm), None)], bias1)
    st(A, "w1")
    extra = {}
    for n, x in enumerate(w2_off):
        add_extra(extra, 2 + n // 2, [x])
    for blk in range(3):
        w = xwrites(blk, blk + 1)
        for o in range(4):
            add_extra(extra, 16 * (blk + 1) + 2 + (o // 2 if blk == 2 else o), [w[o]])
    k1 = 2 * 0.7978845608028654 * 1.4426950408889634
    k3 = k1 * 0.044715
    gs = ["v_mov_b32 %s, %s" % (v(vT0), f32(-k3)), "v_mov_b32 %s, %s" % (v(vT1), f32(-k1)),
          "s_lshl2_add_u32 %s, %s, %s" % (s(sT2), s(sDT), s(sC)),
          "s_mul_i32 %s, %s, %d" % (s(sT0), s(sFT), 2 * KSTEP_B),
          "s_lshl_b32 %s, %s, 10" % (s(sT1), s(sT2)),
          "s_add_u32 %s, %s, %s" % (s(sT0), s(sT0), s(sT1)),
          "s_add_u32 %s, %s, %d" % (s(sT0), s(sT0), G_OFF),
          "s_add_u32 %s, %s, %d" % (s(sT1), s(sT0), KSTEP_B),
          "s_mul_i32 %s, %s, 24" % (s(sT2), s(sT2)),
          "s_add_u32 %s, %s, %s" % (s(sT2), s(sT2), s(sFT)),
          "s_lshl_b32 %s, %s, %d" % (s(sT2), s(sT2), lg(FS2)),
          "s_add_u32 %s, %s, %d" % (s(sT2), s(sT2), FL2),
          "v_mov_b32 %s, %s" % (v(vFA), v(vL16))]
    if PF:
        gs += ["s_mov_b32 %s, 0" % s(sZ), "s_buffer_atomic_or %s, %s, %s" % (s(sZ), s(SWS, 4), s(sT2))]
    for n, x in enumerate(gs):
        add_extra(extra, 23 + n // 2, [x])

    def xread(dst, j):
        return ["ds_read_b128 %s, %s offset:%d" % (v(dst + o * 4, 4), v(vXR + j - 1), (4 - j) * 4096 + o * 1024) for o in range(4)]

    def exchange(extra, own, first_own, nb):
        add_extra(extra, nb, ["s_waitcnt lgkmcnt(0)\ns_barrier"])
        add_extra(extra, nb + 1, xread(own, 3))
        add_extra(extra, nb + 2, xread(RB, 2))
        adds = ["v_add_f32 %s, %s, %s" % (v(own + e), v(own + e), v(RB + e)) for e in range(16)]
        return adds

    adds = exchange(extra, ACC + 48, 48, 39)
    adds[0] = "s_waitcnt lgkmcnt(0)\n" + adds[0]
    for e in range(16):
        add_extra(extra, 43 + e // 4, [adds[e]])
    add_extra(extra, 64 - BL, ["s_waitcnt lgkmcnt(0)\ns_barrier"])
    for o, x in enumerate(xread(PS, 1)):
        add_extra(extra, 65 - BL + o // 2, [x])
    assert C1M == 0 and C2M == 0
    setup2 = ["s_mul_i32 %s, %s, -3072" % (s(sU0), s(sDT2)),
                                "s_add_u32 %s, %s, 32768" % (s(sU0), s(sU0)),
                                "v_add_u32 %s, %s, %s" % (v(VA + 4), s(sU0), v(vL16)),
                                "v_min_u32 %s, 29, v0" % v(vS0),
                                "v_mul_u32_u24 %s, 43, %s" % (v(vS1), v(vS0)),
                                "v_lshrrev_b32 %s, 8, %s" % (v(vS1), v(vS1)),
                                "v_lshrrev_b32 %s, 2, %s" % (v(vPA), v(vS1)),
                                "v_mul_u32_u24 %s, 18, %s" % (v(vS1), v(vS1)),
                                "v_add_u32 %s, %s, %s" % (v(vS0), v(vS0), v(vS1)),
                                "s_mul_i32 %s, %s, -72" % (s(sU0), s(sDT2)),
                                "s_add_u32 %s, %s, %d" % (s(sU0), s(sU0), 28 * 24),
                                "v_mad_u32_u24 %s, %s, %s, %s" % (v(vS0), v(vPA), s(sU0), v(vS0)),
                                "s_mul_i32 %s, %s, 96" % (s(sU0), s(sDT2)),
                                "s_mul_i32 %s, %s, 6" % (s(sU1), s(sWAVE)),
                                "s_add_u32 %s, %s, %s" % (s(sU0), s(sU0), s(sU1)),
                                "s_lshl_b32 %s, %s, %d" % (s(sU0), s(sU0), lg(FS2)),
                                "s_add_u32 %s, %s, %d" % (s(sU0), s(sU0), FL2),
                                "v_lshl_add_u32 %s, %s, %d, %s" % (v(vPA), v(vS0), lg(FS2), s(sU0)),
                                "s_mul_i32 %s, %s, %d" % (s(sU0), s(sWAVE), 12 * KSTEP_B),
                                "s_lshl_b32 %s, %s, 12" % (s(sU1), s(sDT2)),
                                "s_add_u32 %s, %s, %s" % (s(sU0), s(sU0), s(sU1)),
                                "s_add_u32 %s, %s, %d" % (s(sU0), s(sU0), G_OFF)]
    table2 = table(12, sROT2)
    bias2 = ["v_lshlrev_b32 %s, 16, %s" % (v(ACC + 16 + e), v(VB2 + e // 4)) for e in range(16)]
    bias2 += ["v_mul_f32 %s, 0x3e800000, %s" % (v(ACC + e), v(ACC + 16 + e)) for e in range(16)]
    for n, x in enumerate(setup2):
        add_extra(extra, 7 + n // 2 + (4 if n >= 18 else 0), [x])
    first = 48 - DEPTH + 1
    add_extra(extra, first - 1, table2[:1])
    add_extra(extra, first, table2[1:3])
    for i in range(1, 12):
        add_extra(extra, first + i, [table2[2 + i]])
    for n, x in enumerate(bias2):
        add_extra(extra, 47 + n // 4 + (2 if n >= 12 else 0), [x])
    add_extra(extra, 47, ["s_or_b32 %s, s2, %s\ns_cbranch_scc1 L_noepoch\ns_mov_b32 %s, %d\ns_buffer_atomic_swap %s, %s, %s\nL_noepoch:" % (
        s(sZ), s(sWAVE), s(sZ), EPOCH, s(sTAG), s(SWS, 4), s(sZ))])
    assert T0 <= DEPTH
    units(1, 16, 4, va1, w2[4 * EW:4 * EW + T0], extra, (0, 3))
    st(A, "g1")
    U = ACC + 48
    T = RB
    A("s_waitcnt lgkmcnt(0)")
    A("s_nop 3")
    for h in range(2):
        r2 = range(8 * h, 8 * h + 8, 2)
        r1 = range(8 * h, 8 * h + 8)
        gl = []
        gl += ["v_pk_add_f32 %s, %s, %s" % (v(U + e, 2), v(U + e, 2), v(PS + e, 2)) for e in r2]
        gl += ["v_pk_mul_f32 %s, %s, %s" % (v(T + e, 2), v(U + e, 2), v(U + e, 2)) for e in r2]
        gl += ["v_pk_fma_f32 %s, %s, %s, %s op_sel:[0,0,1] op_sel_hi:[1,0,1]" % (v(T + e, 2), v(T + e, 2), v(vT0, 2), v(vT0, 2)) for e in r2]
        gl += ["v_pk_mul_f32 %s, %s, %s" % (v(T + e, 2), v(T + e, 2), v(U + e, 2)) for e in r2]
        gl += ["v_exp_f32 %s, %s" % (v(T + e), v(T + e)) for e in r1]
        gl += ["v_pk_add_f32 %s, %s, 1.0 op_sel_hi:[1,0]" % (v(T + e, 2), v(T + e, 2)) for e in r2]
        gl += ["v_rcp_f32 %s, %s" % (v(T + e), v(T + e)) for e in r1]
        gl += ["v_pk_mul_f32 %s, %s, %s" % (v(U + e, 2), v(U + e, 2), v(T + e, 2)) for e in r2]
        gl += ["v_cvt_pk_bf16_f32 %s, %s, %s" % (v(T + 16 + e // 2), v(U + e), v(U + e + 1)) for e in r2]
        ins = w2[4 * EW + T0 + h * MG0:4 * EW + T0 + MG0 + h * MG]
        for n, x in enumerate(gl):
            if ins and n % max(1, 36 // (MG if h else MG0)) == 0:
                A(vm.op(*ins.pop(0)))
            A(x)
        assert not ins
        A(vm.op("buffer_store_dwordx4 %s, %s, %s, %s offen sc1" % (v(T + 16 + 4 * h, 4), v(vFA), s(SWS, 4), s(sT0 + h)), "gst"))
    st(A, "gst")
    A("L_join:")

    def flag2():
        A("s_cmp_eq_u32 %s, 0" % s(sMAIN))
        A("s_cbranch_scc1 L_noflag")
        A(flag_store(FS2, s(sT2)) if SA else vm.op(flag_store(FS2, s(sT2)), "fl2", True))
        A("L_noflag:")
        st(A, "fl2")

    va2 = lambda blk: VA + 4 - blk
    w_stream(2, 12, w2, 4 * EW + T0 + MG0 + MG, DW2A, DW2B, DW2, PE2, [act_load(2, n, 12, va2) for n in range(DEPTH)], [], "gst", flag2, [], [])
    st(A, "w2")
    extra = {}
    OP, OB = 144, 16384
    vOW, vOR, vOS = VW1, VW1 + 1, VW1 + 2
    oa = ["v_and_b32 %s, 15, v0" % v(vT0),
          "v_lshrrev_b32 %s, 4, v0" % v(vT1),
          "v_mul_u32_u24 %s, 1280, %s" % (v(vFA), v(vT0)),
          "v_lshl_add_u32 %s, %s, 3, %s" % (v(vFA), v(vT1), v(vFA)),
          "v_mul_u32_u24 %s, %d, %s" % (v(vOW), OP, v(vT0)),
          "v_lshl_add_u32 %s, %s, 3, %s" % (v(vOW), v(vT1), v(vOW)),
          "s_lshl_b32 %s, %s, 5" % (s(sT1), s(sC)),
          "v_add_u32 %s, %s, %s" % (v(vOW), s(sT1), v(vOW)),
          "v_lshrrev_b32 %s, 3, v0" % v(vT0),
          "v_and_b32 %s, 7, v0" % v(vT1),
          "v_mul_u32_u24 %s, %d, %s" % (v(vOR), OP, v(vT0)),
          "v_lshl_add_u32 %s, %s, 4, %s" % (v(vOR), v(vT1), v(vOR)),
          "s_mul_i32 %s, %s, %d" % (s(sT1), s(sWAVE), 16 * OP),
          "v_add_u32 %s, %s, %s" % (v(vOR), s(sT1), v(vOR)),
          "v_mul_u32_u24 %s, 1280, %s" % (v(vOS), v(vT0)),
          "v_lshl_add_u32 %s, %s, 4, %s" % (v(vOS), v(vT1), v(vOS)),
          "s_lshl2_add_u32 %s, %s, %s" % (s(sT0), s(sST), s(sWAVE)),
          "s_mul_i32 %s, %s, %d" % (s(sT0), s(sT0), 16 * 1280),
          "s_lshl_b32 %s, %s, 5" % (s(sT1), s(sDT2)),
          "s_add_u32 %s, %s, %s" % (s(sU2), s(sT0), s(sT1)),
          "s_lshl2_add_u32 %s, %s, %s" % (s(sT0), s(sT1), s(sT0)),
          "s_add_u32 %s, %s, %d" % (s(sT1), s(sT0), 8 * 1280)]
    for n, x in enumerate(oa):
        add_extra(extra, 1 + n // 2, [x])
    for blk in range(4):
        w = xwrites(blk, blk)
        for o in range(4):
            add_extra(extra, 12 * (blk + 1) + 2 + (o // 2 if blk >= 2 else o), [w[o]])
    adds = exchange(extra, ACC + 64, 48, 41)
    adds[0] = "s_waitcnt lgkmcnt(4)\n" + adds[0]
    Y = RB + 16
    add_extra(extra, 44, ["ds_read_b128 %s, %s offset:%d" % (v(Y + sw * 4, 4), v(vX4B if sw & 2 else vX4), (sw & 1) * REG) for sw in range(4)])
    for e in range(16):
        add_extra(extra, 45 + e // 6, [adds[e]])
    add_extra(extra, 47, ["s_nop 0"])
    add_extra(extra, 60 - BL, ["s_waitcnt lgkmcnt(0)\ns_barrier"])
    for o, x in enumerate(xread(PS, 1)):
        add_extra(extra, 61 - BL + o // 2, [x])
    l = ["v_add_f32 %s, %s, %s" % (v(Y + e), v(Y + e), v(Y + 4 + e)) for e in (0, 1, 2, 3, 8, 9, 10, 11)]
    l[0] = "s_waitcnt lgkmcnt(0)\n" + l[0]
    add_extra(extra, 48, l[:4])
    add_extra(extra, 49, l[4:])
    add_extra(extra, 52, ["v_add_f32 %s, %s, %s" % (v(Y + e), v(Y + e), v(Y + 8 + e)) for e in range(4)])
    add_extra(extra, 53, ["v_cvt_pk_bf16_f32 %s, %s, %s" % (v(Y), v(Y), v(Y + 1)),
                          "v_cvt_pk_bf16_f32 %s, %s, %s" % (v(Y + 1), v(Y + 2), v(Y + 3))])
    tile4 = ("buffer_store_dwordx2 %s, %s, %s, %s offen offset:1024 sc1" % (v(Y, 2), v(vFA), s(SOUT, 4), s(sU2)), "o4")
    add_extra(extra, 54, [tile4])
    units(2, 12, 5, va2, [], extra, (0, 1, 4))
    st(A, "g2")
    U = ACC + 64
    A("s_waitcnt lgkmcnt(0)")
    A("s_nop 3")
    for q in range(4):
        A("v_pk_add_f32 %s, %s, %s" % (v(U + 4 * q, 2), v(U + 4 * q, 2), v(PS + 4 * q, 2)))
        A("v_pk_add_f32 %s, %s, %s" % (v(U + 4 * q + 2, 2), v(U + 4 * q + 2, 2), v(PS + 4 * q + 2, 2)))
        A("v_cvt_pk_bf16_f32 %s, %s, %s" % (v(RB + 2 * q), v(U + 4 * q), v(U + 4 * q + 1)))
        A("v_cvt_pk_bf16_f32 %s, %s, %s" % (v(RB + 2 * q + 1), v(U + 4 * q + 2), v(U + 4 * q + 3)))
        A("ds_write_b64 %s, %s offset:%d" % (v(vOW), v(RB + 2 * q, 2), OB + 16 * OP * q))
    A("s_waitcnt lgkmcnt(0)")
    A("s_barrier")
    for j in range(2):
        A("ds_read_b128 %s, %s offset:%d" % (v(RB + 8 + 4 * j, 4), v(vOR), OB + 8 * OP * j))
    for j in range(2):
        A("s_waitcnt lgkmcnt(%d)" % (1 - j))
        A("buffer_store_dwordx4 %s, %s, %s, %s offen sc1" % (v(RB + 8 + 4 * j, 4), v(vOS), s(SOUT, 4), s(sT0 + j)))
    if E("XD", 0):
        A("s_getreg_b32 s66, hwreg(HW_REG_XCC_ID)")
        A("s_and_b32 s66, s66, 15")
        A("s_and_b32 s64, s64, 0xffff")
        A("s_mul_i32 s64, s64, 100")
        A("s_add_u32 s66, s66, s64")
        A("s_and_b32 s69, s69, 0xffff")
        A("s_mov_b32 s70, 64")
        A("s_mov_b32 s71, 0x20000")
        A("s_lshl_b32 s67, s2, 2")
        A("v_mov_b32 v1, 0")
        A("v_mov_b32 v2, s66")
        A("buffer_store_dword v2, v1, s[68:71], s67 offen")
    st(A, "ost")
    stamp_flush(A, 0, s(sWAVE), 14, "L_st", wave=-1)
    A("L_done:")
    A("s_endpgm")
    A("L_helper:")
    A("s_waitcnt vmcnt(0)")
    A(flag_store(FS1, "0"))
    A("s_barrier")
    L(bias_perm)
    L(w2_off)
    L(setup2 + table2)
    A("s_waitcnt lgkmcnt(0)")
    L(bias2)
    if HP:
        assert XA2 == 1
        A("v_and_b32 %s, 3, v0" % v(vT0))
        A("v_lshlrev_b32 %s, 7, %s" % (v(vT0), v(vT0)))
        A("v_lshrrev_b32 %s, 2, v0" % v(vT1))
        A("v_lshl_add_u32 %s, %s, 12, %s" % (v(vT0), v(vT1), v(vT0)))
        A("s_and_b32 %s, s2, 7" % s(sU0))
        A("s_lshl_b32 %s, %s, 9" % (s(sU0), s(sU0)))
        A("s_mul_i32 %s, %s, %d" % (s(sU1), s(sWAVE), 12 * 32 * 4096))
        A("s_add_u32 %s, %s, %s" % (s(sU0), s(sU0), s(sU1)))
        A("s_bfe_u32 %s, s2, 0x10003" % s(sU1))
        A("s_lshl_b32 %s, %s, 16" % (s(sU1), s(sU1)))
        A("s_add_u32 %s, %s, %s" % (s(sU0), s(sU0), s(sU1)))
        order = [int(x) for x in os.environ.get("HPO", "0,1,2,3,4,5,6,7,8,9,10,11").split(",")]
        for n in order[:HP]:
            A("s_add_u32 %s, %s, %d" % (s(sU1), s(sU0), n * 32 * 4096))
            A("buffer_load_dword %s, %s, %s, %s offen" % (v(vPOLL), v(vT0), s(SW2, 4), s(sU1)))
    L([t for t, _ in w2[:4 * EW + T0 + MG0 + MG]])
    A("v_mov_b32 %s, %d" % (v(vEA), EPOCH))
    A("v_not_b32 %s, %s" % (v(vPOLL), v(vTAG)))
    if E("HW", 1):
        also = ""
        if E("HC", 1):
            A("s_getpc_b64 s[24:25]")
            A("L_pc2:")
            A("s_sub_u32 s24, s24, L_pc2 - L_p1_ok")
            A("s_subb_u32 s25, s25, 0")
            A("v_lshlrev_b32 %s, 7, v0" % v(vS0))
            A("v_lshl_add_u32 %s, %s, 13, %s" % (v(vS0), v(vWV), v(vS0)))
            A("v_min_u32 %s, L_helper - L_p1_ok - 4, %s" % (v(vS0), v(vS0)))
            also = "global_load_dword %s, %s, s[24:25] sc1" % (v(vS1), v(vS0))
        poll_check("L_ph", vEA, also)
    A("s_waitcnt vmcnt(0) lgkmcnt(0)")
    A("s_branch L_join")
    A("L_end:")
    kernel_desc(A, NAME, 512, 256, 102)
    hdr = HEADER + "; @launch grid=(256,1,1) block=(256,1,1) lds=163840\n"
    txt = A.text()
    dbg = os.environ.get("DBG", "")
    if dbg:
        out = []
        for ln_ in txt.split("\n"):
            if "nohst" in dbg and "buffer_store_dwordx4" in ln_ and "v53" in ln_:
                ln_ = ln_.replace("buffer_store_dwordx4", "buffer_load_dwordx4").replace("v53", "v47").replace("s96", "0").replace("s97", "0").replace("s98", "0")
            if "plainh" in dbg and "buffer_store_dwordx4" in ln_ and "v53" in ln_:
                ln_ = ln_.replace(" sc1", "")
            if "nofl" in dbg and "buffer_store_dwordx4 v[20:23]" in ln_:
                ln_ = "    buffer_load_dword v154, v47, s[16:19], 0 offen"
            if "nobias" in dbg and ("s[24:27]" in ln_ or "s[28:31]" in ln_) and "buffer" in ln_:
                ln_ = "    buffer_load_dword v154, v47, s[16:19], 0 offen"
            if "nopoll" in dbg and "s_cbranch_vccz" in ln_:
                ln_ = ln_.replace("s_cbranch_vccz", "s_branch")
            if "nopoll" in dbg and "buffer_load_dword v18" in ln_:
                ln_ = "    buffer_load_dword v154, v47, s[16:19], 0 offen"
            if "w2hot" in dbg and "s[12:15]" in ln_ and " lds" in ln_:
                ln_ = ln_.replace(" lds", " sc1 lds").replace("s55", "s99")
            if "w1hot" in dbg and "s[8:11]" in ln_ and " lds" in ln_:
                ln_ = ln_.replace(" lds", " sc1 lds").replace("s55", "s99")
            if "acthot" in dbg and "buffer_load_dwordx4 v[" in ln_ and "s[16:19]" in ln_:
                import re
                ln_ = re.sub(r"s\[16:19\], s\d+", "s[16:19], s32", ln_)
            if "s[20:23]" in ln_ and "buffer_store" in ln_:
                if "noout" in dbg:
                    ln_ = "    s_nop 0" if "offset:1024" not in ln_ else ln_
                for f_ in ("sc1", "nt", "sc0"):
                    if "o" + f_ in dbg.split(",") and ("x4" in ln_ or "oall" in dbg):
                        ln_ += " " + f_
            if "buffer_load_dwordx4 v[" in ln_ and "s[16:19]" in ln_:
                if "aplain" in dbg:
                    ln_ = ln_.replace(" sc1", "")
                if "ant" in dbg:
                    ln_ += " nt"
                if "asc0" in dbg:
                    ln_ = ln_.replace(" sc1", " sc0 sc1")
            if " lds" in ln_ and "wsc1" in dbg:
                ln_ = ln_.replace(" lds", " sc1 lds")
            if "buffer_store_dwordx4" in ln_ and "s[16:19]" in ln_:
                if "ssc0" in dbg:
                    ln_ = ln_.replace(" sc1", " sc0 sc1")
                if "snt" in dbg:
                    ln_ += " nt"
            if "cyc" in dbg:
                ln_ = ln_.replace("s_memrealtime", "s_memtime")
            if "nomfma" in dbg and "v_mfma" in ln_:
                continue
            out.append(ln_)
        txt = "\n".join(out)
    return hdr + txt


if __name__ == "__main__":
    open(sys.argv[1], "w").write(gen())
```

```python
import sys, os
from asmlib import *

E = lambda k, d: int(os.environ.get(k, d))
STAMPS_ON = bool(E("STAMPS", 0))
set_stamps(STAMPS_ON)
_STL = os.environ.get("STL", "setup,x,hst,fl1,poll1,w1,g1,gst,fl2,poll2,w2,g2,ost").split(",")


def st(A, name):
    if name in _STL:
        stamp(A, 1 + _STL.index(name))


NAME = "standalone__mixer_token_mlp__prompt_kernel"
S, D, F = 2048, 640, 1536
KSTEP_B = 40960
G_OFF = 0x280000
FL1 = 0x480000
FL2 = 0x490000
EPOCH = 0x4A0000
WS_SIZE = 0x4B0000
LNP = 1344
REG = 40960
SLOT = {1: [1 + i % 9 for i in range(16)], 2: [4, 5, 6, 7, 8, 9, 0, 1, 2, 4, 5, 6]}

DEPTH = E("DEPTH", 9)
N0 = E("N0", 8)
N0A = min(N0, E("N0A", 6))
NL = E("NL", 0)
DW1A = E("DW1A", 12)
DW1B = E("DW1B", 20)
DW2B = E("DW2B", 20)
DW1 = E("DW1", 10)
T0 = E("T0", 4)
DW2A = E("DW2A", 7)
DW2 = E("DW2", 10)
PE1 = E("PE1", 10)
PE2 = E("PE2", 7)
ROT1 = E("ROT1", 3)
ROT1X = E("ROT1X", 0)
ROT1T = os.environ.get("ROT1T", "")
C1M = E("C1M", 0)
ROT2 = E("ROT2", 3)
ROT2X = E("ROT2X", 0)
C2M = E("C2M", 0)
FS1 = E("FS1", 8)
FS2 = E("FS2", 64)
CP = E("CP", 2)
HP = E("HP", 4)
XA1 = E("XA1", 1)
XA2 = E("XA2", 1)
RM1, RS1 = E("RM1", 13), E("RS1", 3)
RP1 = E("RP1", 0)
RM2, RS2, RP2 = E("RM2", 3), E("RS2", 1), E("RP2", 0)
PRE = E("PRE", 100)
NF = E("NF", 14)
BL = E("BL", 6)
SA = E("SA", 1)
MG = E("MG", 0)
MG0 = E("MG0", 0)
PF = E("PF", 1)
SL = E("SL", 0)
EW = E("EW", 0)
EP = E("EP", 2)
NTX = " nt" if E("NTX", 0) else ""
NTW = E("NTW", 0)
if EW:
    SLOT = {1: [1 + i % 7 for i in range(16)], 2: [8, 9, 4, 5, 6, 7, 0, 1, 2, 8, 9, 4]}
FM, SM = E("FM", 3), E("SM", 0)
SPIN = 1 << 17
lg = lambda x: x.bit_length() - 1

SX, SW1, SW2, SWS, SOUT, SB1, SB2 = 4, 8, 12, 16, 20, 24, 28
ST = 32
sWAVE, sDT, sFT, sDT2, sST, sC, sRING, sWOFF = 48, 49, 50, 51, 52, 53, 54, 55
sT0, sT1, sT2, sWBASE, sWEND, sROT, sMAIN = 96, 97, 98, 99, 100, 101, 3
sTAG, sF1, sZ, sEP = 7, 62, 63, 0
sW2OFF, sW2BASE, sW2END, sROT2 = 58, 59, 60, 61
sU0, sU1, sU2 = 4, 5, 6
VW1, VW2, VT, VA = 1, 5, 9, 13
vTAG = 20
vPOLL, vPA, vFA, vXW, vXR, vX4 = 18, 19, 24, 25, 26, 29
vT0, vT1 = 30, 31
VB1 = 32
VB2 = 40
vX4B = 45
vS0, vS1, vEA = 157, 158, 159
vWV, vL16 = 46, 47
AB = 48
RB = 96
PS = 160
ACC = 176
vR8, vINR, vG, vI16, vB1R, vB2R = 150, 151, 152, 153, 155, 156


class VM:
    def __init__(self, A):
        self.A = A
        self.ops = []
        self.done = 0
        self.actions = []

    def op(self, text, tag, optional=False):
        self.ops.append((tag, optional))
        return text

    def last(self, tag):
        return max(i for i, (t, _) in enumerate(self.ops) if t == tag)

    def count(self, tag):
        n = sum(1 for (t, o) in self.ops[self.last(tag) + 1:] if not o)
        assert n <= 63
        return n

    def waitbig(self, n, only=None):
        k, c, m = len(self.ops), 0, 0
        small = lambda t: t in ("b", "fl1", "fl2", "ep", "poll1", "poll2")
        while k > 0 and (self.ops[k - 1][1] or small(self.ops[k - 1][0]) or c < n):
            if not self.ops[k - 1][1]:
                m += 1
                if not small(self.ops[k - 1][0]):
                    c += 1
            k -= 1
        self.waitn(m, only)

    def waitn(self, n, only=None):
        k, c = len(self.ops), 0
        while k > 0 and (self.ops[k - 1][1] or c < n):
            if not self.ops[k - 1][1]:
                c += 1
            k -= 1
        if k > self.done:
            self.A("s_waitcnt vmcnt(%d)" % n)
            self.done = k
        self.fire(only)

    def wait(self, tag):
        self.waitn(self.count(tag))

    def on(self, tag, fn):
        self.actions.append((tag, fn))

    def fire(self, only=None, limit=99):
        again = True
        while again and limit > 0:
            again = False
            limit -= 1
            for j, (tag, fn) in enumerate(self.actions):
                if only not in (None, tag):
                    continue
                if any(t == tag for t, _ in self.ops) and self.last(tag) < self.done:
                    self.actions.pop(j)
                    fn()
                    again = True
                    break


def srd(dst, src, bytes_):
    return ["s_mov_b32 %s, %s" % (s(dst), s(src)), "s_and_b32 %s, %s, 0xffff" % (s(dst + 1), s(src + 1)),
            "s_mov_b32 %s, %d" % (s(dst + 2), bytes_), "s_mov_b32 %s, 0x20000" % s(dst + 3)]


def reduce32(x, t):
    o = []
    for mod in ("quad_perm:[1,0,3,2]", "quad_perm:[2,3,0,1]", "row_half_mirror", "row_mirror"):
        o.append("s_nop 1\nv_add_f32_dpp %s, %s, %s %s row_mask:0xf bank_mask:0xf" % (v(x), v(x), v(x), mod))
    o.append("v_mov_b32 %s, %s\ns_nop 1\nv_permlane16_swap_b32 %s, %s\ns_nop 1\nv_add_f32 %s, %s, %s" % (v(t), v(x), v(t), v(x), v(x), v(x), v(t)))
    return o


def gen():
    A = Asm()
    vm = VM(A)

    def L(lst):
        for x in lst:
            A(x)

    A('.amdgcn_target "amdgcn-amd-amdhsa--gfx950"')
    kernel_begin(A, NAME)
    A("s_cmp_ge_u32 s2, 256")
    A("s_cbranch_scc1 L_done")
    A("s_load_dwordx16 s[32:47], s[0:1], 0")
    if E("XD", 0):
        A("s_memrealtime s[64:65]")
        A("s_load_dwordx2 s[68:69], s[0:1], 48")
    stamp_init(A)
    if CP:
        A("s_cmp_ge_u32 s2, %d" % (8 * CP))
        A("s_cbranch_scc1 L_nocp")
        A("s_getpc_b64 s[4:5]")
        A("L_pc:")
        A("v_lshlrev_b32 v1, 7, v0")
        A("v_min_u32 v1, L_end - L_pc - 4, v1")
        A(vm.op("global_load_dword v154, v1, s[4:5]", "cp", True))
        A("L_nocp:")
    A("v_lshrrev_b32 %s, 6, v0" % v(vWV))
    A("v_lshrrev_b32 v48, 5, v0")
    A("v_readfirstlane_b32 %s, %s" % (s(sWAVE), v(vWV)))
    A("v_and_b32 v49, 31, v0")
    A("v_and_b32 v0, 63, v0")
    A("s_lshr_b32 %s, s2, 2" % s(sT0))
    A("s_and_b32 %s, s2, 3" % s(sT1))
    A("s_lshl_b32 %s, %s, 5" % (s(sT2), s(sT0)))
    A("s_lshl2_add_u32 %s, %s, %s" % (s(sT2), s(sT1), s(sT2)))
    A("v_and_b32 v50, 3, v48")
    A("v_lshrrev_b32 v51, 2, v48")
    A("v_lshl_add_u32 v50, v51, 4, v50")
    A("v_add_u32 v50, %s, v50" % s(sT2))
    A("v_mul_u32_u24 v50, 1280, v50")
    A("v_lshl_add_u32 v51, v49, 3, v50")
    A("v_lshl_add_u32 v50, v49, 4, v50")
    A("s_lshr_b32 %s, s2, 3" % s(sT0))
    A("s_cmp_lt_u32 %s, 30" % s(sT0))
    A("s_cselect_b32 %s, 1, 0" % s(sMAIN))
    A("s_min_u32 %s, %s, 29" % (s(sT1), s(sT0)))
    if XA1 == 2:
        A("s_mul_i32 %s, %s, 52" % (s(sFT), s(sT1)))
        A("s_lshr_b32 %s, %s, 8" % (s(sFT), s(sFT)))
        A("s_mul_i32 %s, %s, 5" % (s(sT2), s(sFT)))
        A("s_sub_u32 %s, %s, %s" % (s(sDT), s(sT1), s(sT2)))
        if ROT1T:
            tb = sum(int(x) << (4 * i) for i, x in enumerate(ROT1T.split(",")))
            A("s_lshl_b32 %s, %s, 2" % (s(sT2), s(sDT)))
            A("s_lshr_b32 %s, %d, %s" % (s(sROT), tb, s(sT2)))
        else:
            A("s_mul_i32 %s, %s, %d" % (s(sROT), s(sDT), ROT1))
        A("s_and_b32 %s, s2, 1" % s(sT1))
        if ROT1X:
            A("s_mul_i32 %s, %s, %d" % (s(sT2), s(sT1), ROT1X))
            A("s_add_u32 %s, %s, %s" % (s(sROT), s(sROT), s(sT2)))
        A("s_and_b32 %s, %s, 15" % (s(sROT), s(sROT)))
        A("s_mul_i32 %s, %s, 5" % (s(sT2), s(sT1)))
        A("s_add_u32 %s, %s, %s" % (s(sDT), s(sDT), s(sT2)))
        A("s_bfe_u32 %s, s2, 0x20001" % s(sT1))
        A("s_mul_i32 %s, %s, 6" % (s(sT2), s(sT1)))
        A("s_add_u32 %s, %s, %s" % (s(sFT), s(sFT), s(sT2)))
    else:
        A("s_mul_i32 %s, %s, 26" % (s(sFT), s(sT1)))
        A("s_lshr_b32 %s, %s, 8" % (s(sFT), s(sFT)))
        A("s_mul_i32 %s, %s, 10" % (s(sT2), s(sFT)))
        A("s_sub_u32 %s, %s, %s" % (s(sDT), s(sT1), s(sT2)))
        A("s_lshr_b32 %s, %s, %d" % (s(sROT), s(sDT), RP1))
        A("s_mul_i32 %s, %s, %d" % (s(sROT), s(sROT), RM1))
        A("s_lshr_b32 %s, %s, %d" % (s(sROT), s(sROT), RS1))
        A("s_and_b32 %s, %s, 15" % (s(sROT), s(sROT)))
        A("s_and_b32 %s, s2, 7" % s(sT1))
        if FM == 0:
            A("s_mul_i32 %s, %s, 3" % (s(sT2), s(sT1)))
            A("s_add_u32 %s, %s, %s" % (s(sFT), s(sFT), s(sT2)))
        else:
            A("s_xor_b32 %s, %s, %d" % (s(sT1), s(sT1), FM - 1))
            A("s_lshl3_add_u32 %s, %s, %s" % (s(sFT), s(sFT), s(sT1)))
    p1 = 3072
    A("s_mul_i32 %s, %s, %d" % (s(sWBASE), s(sWAVE), 16 * 32 * p1))
    A("s_lshl_b32 %s, %s, 7" % (s(sT2), s(sFT)))
    A("s_add_u32 %s, %s, %s" % (s(sWBASE), s(sWBASE), s(sT2)))
    A("s_add_u32 %s, %s, %d" % (s(sWEND), s(sWBASE), 16 * 32 * p1))
    A("s_mul_i32 %s, %s, %d" % (s(sWOFF), s(sROT), 32 * p1))
    A("s_add_u32 %s, %s, %s" % (s(sWOFF), s(sWOFF), s(sWBASE)))
    A("s_mul_i32 %s, %s, %d" % (s(sRING), s(sWAVE), REG))
    A("v_lshrrev_b32 %s, 3, v0" % v(vR8))
    A("v_bfe_u32 v54, v0, 1, 2")
    A("v_lshrrev_b32 %s, 4, v0" % v(vG))
    A("v_xor_b32 v54, v54, %s" % v(vG))
    A("v_lshlrev_b32 v54, 5, v54")
    A("v_and_b32 v56, 1, v0")
    A("v_lshl_add_u32 %s, v56, 4, v54" % v(vINR))
    A("v_mul_u32_u24 %s, %d, %s" % (v(VW1), p1, v(vR8)))
    A("v_add_u32 %s, %s, %s" % (v(VW1), v(VW1), v(vINR)))
    for q in range(1, 4):
        A("v_add_u32 %s, %d, %s" % (v(VW1 + q), q * (8 * p1 - 1024), v(VW1)))

    A("s_lshr_b32 %s, s2, 3" % s(sT0))
    A("s_and_b32 %s, %s, 7" % (s(sDT2), s(sT0)))
    A("s_lshr_b32 %s, %s, 3" % (s(sST), s(sT0)))
    A("s_and_b32 %s, s2, 7" % s(sT0))
    if SM == 0:
        A("s_lshl2_add_u32 %s, %s, %s" % (s(sST), s(sT0), s(sST)))
    elif SM == 1:
        A("s_xor_b32 %s, %s, %d" % (s(sT0), s(sT0), E("SX", 0)))
        A("s_lshl3_add_u32 %s, %s, %s" % (s(sST), s(sST), s(sT0)))
    else:
        A("s_and_b32 %s, %s, 1" % (s(sT1), s(sST)))
        A("s_lshr_b32 %s, %s, 1" % (s(sST), s(sST)))
        A("s_lshl3_add_u32 %s, %s, %s" % (s(sST), s(sST), s(sT0)))
        A("s_lshl1_add_u32 %s, %s, %s" % (s(sST), s(sST), s(sT1)))
    A("v_lshlrev_b32 %s, 2, v0" % v(vT0))
    A("v_lshlrev_b32 %s, 1, v0" % v(vT1))
    A("s_lshl_b32 %s, %s, 7" % (s(sT0), s(sFT)))
    A("s_lshl_b32 %s, %s, 7" % (s(sT1), s(sST)))
    A("s_mov_b32 %s, %d" % (s(sZ), EPOCH))
    srds = [(SX, 32, S * D * 2), (SB1, 36, F * 2), (SB2, 40, S * 2), (SW1, 34, S * F * 2), (SWS, 46, WS_SIZE), (SW2, 38, S * F * 2), (SOUT, 42, S * D * 2)]
    for d_, _, n_ in srds:
        L(srd(d_, 0, n_)[2:])
    st(A, "pre")
    A("s_waitcnt lgkmcnt(0)")
    st(A, "ka")
    L(srd(*srds[0])[:2])
    A(vm.op("buffer_load_dwordx4 v[60:63], v50, %s, 0 offen%s" % (s(SX, 4), NTX), "x"))
    A(vm.op("buffer_load_dwordx4 v[64:67], v50, %s, 0 offen offset:512%s" % (s(SX, 4), NTX), "x"))
    A(vm.op("buffer_load_dwordx2 v[68:69], v51, %s, 0 offen offset:1024%s" % (s(SX, 4), NTX), "x"))
    L(srd(*srds[1])[:2] + srd(*srds[2])[:2])
    bias_ops = [("buffer_load_dword %s, %s, %s, %s offen" % (v(vB1R), v(vT0), s(SB1, 4), s(sT0)), "b"),
                ("buffer_load_ushort %s, %s, %s, %s offen" % (v(vB2R), v(vT1), s(SB2, 4), s(sT1)), "b")]
    for x in bias_ops:
        A(vm.op(*x))
    L(srd(*srds[3])[:2] + srd(*srds[4])[:2])
    A("s_buffer_load_dword %s, %s, %s" % (s(sEP), s(SWS, 4), s(sZ)))
    st(A, "xi")

    def wdma(which, i):
        pitch = 3072 if which == 1 else 4096
        vw = VW1 if which == 1 else VW2
        sr = SW1 if which == 1 else SW2
        sWOFF, sWBASE, sWEND = (55, 99, 100) if which == 1 else (sW2OFF, sW2BASE, sW2END)
        nt = " nt" if which == 1 and i >= 16 - NTW else ""
        out = []
        for q in range(4):
            pre = "s_add_u32 m0, %s, %d\ns_nop 0\n" % (s(sRING), SLOT[which][i] * 4096) if q == 0 else ""
            post = ""
            if q == 3:
                post = "\ns_add_u32 %s, %s, %d\ns_cmp_eq_u32 %s, %s\ns_cselect_b32 %s, %s, %s" % (
                    s(sWOFF), s(sWOFF), 32 * pitch, s(sWOFF), s(sWEND), s(sWOFF), s(sWBASE), s(sWOFF))
            out.append((pre + "buffer_load_dwordx4 %s, %s, %s offen offset:%d%s lds" % (v(vw + q), s(sr, 4), s(sWOFF), q * 1024, nt) + post,
                        "w%d_%d%s" % (which, i, "" if q == 3 else "_p")))
        return out

    def tr_reads(which, i):
        return ["ds_read_b64_tr_b16 %s, %s offset:%d" % (a(16 * i + b * 4 + 2 * t, 2), v(VT + b), SLOT[which][i] * 4096 + t * 2048)
                for b in range(4) for t in range(2)]

    w1 = [x for i in range(16) for x in wdma(1, i)]
    w2 = [x for i in range(12) for x in wdma(2, i)]
    for x in w1[:N0A]:
        A(vm.op(*x))
    st(A, "wi")
    A("v_and_b32 v56, 1, v48")
    A("v_mul_u32_u24 v56, %d, v56" % LNP)
    A("v_add_u32 v56, %s, v56" % s(sRING))
    A("v_and_b32 v54, 1, %s" % v(vWV))
    A("v_lshl_add_u32 v56, v54, 7, v56")
    A("v_lshl_add_u32 v51, v49, 3, v56")
    A("v_lshl_add_u32 v50, v49, 4, v56")
    A("v_and_b32 %s, 15, v0" % v(vI16))
    A("v_bfe_u32 v54, v0, 3, 1")
    A("v_bfe_u32 v56, v0, 2, 1")
    A("v_mul_u32_u24 v56, %d, v56" % LNP)
    A("v_mul_u32_u24 v54, %d, v54" % (REG + 128))
    A("v_and_b32 v58, 3, v0")
    A("v_add_u32 v56, v56, v54")
    A("v_lshl_add_u32 v56, v58, 3, v56")
    A("v_lshl_add_u32 v56, %s, 5, v56" % v(vG))
    A("v_lshl_add_u32 v52, %s, 7, v56" % v(vWV))
    A("v_add_u32 v55, %d, v52" % (2 * REG))
    A("v_lshlrev_b32 v53, 4, %s" % v(vI16))
    A("v_lshl_add_u32 v53, %s, 10, v53" % v(vG))
    A("v_lshl_add_u32 v53, %s, 12, v53" % v(vWV))
    A("s_lshr_b32 %s, s2, 2" % s(sT0))
    A("s_mul_i32 %s, %s, %d" % (s(sT0), s(sT0), KSTEP_B))
    A("s_and_b32 %s, s2, 3" % s(sT1))
    A("s_lshl_b32 %s, %s, 8" % (s(sT1), s(sT1)))
    A("s_add_u32 %s, %s, %s" % (s(sT0), s(sT0), s(sT1)))
    A("s_add_u32 %s, %s, 16384" % (s(sT1), s(sT0)))
    A("s_add_u32 %s, %s, 32768" % (s(sT2), s(sT0)))
    A("v_lshrrev_b32 v54, 2, v0")
    A("v_bfe_u32 v56, v0, 3, 2")
    A("v_lshlrev_b32 v54, 7, v54")
    A("v_lshl_add_u32 v54, v58, 3, v54")
    A("v_add_u32 v54, %s, v54" % s(sRING))
    for b in range(4):
        A("v_xor_b32 v59, %d, v56" % b)
        A("v_lshl_add_u32 %s, v59, 5, v54" % v(VT + b))
    A("v_lshlrev_b32 %s, 4, v0" % v(vL16))
    A("s_lshl_b32 %s, %s, 8" % (s(sC), s(sWAVE)))
    A("s_add_u32 %s, %s, s2" % (s(sC), s(sC)))
    A("s_lshl_b32 %s, %s, %d" % (s(sC), s(sC), lg(FS1)))
    A("s_add_u32 %s, %s, %d" % (s(sC), s(sC), FL1))
    A("s_mov_b32 %s, %s" % (s(sF1), s(sC)))
    def flag_store(size, soff):
        if SA:
            return "s_buffer_atomic_swap %s, %s, %s" % (s(sTAG), s(SWS, 4), s(sF1) if soff == "0" else soff)
        return "s_mov_b64 exec, %d\nbuffer_store_dwordx4 %s, %s, %s, %s offen sc1\ns_mov_b64 exec, -1" % (
            (1 << (size // 16)) - 1, v(vTAG, 4), v(vFA), s(SWS, 4), soff)

    def table(ns, rot):
        o = ["s_add_u32 %s, %s, %d" % (s(sU1), s(sU0), ns * KSTEP_B),
             "s_mul_i32 %s, %s, %d" % (s(ST), s(rot), KSTEP_B),
             "s_add_u32 %s, %s, %s" % (s(ST), s(ST), s(sU0))]
        for i in range(1, ns):
            o.append("s_add_u32 %s, %s, %d\ns_cmp_eq_u32 %s, %s\ns_cselect_b32 %s, %s, %s" % (
                s(ST + i), s(ST + i - 1), KSTEP_B, s(ST + i), s(sU1), s(ST + i), s(sU0), s(ST + i)))
        return o

    def twist(mask, src):
        if mask == 2:
            o = ["s_and_b32 %s, %s, 1" % (s(sC), s(src)), "s_lshl_b32 %s, %s, 1" % (s(sC), s(sC))]
        else:
            o = ["s_and_b32 %s, %s, %d" % (s(sC), s(src), mask)]
        o.append("s_xor_b32 %s, %s, %s" % (s(sC), s(sC), s(sWAVE)))
        for j in range(4):
            o.append("s_xor_b32 %s, %s, %d\ns_lshl_b32 %s, %s, 10\nv_add_u32 %s, %s, %s" % (
                s(sU0), s(sC), j, s(sU0), s(sU0), v(VA + j), s(sU0), v(vL16)))
        return o

    assert XA2 == 1 and SA and PRE == 100
    common = srd(*srds[5])[:2] + srd(*srds[6])[:2] + ["v_lshl_add_u32 %s, %s, 12, %s" % (v(VW2), v(vR8), v(vINR))]
    common += ["v_add_u32 %s, %d, %s" % (v(VW2 + q), q * (8 * 4096 - 1024), v(VW2)) for q in range(1, 4)]
    common += ["v_add_u32 %s, %s, %s" % (v(vXW), s(sRING), v(vL16))]
    common += ["s_xor_b32 %s, %s, %d\ns_mul_i32 %s, %s, %d\nv_add_u32 %s, %s, %s" % (
        s(sU0), s(sWAVE), j, s(sU0), s(sU0), REG, v(vXR + j - 1), s(sU0), v(vL16)) for j in range(1, 4)]
    common += ["v_lshl_add_u32 %s, %s, 10, %s" % (v(vX4), v(vWV), v(vL16)), "v_add_u32 %s, %d, %s" % (v(vX4B), 2 * REG, v(vX4))]
    bias_perm = ["v_lshlrev_b32 %s, 3, %s" % (v(vT0), v(vG)), "v_lshlrev_b32 %s, 2, %s" % (v(vT1), v(vI16))]
    bias_perm += ["ds_bpermute_b32 %s, %s, %s offset:%d" % (v(VB1 + e), v(vT0), v(vB1R), (8 * (e >> 1) + (e & 1)) * 4) for e in range(8)]
    bias_perm += ["ds_bpermute_b32 %s, %s, %s offset:%d" % (v(VB2 + q), v(vT1), v(vB2R), 64 * q) for q in range(4)]
    main1 = ["s_mul_i32 %s, %s, %d" % (s(sU0), s(sWAVE), 16 * KSTEP_B),
             "s_lshl_b32 %s, %s, 12" % (s(sU1), s(sDT)),
             "s_add_u32 %s, %s, %s" % (s(sU0), s(sU0), s(sU1))] + table(16, sROT) + twist(C1M, sFT)
    main1 += ["s_and_b32 %s, %s, 3" % (s(sU0), s(sDT)),
              "s_lshl2_add_u32 %s, %s, %s" % (s(sU0), s(sU0), s(sWAVE)),
              "s_lshl_b32 %s, %s, %d" % (s(sU0), s(sU0), 6 + lg(FS1)),
              "s_add_u32 %s, %s, %d" % (s(sU0), s(sU0), FL1),
              "v_lshl_add_u32 %s, v0, %d, %s" % (v(vPA), lg(FS1), s(sU0))]
    w2_off = ["s_mul_i32 %s, %s, %d" % (s(sROT2), s(sDT2), ROT2), "s_and_b32 %s, s2, 1" % s(sU0)]
    if ROT2X:
        w2_off += ["s_mul_i32 %s, %s, %d" % (s(sU1), s(sU0), ROT2X), "s_add_u32 %s, %s, %s" % (s(sROT2), s(sROT2), s(sU1))]
    w2_off += ["s_cmp_ge_u32 %s, 12\ns_cselect_b32 %s, 12, 0\ns_sub_u32 %s, %s, %s" % (s(sROT2), s(sU1), s(sROT2), s(sROT2), s(sU1))] * (2 if ROT2 * 3 + ROT2X >= 24 else 1)
    if XA2 == 2:
        w2_off += ["s_lshl2_add_u32 %s, %s, %s" % (s(sDT2), s(sU0), s(sDT2))]
    else:
        w2_off = ["s_lshr_b32 %s, %s, %d" % (s(sROT2), s(sDT2), RP2), "s_mul_i32 %s, %s, %d" % (s(sROT2), s(sROT2), RM2),
                  "s_lshr_b32 %s, %s, %d" % (s(sROT2), s(sROT2), RS2)]
        assert ((7 >> RP2) * RM2) >> RS2 < 12
    w2_off += [
               "s_mul_i32 %s, %s, %d" % (s(sW2BASE), s(sWAVE), 12 * 32 * 4096),
               "s_lshl_b32 %s, %s, 7" % (s(sU1), s(sST)),
               "s_add_u32 %s, %s, %s" % (s(sW2BASE), s(sW2BASE), s(sU1)),
               "s_add_u32 %s, %s, %d" % (s(sW2END), s(sW2BASE), 12 * 32 * 4096),
               "s_lshl_b32 %s, %s, 17" % (s(sW2OFF), s(sROT2)),
               "s_add_u32 %s, %s, %s" % (s(sW2OFF), s(sW2OFF), s(sW2BASE))]

    st(A, "s1")
    L(common)
    st(A, "s2")
    if EW:
        L(w2_off)
        w2_off = []
    npre = len(main1) * PRE // 100
    L(main1[:npre])
    for x in w1[N0A:N0]:
        A(vm.op(*x))
    st(A, "setup")
    vm.wait("x")
    st(A, "x")
    X = 70
    ln = []
    for q in range(10):
        ln.append("v_lshlrev_b32 %s, 16, %s" % (v(X + 2 * q), v(60 + q)))
        ln.append("v_and_b32 %s, 0xffff0000, %s" % (v(X + 1 + 2 * q), v(60 + q)))
    ln.append("v_pk_add_f32 v[60:61], %s, %s" % (v(X, 2), v(X + 2, 2)))
    ln.append("v_pk_add_f32 v[62:63], %s, %s" % (v(X + 4, 2), v(X + 6, 2)))
    for q in range(8, 20, 4):
        ln.append("v_pk_add_f32 v[60:61], v[60:61], %s" % v(X + q, 2))
        ln.append("v_pk_add_f32 v[62:63], v[62:63], %s" % v(X + q + 2, 2))
    ln.append("v_pk_add_f32 v[60:61], v[60:61], v[62:63]")
    ln.append("v_add_f32 v60, v60, v61")
    ln += reduce32(60, 61)
    ln.append("v_mul_f32 v60, %s, v60" % f32(-1.0 / 640))
    for q in range(0, 20, 2):
        ln.append("v_pk_add_f32 %s, %s, v[60:61] op_sel_hi:[1,0]" % (v(X + q, 2), v(X + q, 2)))
    ln.append("v_pk_mul_f32 v[62:63], %s, %s" % (v(X, 2), v(X, 2)))
    ln.append("v_pk_mul_f32 v[64:65], %s, %s" % (v(X + 2, 2), v(X + 2, 2)))
    for q in range(4, 20, 4):
        ln.append("v_pk_fma_f32 v[62:63], %s, %s, v[62:63]" % (v(X + q, 2), v(X + q, 2)))
        ln.append("v_pk_fma_f32 v[64:65], %s, %s, v[64:65]" % (v(X + q + 2, 2), v(X + q + 2, 2)))
    ln.append("v_pk_add_f32 v[62:63], v[62:63], v[64:65]")
    ln.append("v_add_f32 v62, v62, v63")
    ln += reduce32(62, 63)
    ln.append("v_mul_f32 v62, %s, v62" % f32(1.0 / 640))
    ln.append("v_cvt_pk_bf16_f32 v64, v60, v62")
    ln.append("v_lshlrev_b32 v66, 16, v64")
    ln.append("v_and_b32 v64, 0xffff0000, v64")
    ln.append("v_add_f32 v64, %s, v64" % f32(1e-5))
    ln.append("v_cvt_pk_bf16_f32 v64, v64, v64")
    ln.append("v_lshlrev_b32 v64, 16, v64")
    ln.append("v_sqrt_f32 v64, v64\nv_sub_f32 v66, v66, v60")
    ln.append("v_cvt_pk_bf16_f32 v64, v64, v64")
    ln.append("v_lshlrev_b32 v64, 16, v64")
    ln.append("v_rcp_f32 v64, v64\ns_nop 0")
    ln.append("v_mul_f32 v66, v66, v64")
    for q in range(0, 20, 2):
        ln.append("v_pk_fma_f32 %s, %s, v[64:65], v[66:67] op_sel_hi:[1,0,0]" % (v(X + q, 2), v(X + q, 2)))
    for q in range(10):
        ln.append("v_cvt_pk_bf16_f32 %s, %s, %s" % (v(60 + q), v(X + 2 * q), v(X + 1 + 2 * q)))
    k = N0
    stepn = E("NLS", 0) or len(ln) // (NL + 1)
    for n, x in enumerate(ln):
        A(x)
        if n % stepn == 0 and k < N0 + NL:
            A(vm.op(*w1[k]))
            k += 1
    st(A, "lnm")
    A("ds_write_b128 v50, v[60:63]")
    A("ds_write_b128 v50, v[64:67] offset:512")
    A("ds_write_b64 v51, v[68:69] offset:1024")
    A("s_waitcnt lgkmcnt(0)")
    A("s_barrier")
    st(A, "lnb")
    A("ds_read_b64_tr_b16 v[60:61], v52")
    A("ds_read_b64_tr_b16 v[62:63], v55")
    A("ds_read_b64_tr_b16 v[64:65], v52 offset:512")
    A("ds_read_b64_tr_b16 v[66:67], v55 offset:512")
    A("s_mul_i32 %s, %s, 0x41c64e6d" % (s(sTAG), s(sEP)))
    A("s_add_u32 %s, %s, 0x3039" % (s(sTAG), s(sTAG)))
    A("v_mov_b32 %s, %s" % (v(vTAG), s(sTAG)))
    A("s_cmp_ge_u32 %s, 2" % s(sWAVE))
    A("s_cbranch_scc1 L_ln_two")
    A("ds_read_b64_tr_b16 v[68:69], v52 offset:1024")
    A("ds_read_b64_tr_b16 v[70:71], v55 offset:1024")
    A("s_waitcnt lgkmcnt(0)")
    A(vm.op("buffer_store_dwordx4 v[68:71], v53, %s, %s offen sc1" % (s(SWS, 4), s(sT2)), "hst", True))
    A("L_ln_two:")
    A("s_waitcnt lgkmcnt(0)")
    A(vm.op("buffer_store_dwordx4 v[60:63], v53, %s, %s offen sc1" % (s(SWS, 4), s(sT0)), "hst"))
    A(vm.op("buffer_store_dwordx4 v[64:67], v53, %s, %s offen sc1" % (s(SWS, 4), s(sT1)), "hst"))
    st(A, "hst")
    A("s_cmp_eq_u32 %s, 0" % s(sMAIN))
    A("s_cbranch_scc1 L_helper")

    def poll_check(lab, vPA=vPA, also=""):
        A("v_cmp_ne_u32 vcc, %s, %s" % (v(vPOLL), v(vTAG)))
        A("s_cbranch_vccz %s_ok" % lab)
        A("s_mov_b32 %s, 0" % s(sU2))
        A("%s_spin:" % lab)
        A(also)
        A("buffer_load_dword %s, %s, %s, 0 offen sc1" % (v(vPOLL), v(vPA), s(SWS, 4)))
        A("s_add_u32 %s, %s, 1" % (s(sU2), s(sU2)))
        A("s_cmp_ge_u32 %s, %d" % (s(sU2), SPIN))
        A("s_waitcnt vmcnt(0)")
        A("s_cbranch_scc1 %s_ok" % lab)
        if SL:
            A("s_sleep %d" % SL)
        A("v_cmp_ne_u32 vcc, %s, %s" % (v(vPOLL), v(vTAG)))
        A("s_cbranch_vccnz %s_spin" % lab)
        A("%s_ok:" % lab)

    def w_stream(which, ns, ops, k0, da, db, d, pe, acts, fill, sttag, flag_fn, after_flag, late):
        state = {"read": -1, "safe": -1, "flag": False}

        def mk(i):
            def fn():
                st(A, "w%d_%d" % (which, i))
                if state["read"] >= 0:
                    A("s_waitcnt lgkmcnt(7)")
                    state["safe"] = state["read"] - 1
                L(tr_reads(which, i))
                state["read"] = i
            return fn

        def flag():
            flag_fn()
            state["flag"] = True

        vm.on(sttag, flag)
        for i in range(ns):
            vm.on("w%d_%d" % (which, i), mk(i))
        fill = list(fill)
        seq = list(ops[k0:])
        seq.insert(max(0, len(seq) - pe), ("buffer_load_dword %s, %s, %s, 0 offen sc1" % (v(vPOLL), v(vPA), s(SWS, 4)), "poll%d" % which))
        nfill = (len(fill) + NF - 1) // NF
        after = list(after_flag)
        while seq:
            if state["flag"] and after and not fill:
                for x in after:
                    A(vm.op(*x) if x[1] else x[0])
                after = []
            t, tag = seq.pop(0)
            slow = [j for j, (tg, _) in enumerate(vm.ops) if tg in ("b", "fl1", "fl2", "ep")]
            if not state["flag"]:
                cur = da
            elif after or (slow and max(slow) >= vm.done):
                cur = db
            else:
                cur = max(d, cur - 2)
            vm.waitbig(cur - 1, sttag)
            if tag.startswith("poll"):
                assert not fill and state["flag"]
            if t.startswith("s_add_u32 m0") and tag.startswith("w%d" % which):
                i = int(tag.split("_")[1])
                prev = max([j for j in range(i) if SLOT[which][j] == SLOT[which][i]] + [-1])
                if prev > state["safe"]:
                    vm.wait("w%d_%d" % (which, prev))
                    A("s_waitcnt lgkmcnt(0)")
                    state["safe"] = state["read"]
            A(vm.op(t, tag))
            vm.fire(limit=1)
            L(fill[:nfill])
            fill = fill[nfill:]
        assert not after
        L(late)
        vm.wait("poll%d" % which)
        poll_check("L_p%d" % which)
        st(A, "poll%d" % which)
        for t, tag in acts:
            vm.waitbig(max(d, DEPTH) - 1, sttag)
            A(vm.op(t, tag))
            vm.fire()
        vm.wait("w%d_%d" % (which, ns - 1))
        assert not vm.actions
        A("s_waitcnt lgkmcnt(0)")

    NBUF = DEPTH + 1
    assert NBUF <= 12

    def act_load(which, n, ns, va_of_block):
        blk, i = divmod(n, ns)
        return ("buffer_load_dwordx4 %s, %s, %s, %s offen sc1" % (v(AB + (n % NBUF) * 4, 4), v(va_of_block(blk)), s(SWS, 4), s(ST + i)), "a%d_%d" % (which, n))

    def units(which, ns, nblk, va_of_block, tail_vm, extra, preset):
        nun = ns * nblk
        tail_vm = list(tail_vm)
        for n in range(nun):
            blk, i = divmod(n, ns)
            vm.wait("a%d_%d" % (which, n))
            st(A, "u%d_%d" % (which, n))
            fill = []
            if n + DEPTH < nun:
                fill.append(vm.op(*act_load(which, n + DEPTH, ns, va_of_block)))
            elif tail_vm:
                fill.append(vm.op(*tail_vm.pop(0)))
            fill += [vm.op(*x) if isinstance(x, tuple) else x for x in extra.get(n, [])]
            m = []
            ar = v(AB + (n % NBUF) * 4, 4)
            for o in range(4):
                d = v(ACC + blk * 16 + o * 4, 4)
                wr = a(16 * i + 4 * o, 4)
                c = "0" if i == 0 and blk not in preset else d
                m.append("v_mfma_f32_16x16x32_bf16 %s, %s, %s, %s" % ((d, wr, ar, c) if which == 1 else (d, ar, wr, c)))
            L(interleave(m, fill, 0, 1, max((len(fill) + 3) // 4, 1)))
        assert not tail_vm

    def xwrites(blk, slot):
        return ["ds_write_b128 %s, %s offset:%d" % (v(vXW), v(ACC + blk * 16 + o * 4, 4), slot * 4096 + o * 1024) for o in range(4)]

    def add_extra(extra, n, lst):
        extra.setdefault(n, []).extend(lst)

    va1 = lambda blk: VA + 3 - blk

    bias1 = [("v_and_b32 %s, 0xffff0000, %s" if e & 1 else "v_lshlrev_b32 %s, 16, %s") % (v(ACC + e), v(VB1 + e // 2)) for e in range(16)]

    def flag1():
        A(flag_store(FS1, "0") if SA else vm.op(flag_store(FS1, "0"), "fl1"))
        st(A, "fl1")

    assert 4 * EP >= N0 + NL or not EW
    w1 = w1[:4 * EP] + w2[:4 * EW] + w1[4 * EP:]
    w_stream(1, 16, w1, N0 + NL, DW1A, DW1B, DW1, PE1, [act_load(1, n, 16, va1) for n in range(DEPTH)], main1[npre:], "hst", flag1, [("s_waitcnt lgkmcnt(3)\n" + "\n".join(bias_perm), None)], bias1)
    st(A, "w1")
    extra = {}
    for n, x in enumerate(w2_off):
        add_extra(extra, 2 + n // 2, [x])
    for blk in range(3):
        w = xwrites(blk, blk + 1)
        for o in range(4):
            add_extra(extra, 16 * (blk + 1) + 2 + (o // 2 if blk == 2 else o), [w[o]])
    k1 = 2 * 0.7978845608028654 * 1.4426950408889634
    k3 = k1 * 0.044715
    gs = ["v_mov_b32 %s, %s" % (v(vT0), f32(-k3)), "v_mov_b32 %s, %s" % (v(vT1), f32(-k1)),
          "s_lshl2_add_u32 %s, %s, %s" % (s(sT2), s(sDT), s(sC)),
          "s_mul_i32 %s, %s, %d" % (s(sT0), s(sFT), 2 * KSTEP_B),
          "s_lshl_b32 %s, %s, 10" % (s(sT1), s(sT2)),
          "s_add_u32 %s, %s, %s" % (s(sT0), s(sT0), s(sT1)),
          "s_add_u32 %s, %s, %d" % (s(sT0), s(sT0), G_OFF),
          "s_add_u32 %s, %s, %d" % (s(sT1), s(sT0), KSTEP_B),
          "s_mul_i32 %s, %s, 24" % (s(sT2), s(sT2)),
          "s_add_u32 %s, %s, %s" % (s(sT2), s(sT2), s(sFT)),
          "s_lshl_b32 %s, %s, %d" % (s(sT2), s(sT2), lg(FS2)),
          "s_add_u32 %s, %s, %d" % (s(sT2), s(sT2), FL2),
          "v_mov_b32 %s, %s" % (v(vFA), v(vL16))]
    if PF:
        gs += ["s_mov_b32 %s, 0" % s(sZ), "s_buffer_atomic_or %s, %s, %s" % (s(sZ), s(SWS, 4), s(sT2))]
    for n, x in enumerate(gs):
        add_extra(extra, 23 + n // 2, [x])

    def xread(dst, j):
        return ["ds_read_b128 %s, %s offset:%d" % (v(dst + o * 4, 4), v(vXR + j - 1), (4 - j) * 4096 + o * 1024) for o in range(4)]

    def exchange(extra, own, first_own, nb):
        add_extra(extra, nb, ["s_waitcnt lgkmcnt(0)\ns_barrier"])
        add_extra(extra, nb + 1, xread(own, 3))
        add_extra(extra, nb + 2, xread(RB, 2))
        adds = ["v_add_f32 %s, %s, %s" % (v(own + e), v(own + e), v(RB + e)) for e in range(16)]
        return adds

    adds = exchange(extra, ACC + 48, 48, 39)
    adds[0] = "s_waitcnt lgkmcnt(0)\n" + adds[0]
    for e in range(16):
        add_extra(extra, 43 + e // 4, [adds[e]])
    add_extra(extra, 64 - BL, ["s_waitcnt lgkmcnt(0)\ns_barrier"])
    for o, x in enumerate(xread(PS, 1)):
        add_extra(extra, 65 - BL + o // 2, [x])
    assert C1M == 0 and C2M == 0
    setup2 = ["s_mul_i32 %s, %s, -3072" % (s(sU0), s(sDT2)),
                                "s_add_u32 %s, %s, 32768" % (s(sU0), s(sU0)),
                                "v_add_u32 %s, %s, %s" % (v(VA + 4), s(sU0), v(vL16)),
                                "v_min_u32 %s, 29, v0" % v(vS0),
                                "v_mul_u32_u24 %s, 43, %s" % (v(vS1), v(vS0)),
                                "v_lshrrev_b32 %s, 8, %s" % (v(vS1), v(vS1)),
                                "v_lshrrev_b32 %s, 2, %s" % (v(vPA), v(vS1)),
                                "v_mul_u32_u24 %s, 18, %s" % (v(vS1), v(vS1)),
                                "v_add_u32 %s, %s, %s" % (v(vS0), v(vS0), v(vS1)),
                                "s_mul_i32 %s, %s, -72" % (s(sU0), s(sDT2)),
                                "s_add_u32 %s, %s, %d" % (s(sU0), s(sU0), 28 * 24),
                                "v_mad_u32_u24 %s, %s, %s, %s" % (v(vS0), v(vPA), s(sU0), v(vS0)),
                                "s_mul_i32 %s, %s, 96" % (s(sU0), s(sDT2)),
                                "s_mul_i32 %s, %s, 6" % (s(sU1), s(sWAVE)),
                                "s_add_u32 %s, %s, %s" % (s(sU0), s(sU0), s(sU1)),
                                "s_lshl_b32 %s, %s, %d" % (s(sU0), s(sU0), lg(FS2)),
                                "s_add_u32 %s, %s, %d" % (s(sU0), s(sU0), FL2),
                                "v_lshl_add_u32 %s, %s, %d, %s" % (v(vPA), v(vS0), lg(FS2), s(sU0)),
                                "s_mul_i32 %s, %s, %d" % (s(sU0), s(sWAVE), 12 * KSTEP_B),
                                "s_lshl_b32 %s, %s, 12" % (s(sU1), s(sDT2)),
                                "s_add_u32 %s, %s, %s" % (s(sU0), s(sU0), s(sU1)),
                                "s_add_u32 %s, %s, %d" % (s(sU0), s(sU0), G_OFF)]
    table2 = table(12, sROT2)
    bias2 = ["v_lshlrev_b32 %s, 16, %s" % (v(ACC + 16 + e), v(VB2 + e // 4)) for e in range(16)]
    bias2 += ["v_mul_f32 %s, 0x3e800000, %s" % (v(ACC + e), v(ACC + 16 + e)) for e in range(16)]
    for n, x in enumerate(setup2):
        add_extra(extra, 7 + n // 2 + (4 if n >= 18 else 0), [x])
    first = 48 - DEPTH + 1
    add_extra(extra, first - 1, table2[:1])
    add_extra(extra, first, table2[1:3])
    for i in range(1, 12):
        add_extra(extra, first + i, [table2[2 + i]])
    for n, x in enumerate(bias2):
        add_extra(extra, 47 + n // 4 + (2 if n >= 12 else 0), [x])
    add_extra(extra, 47, ["s_or_b32 %s, s2, %s\ns_cbranch_scc1 L_noepoch\ns_mov_b32 %s, %d\ns_buffer_atomic_swap %s, %s, %s\nL_noepoch:" % (
        s(sZ), s(sWAVE), s(sZ), EPOCH, s(sTAG), s(SWS, 4), s(sZ))])
    assert T0 <= DEPTH
    units(1, 16, 4, va1, w2[4 * EW:4 * EW + T0], extra, (0, 3))
    st(A, "g1")
    U = ACC + 48
    T = RB
    A("s_waitcnt lgkmcnt(0)")
    A("s_nop 3")
    for h in range(2):
        r2 = range(8 * h, 8 * h + 8, 2)
        r1 = range(8 * h, 8 * h + 8)
        gl = []
        gl += ["v_pk_add_f32 %s, %s, %s" % (v(U + e, 2), v(U + e, 2), v(PS + e, 2)) for e in r2]
        gl += ["v_pk_mul_f32 %s, %s, %s" % (v(T + e, 2), v(U + e, 2), v(U + e, 2)) for e in r2]
        gl += ["v_pk_fma_f32 %s, %s, %s, %s op_sel:[0,0,1] op_sel_hi:[1,0,1]" % (v(T + e, 2), v(T + e, 2), v(vT0, 2), v(vT0, 2)) for e in r2]
        gl += ["v_pk_mul_f32 %s, %s, %s" % (v(T + e, 2), v(T + e, 2), v(U + e, 2)) for e in r2]
        gl += ["v_exp_f32 %s, %s" % (v(T + e), v(T + e)) for e in r1]
        gl += ["v_pk_add_f32 %s, %s, 1.0 op_sel_hi:[1,0]" % (v(T + e, 2), v(T + e, 2)) for e in r2]
        gl += ["v_rcp_f32 %s, %s" % (v(T + e), v(T + e)) for e in r1]
        gl += ["v_pk_mul_f32 %s, %s, %s" % (v(U + e, 2), v(U + e, 2), v(T + e, 2)) for e in r2]
        gl += ["v_cvt_pk_bf16_f32 %s, %s, %s" % (v(T + 16 + e // 2), v(U + e), v(U + e + 1)) for e in r2]
        ins = w2[4 * EW + T0 + h * MG0:4 * EW + T0 + MG0 + h * MG]
        for n, x in enumerate(gl):
            if ins and n % max(1, 36 // (MG if h else MG0)) == 0:
                A(vm.op(*ins.pop(0)))
            A(x)
        assert not ins
        A(vm.op("buffer_store_dwordx4 %s, %s, %s, %s offen sc1" % (v(T + 16 + 4 * h, 4), v(vFA), s(SWS, 4), s(sT0 + h)), "gst"))
    if E("RACY", 0) == 1:
        A(flag_store(FS2, s(sT2)))
    if E("RACY", 0) == 2:
        A("s_mov_b64 exec, 1")
        A(vm.op("buffer_store_dword %s, %s, %s, %s offen sc1" % (v(vTAG), v(vFA), s(SWS, 4), s(sT2)), "fl2", True))
        A("s_mov_b64 exec, -1")
    if E("RACY", 0) == 3:
        A("s_mov_b64 exec, 1")
        A(vm.op("buffer_atomic_swap %s, %s, %s, %s offen" % (v(vTAG), v(vFA), s(SWS, 4), s(sT2)), "fl2", True))
        A("s_mov_b64 exec, -1")
    st(A, "gst")
    A("L_join:")

    def flag2():
        if E("RACY", 0):
            return
        A("s_cmp_eq_u32 %s, 0" % s(sMAIN))
        A("s_cbranch_scc1 L_noflag")
        A(flag_store(FS2, s(sT2)) if SA else vm.op(flag_store(FS2, s(sT2)), "fl2", True))
        A("L_noflag:")
        st(A, "fl2")

    va2 = lambda blk: VA + 4 - blk
    w_stream(2, 12, w2, 4 * EW + T0 + MG0 + MG, DW2A, DW2B, DW2, PE2, [act_load(2, n, 12, va2) for n in range(DEPTH)], [], "gst", flag2, [], [])
    st(A, "w2")
    extra = {}
    OP, OB = 144, 16384
    vOW, vOR, vOS = VW1, VW1 + 1, VW1 + 2
    oa = ["v_and_b32 %s, 15, v0" % v(vT0),
          "v_lshrrev_b32 %s, 4, v0" % v(vT1),
          "v_mul_u32_u24 %s, 1280, %s" % (v(vFA), v(vT0)),
          "v_lshl_add_u32 %s, %s, 3, %s" % (v(vFA), v(vT1), v(vFA)),
          "v_mul_u32_u24 %s, %d, %s" % (v(vOW), OP, v(vT0)),
          "v_lshl_add_u32 %s, %s, 3, %s" % (v(vOW), v(vT1), v(vOW)),
          "s_lshl_b32 %s, %s, 5" % (s(sT1), s(sC)),
          "v_add_u32 %s, %s, %s" % (v(vOW), s(sT1), v(vOW)),
          "v_lshrrev_b32 %s, 3, v0" % v(vT0),
          "v_and_b32 %s, 7, v0" % v(vT1),
          "v_mul_u32_u24 %s, %d, %s" % (v(vOR), OP, v(vT0)),
          "v_lshl_add_u32 %s, %s, 4, %s" % (v(vOR), v(vT1), v(vOR)),
          "s_mul_i32 %s, %s, %d" % (s(sT1), s(sWAVE), 16 * OP),
          "v_add_u32 %s, %s, %s" % (v(vOR), s(sT1), v(vOR)),
          "v_mul_u32_u24 %s, 1280, %s" % (v(vOS), v(vT0)),
          "v_lshl_add_u32 %s, %s, 4, %s" % (v(vOS), v(vT1), v(vOS)),
          "s_lshl2_add_u32 %s, %s, %s" % (s(sT0), s(sST), s(sWAVE)),
          "s_mul_i32 %s, %s, %d" % (s(sT0), s(sT0), 16 * 1280),
          "s_lshl_b32 %s, %s, 5" % (s(sT1), s(sDT2)),
          "s_add_u32 %s, %s, %s" % (s(sU2), s(sT0), s(sT1)),
          "s_lshl2_add_u32 %s, %s, %s" % (s(sT0), s(sT1), s(sT0)),
          "s_add_u32 %s, %s, %d" % (s(sT1), s(sT0), 8 * 1280)]
    for n, x in enumerate(oa):
        add_extra(extra, 1 + n // 2, [x])
    for blk in range(4):
        w = xwrites(blk, blk)
        for o in range(4):
            add_extra(extra, 12 * (blk + 1) + 2 + (o // 2 if blk >= 2 else o), [w[o]])
    adds = exchange(extra, ACC + 64, 48, 41)
    adds[0] = "s_waitcnt lgkmcnt(4)\n" + adds[0]
    Y = RB + 16
    add_extra(extra, 44, ["ds_read_b128 %s, %s offset:%d" % (v(Y + sw * 4, 4), v(vX4B if sw & 2 else vX4), (sw & 1) * REG) for sw in range(4)])
    for e in range(16):
        add_extra(extra, 45 + e // 6, [adds[e]])
    add_extra(extra, 47, ["s_nop 0"])
    add_extra(extra, 60 - BL, ["s_waitcnt lgkmcnt(0)\ns_barrier"])
    for o, x in enumerate(xread(PS, 1)):
        add_extra(extra, 61 - BL + o // 2, [x])
    l = ["v_add_f32 %s, %s, %s" % (v(Y + e), v(Y + e), v(Y + 4 + e)) for e in (0, 1, 2, 3, 8, 9, 10, 11)]
    l[0] = "s_waitcnt lgkmcnt(0)\n" + l[0]
    add_extra(extra, 48, l[:4])
    add_extra(extra, 49, l[4:])
    add_extra(extra, 52, ["v_add_f32 %s, %s, %s" % (v(Y + e), v(Y + e), v(Y + 8 + e)) for e in range(4)])
    add_extra(extra, 53, ["v_cvt_pk_bf16_f32 %s, %s, %s" % (v(Y), v(Y), v(Y + 1)),
                          "v_cvt_pk_bf16_f32 %s, %s, %s" % (v(Y + 1), v(Y + 2), v(Y + 3))])
    tile4 = ("buffer_store_dwordx2 %s, %s, %s, %s offen offset:1024 sc1" % (v(Y, 2), v(vFA), s(SOUT, 4), s(sU2)), "o4")
    add_extra(extra, 54, [tile4])
    units(2, 12, 5, va2, [], extra, (0, 1, 4))
    st(A, "g2")
    U = ACC + 64
    A("s_waitcnt lgkmcnt(0)")
    A("s_nop 3")
    for q in range(4):
        A("v_pk_add_f32 %s, %s, %s" % (v(U + 4 * q, 2), v(U + 4 * q, 2), v(PS + 4 * q, 2)))
        A("v_pk_add_f32 %s, %s, %s" % (v(U + 4 * q + 2, 2), v(U + 4 * q + 2, 2), v(PS + 4 * q + 2, 2)))
        A("v_cvt_pk_bf16_f32 %s, %s, %s" % (v(RB + 2 * q), v(U + 4 * q), v(U + 4 * q + 1)))
        A("v_cvt_pk_bf16_f32 %s, %s, %s" % (v(RB + 2 * q + 1), v(U + 4 * q + 2), v(U + 4 * q + 3)))
        A("ds_write_b64 %s, %s offset:%d" % (v(vOW), v(RB + 2 * q, 2), OB + 16 * OP * q))
    A("s_waitcnt lgkmcnt(0)")
    A("s_barrier")
    for j in range(2):
        A("ds_read_b128 %s, %s offset:%d" % (v(RB + 8 + 4 * j, 4), v(vOR), OB + 8 * OP * j))
    for j in range(2):
        A("s_waitcnt lgkmcnt(%d)" % (1 - j))
        A("buffer_store_dwordx4 %s, %s, %s, %s offen sc1" % (v(RB + 8 + 4 * j, 4), v(vOS), s(SOUT, 4), s(sT0 + j)))
    if E("XD", 0):
        A("s_getreg_b32 s66, hwreg(HW_REG_XCC_ID)")
        A("s_and_b32 s66, s66, 15")
        A("s_and_b32 s64, s64, 0xffff")
        A("s_mul_i32 s64, s64, 100")
        A("s_add_u32 s66, s66, s64")
        A("s_and_b32 s69, s69, 0xffff")
        A("s_mov_b32 s70, 64")
        A("s_mov_b32 s71, 0x20000")
        A("s_lshl_b32 s67, s2, 2")
        A("v_mov_b32 v1, 0")
        A("v_mov_b32 v2, s66")
        A("buffer_store_dword v2, v1, s[68:71], s67 offen")
    st(A, "ost")
    stamp_flush(A, 0, s(sWAVE), 14, "L_st", wave=-1)
    A("L_done:")
    A("s_endpgm")
    A("L_helper:")
    A("s_waitcnt vmcnt(0)")
    A(flag_store(FS1, "0"))
    A("s_barrier")
    L(bias_perm)
    L(w2_off)
    L(setup2 + table2)
    A("s_waitcnt lgkmcnt(0)")
    L(bias2)
    if E("HT", 0):
        A("v_lshlrev_b32 %s, 12, v0" % v(vT0))
        A("s_bfe_u32 %s, s2, 0x10003" % s(sU1))
        A("s_mul_i32 %s, %s, %d" % (s(sU1), s(sU1), 192 * 4096))
        A("s_add_u32 %s, %s, %s" % (s(sU0), s(sW2BASE), s(sU1)))
        for n in range(3):
            A("s_add_u32 %s, %s, %d" % (s(sU1), s(sU0), n * 64 * 4096))
            A("buffer_load_dword v154, %s, %s, %s offen" % (v(vT0), s(SW2, 4), s(sU1)))
        A("s_waitcnt vmcnt(0)")
    if HP:
        assert XA2 == 1
        A("v_and_b32 %s, 3, v0" % v(vT0))
        A("v_lshlrev_b32 %s, 7, %s" % (v(vT0), v(vT0)))
        A("v_lshrrev_b32 %s, 2, v0" % v(vT1))
        A("v_lshl_add_u32 %s, %s, 12, %s" % (v(vT0), v(vT1), v(vT0)))
        A("s_and_b32 %s, s2, 7" % s(sU0))
        A("s_lshl_b32 %s, %s, 9" % (s(sU0), s(sU0)))
        A("s_mul_i32 %s, %s, %d" % (s(sU1), s(sWAVE), 12 * 32 * 4096))
        A("s_add_u32 %s, %s, %s" % (s(sU0), s(sU0), s(sU1)))
        A("s_bfe_u32 %s, s2, 0x10003" % s(sU1))
        A("s_lshl_b32 %s, %s, 16" % (s(sU1), s(sU1)))
        A("s_add_u32 %s, %s, %s" % (s(sU0), s(sU0), s(sU1)))
        order = [int(x) for x in os.environ.get("HPO", "2,5,8,11").split(",")]
        for n in order[:HP]:
            A("s_add_u32 %s, %s, %d" % (s(sU1), s(sU0), n * 32 * 4096))
            A("buffer_load_dword v154, %s, %s, %s offen" % (v(vT0), s(SW2, 4), s(sU1)))
    L([t for t, _ in w2[:4 * EW + T0 + MG0 + MG]])
    A("v_mov_b32 %s, %d" % (v(vEA), EPOCH))
    A("v_not_b32 %s, %s" % (v(vPOLL), v(vTAG)))
    if E("HW", 1):
        also = ""
        if E("HC", 1):
            A("s_getpc_b64 s[24:25]")
            A("L_pc2:")
            A("s_sub_u32 s24, s24, L_pc2 - L_p1_ok")
            A("s_subb_u32 s25, s25, 0")
            A("v_lshlrev_b32 %s, 7, v0" % v(vS0))
            A("v_lshl_add_u32 %s, %s, 13, %s" % (v(vS0), v(vWV), v(vS0)))
            A("v_min_u32 %s, L_helper - L_p1_ok - 4, %s" % (v(vS0), v(vS0)))
            also = "global_load_dword %s, %s, s[24:25] sc1" % (v(vS1), v(vS0))
        poll_check("L_ph", vEA, also)
    A("s_waitcnt vmcnt(0) lgkmcnt(0)")
    A("s_branch L_join")
    A("L_end:")
    kernel_desc(A, NAME, 512, 256, 102)
    hdr = HEADER + "; @launch grid=(256,1,1) block=(256,1,1) lds=163840\n"
    txt = A.text()
    dbg = os.environ.get("DBG", "")
    if dbg:
        out = []
        for ln_ in txt.split("\n"):
            if "nohst" in dbg and "buffer_store_dwordx4" in ln_ and "v53" in ln_:
                ln_ = ln_.replace("buffer_store_dwordx4", "buffer_load_dwordx4").replace("v53", "v47").replace("s96", "0").replace("s97", "0").replace("s98", "0")
            if "plainh" in dbg and "buffer_store_dwordx4" in ln_ and "v53" in ln_:
                ln_ = ln_.replace(" sc1", "")
            if "nofl" in dbg and "buffer_store_dwordx4 v[20:23]" in ln_:
                ln_ = "    buffer_load_dword v154, v47, s[16:19], 0 offen"
            if "nobias" in dbg and ("s[24:27]" in ln_ or "s[28:31]" in ln_) and "buffer" in ln_:
                ln_ = "    buffer_load_dword v154, v47, s[16:19], 0 offen"
            if "nopoll" in dbg and "s_cbranch_vccz" in ln_:
                ln_ = ln_.replace("s_cbranch_vccz", "s_branch")
            if "nopoll" in dbg and "buffer_load_dword v18" in ln_:
                ln_ = "    buffer_load_dword v154, v47, s[16:19], 0 offen"
            if "w2hot" in dbg and "s[12:15]" in ln_ and " lds" in ln_:
                ln_ = ln_.replace(" lds", " sc1 lds").replace("s55", "s99")
            if "w1hot" in dbg and "s[8:11]" in ln_ and " lds" in ln_:
                ln_ = ln_.replace(" lds", " sc1 lds").replace("s55", "s99")
            if "acthot" in dbg and "buffer_load_dwordx4 v[" in ln_ and "s[16:19]" in ln_:
                import re
                ln_ = re.sub(r"s\[16:19\], s\d+", "s[16:19], s32", ln_)
            if "s[20:23]" in ln_ and "buffer_store" in ln_:
                if "noout" in dbg:
                    ln_ = "    s_nop 0" if "offset:1024" not in ln_ else ln_
                for f_ in ("sc1", "nt", "sc0"):
                    if "o" + f_ in dbg.split(",") and ("x4" in ln_ or "oall" in dbg):
                        ln_ += " " + f_
            if "buffer_load_dwordx4 v[" in ln_ and "s[16:19]" in ln_:
                if "aplain" in dbg:
                    ln_ = ln_.replace(" sc1", "")
                if "ant" in dbg:
                    ln_ += " nt"
                if "asc0" in dbg:
                    ln_ = ln_.replace(" sc1", " sc0 sc1")
            if " lds" in ln_ and "wsc1" in dbg:
                ln_ = ln_.replace(" lds", " sc1 lds")
            if "buffer_store_dwordx4" in ln_ and "s[16:19]" in ln_:
                if "ssc0" in dbg:
                    ln_ = ln_.replace(" sc1", " sc0 sc1")
                if "snt" in dbg:
                    ln_ += " nt"
            if "cyc" in dbg:
                ln_ = ln_.replace("s_memrealtime", "s_memtime")
            if "nomfma" in dbg and "v_mfma" in ln_:
                continue
            out.append(ln_)
        txt = "\n".join(out)
    return hdr + txt


if __name__ == "__main__":
    open(sys.argv[1], "w").write(gen())
```

```python
import sys, os
from asmlib import *

E = lambda k, d: int(os.environ.get(k, d))
STAMPS_ON = bool(E("STAMPS", 0))
set_stamps(STAMPS_ON)
_STL = os.environ.get("STL", "setup,x,hst,fl1,poll1,w1,g1,gst,fl2,poll2,w2,g2,ost").split(",")


def st(A, name):
    if name == os.environ.get("ES", ""):
        A("s_memrealtime s[74:75]")
    if name in _STL:
        stamp(A, 1 + _STL.index(name))


NAME = "standalone__mixer_token_mlp__prompt_kernel"
S, D, F = 2048, 640, 1536
KSTEP_B = 40960
G_OFF = 0x280000
FL1 = 0x480000
FL2 = 0x490000
EPOCH = 0x4A0000
WS_SIZE = 0x4B0000
LNP = 1344
REG = 40960
SLOT = {1: [1 + i % 9 for i in range(16)], 2: [4, 5, 6, 7, 8, 9, 0, 1, 2, 4, 5, 6]}

DEPTH = E("DEPTH", 9)
N0 = E("N0", 8)
N0A = min(N0, E("N0A", 6))
NL = E("NL", 0)
DW1A = E("DW1A", 12)
DW1B = E("DW1B", 20)
DW2B = E("DW2B", 20)
DW1 = E("DW1", 10)
T0 = E("T0", 4)
DW2A = E("DW2A", 7)
DW2 = E("DW2", 10)
PE1 = E("PE1", 10)
PE2 = E("PE2", 7)
ROT1 = E("ROT1", 3)
ROT1X = E("ROT1X", 0)
ROT1T = os.environ.get("ROT1T", "")
C1M = E("C1M", 0)
ROT2 = E("ROT2", 3)
ROT2X = E("ROT2X", 0)
C2M = E("C2M", 0)
FS1 = E("FS1", 8)
FS2 = E("FS2", 64)
CP = E("CP", 2)
HP = E("HP", 4)
XA1 = E("XA1", 1)
XA2 = E("XA2", 1)
RM1, RS1 = E("RM1", 13), E("RS1", 3)
RP1 = E("RP1", 0)
RM2, RS2, RP2 = E("RM2", 3), E("RS2", 1), E("RP2", 0)
PRE = E("PRE", 100)
NF = E("NF", 14)
BL = E("BL", 6)
SA = E("SA", 1)
MG = E("MG", 0)
MG0 = E("MG0", 0)
PF = E("PF", 1)
SL = E("SL", 0)
EW = E("EW", 0)
EP = E("EP", 2)
NTX = " nt" if E("NTX", 0) else ""
NTW = E("NTW", 0)
if EW:
    SLOT = {1: [1 + i % 7 for i in range(16)], 2: [8, 9, 4, 5, 6, 7, 0, 1, 2, 8, 9, 4]}
FM, SM = E("FM", 3), E("SM", 0)
HO = E("HO", 0)
SPIN = 1 << 17
lg = lambda x: x.bit_length() - 1

SX, SW1, SW2, SWS, SOUT, SB1, SB2 = 4, 8, 12, 16, 20, 24, 28
ST = 32
sWAVE, sDT, sFT, sDT2, sST, sC, sRING, sWOFF = 48, 49, 50, 51, 52, 53, 54, 55
sT0, sT1, sT2, sWBASE, sWEND, sROT, sMAIN = 96, 97, 98, 99, 100, 101, 3
sTAG, sF1, sZ, sEP = 7, 62, 63, 0
sW2OFF, sW2BASE, sW2END, sROT2 = 58, 59, 60, 61
sU0, sU1, sU2 = 4, 5, 6
VW1, VW2, VT, VA = 1, 5, 9, 13
vTAG = 20
vPOLL, vPA, vFA, vXW, vXR, vX4 = 18, 19, 24, 25, 26, 29
vT0, vT1 = 30, 31
VB1 = 32
VB2 = 40
vX4B = 45
vS0, vS1, vEA = 167, 168, 169
vWV, vL16 = 46, 47
AB = 48
RB = 128
PS = 160
ACC = 176
vR8, vINR, vG, vI16, vB1R, vB2R = 160, 161, 162, 163, 165, 166


class VM:
    def __init__(self, A):
        self.A = A
        self.ops = []
        self.done = 0
        self.actions = []

    def op(self, text, tag, optional=False):
        self.ops.append((tag, optional))
        return text

    def last(self, tag):
        return max(i for i, (t, _) in enumerate(self.ops) if t == tag)

    def count(self, tag):
        n = sum(1 for (t, o) in self.ops[self.last(tag) + 1:] if not o)
        assert n <= 63
        return n

    def waitbig(self, n, only=None):
        k, c, m = len(self.ops), 0, 0
        small = lambda t: t in ("b", "fl1", "fl2", "ep", "poll1", "poll2")
        while k > 0 and (self.ops[k - 1][1] or small(self.ops[k - 1][0]) or c < n):
            if not self.ops[k - 1][1]:
                m += 1
                if not small(self.ops[k - 1][0]):
                    c += 1
            k -= 1
        self.waitn(m, only)

    def waitn(self, n, only=None):
        k, c = len(self.ops), 0
        while k > 0 and (self.ops[k - 1][1] or c < n):
            if not self.ops[k - 1][1]:
                c += 1
            k -= 1
        if k > self.done:
            self.A("s_waitcnt vmcnt(%d)" % n)
            self.done = k
        self.fire(only)

    def wait(self, tag):
        self.waitn(self.count(tag))

    def on(self, tag, fn):
        self.actions.append((tag, fn))

    def fire(self, only=None, limit=99):
        again = True
        while again and limit > 0:
            again = False
            limit -= 1
            for j, (tag, fn) in enumerate(self.actions):
                if only not in (None, tag):
                    continue
                if any(t == tag for t, _ in self.ops) and self.last(tag) < self.done:
                    self.actions.pop(j)
                    fn()
                    again = True
                    break


def srd(dst, src, bytes_):
    return ["s_mov_b32 %s, %s" % (s(dst), s(src)), "s_and_b32 %s, %s, 0xffff" % (s(dst + 1), s(src + 1)),
            "s_mov_b32 %s, %d" % (s(dst + 2), bytes_), "s_mov_b32 %s, 0x20000" % s(dst + 3)]


def reduce32(x, t):
    o = []
    for mod in ("quad_perm:[1,0,3,2]", "quad_perm:[2,3,0,1]", "row_half_mirror", "row_mirror"):
        o.append("s_nop 1\nv_add_f32_dpp %s, %s, %s %s row_mask:0xf bank_mask:0xf" % (v(x), v(x), v(x), mod))
    o.append("v_mov_b32 %s, %s\ns_nop 1\nv_permlane16_swap_b32 %s, %s\ns_nop 1\nv_add_f32 %s, %s, %s" % (v(t), v(x), v(t), v(x), v(x), v(x), v(t)))
    return o


def gen():
    A = Asm()
    vm = VM(A)

    def L(lst):
        for x in lst:
            A(x)

    A('.amdgcn_target "amdgcn-amd-amdhsa--gfx950"')
    kernel_begin(A, NAME)
    A("s_cmp_ge_u32 s2, 256")
    A("s_cbranch_scc1 L_done")
    A("s_load_dwordx16 s[32:47], s[0:1], 0")
    if E("XD", 0):
        A("s_memrealtime s[64:65]")
        A("s_load_dwordx2 s[68:69], s[0:1], 48")
    stamp_init(A)
    if CP:
        A("s_cmp_ge_u32 s2, %d" % (8 * CP))
        A("s_cbranch_scc1 L_nocp")
        A("s_getpc_b64 s[4:5]")
        A("L_pc:")
        A("v_lshlrev_b32 v1, 7, v0")
        A("v_min_u32 v1, L_end - L_pc - 4, v1")
        A(vm.op("global_load_dword v164, v1, s[4:5]", "cp", True))
        A("L_nocp:")
    A("v_lshrrev_b32 %s, 6, v0" % v(vWV))
    A("v_lshrrev_b32 v48, 5, v0")
    A("v_readfirstlane_b32 %s, %s" % (s(sWAVE), v(vWV)))
    A("v_and_b32 v49, 31, v0")
    A("v_and_b32 v0, 63, v0")
    A("s_lshr_b32 %s, s2, 2" % s(sT0))
    A("s_and_b32 %s, s2, 3" % s(sT1))
    A("s_lshl_b32 %s, %s, 5" % (s(sT2), s(sT0)))
    A("s_lshl2_add_u32 %s, %s, %s" % (s(sT2), s(sT1), s(sT2)))
    A("v_and_b32 v50, 3, v48")
    A("v_lshrrev_b32 v51, 2, v48")
    A("v_lshl_add_u32 v50, v51, 4, v50")
    A("v_add_u32 v50, %s, v50" % s(sT2))
    A("v_mul_u32_u24 v50, 1280, v50")
    A("v_lshl_add_u32 v51, v49, 3, v50")
    A("v_lshl_add_u32 v50, v49, 4, v50")
    A("s_lshr_b32 %s, s2, 3" % s(sT0))
    A("s_cmp_lt_u32 %s, 30" % s(sT0))
    A("s_cselect_b32 %s, 1, 0" % s(sMAIN))
    A("s_min_u32 %s, %s, 29" % (s(sT1), s(sT0)))
    if XA1 == 2:
        A("s_mul_i32 %s, %s, 52" % (s(sFT), s(sT1)))
        A("s_lshr_b32 %s, %s, 8" % (s(sFT), s(sFT)))
        A("s_mul_i32 %s, %s, 5" % (s(sT2), s(sFT)))
        A("s_sub_u32 %s, %s, %s" % (s(sDT), s(sT1), s(sT2)))
        if ROT1T:
            tb = sum(int(x) << (4 * i) for i, x in enumerate(ROT1T.split(",")))
            A("s_lshl_b32 %s, %s, 2" % (s(sT2), s(sDT)))
            A("s_lshr_b32 %s, %d, %s" % (s(sROT), tb, s(sT2)))
        else:
            A("s_mul_i32 %s, %s, %d" % (s(sROT), s(sDT), ROT1))
        A("s_and_b32 %s, s2, 1" % s(sT1))
        if ROT1X:
            A("s_mul_i32 %s, %s, %d" % (s(sT2), s(sT1), ROT1X))
            A("s_add_u32 %s, %s, %s" % (s(sROT), s(sROT), s(sT2)))
        A("s_and_b32 %s, %s, 15" % (s(sROT), s(sROT)))
        A("s_mul_i32 %s, %s, 5" % (s(sT2), s(sT1)))
        A("s_add_u32 %s, %s, %s" % (s(sDT), s(sDT), s(sT2)))
        A("s_bfe_u32 %s, s2, 0x20001" % s(sT1))
        A("s_mul_i32 %s, %s, 6" % (s(sT2), s(sT1)))
        A("s_add_u32 %s, %s, %s" % (s(sFT), s(sFT), s(sT2)))
    else:
        A("s_mul_i32 %s, %s, 26" % (s(sFT), s(sT1)))
        A("s_lshr_b32 %s, %s, 8" % (s(sFT), s(sFT)))
        A("s_mul_i32 %s, %s, 10" % (s(sT2), s(sFT)))
        A("s_sub_u32 %s, %s, %s" % (s(sDT), s(sT1), s(sT2)))
        A("s_lshr_b32 %s, %s, %d" % (s(sROT), s(sDT), RP1))
        A("s_mul_i32 %s, %s, %d" % (s(sROT), s(sROT), RM1))
        A("s_lshr_b32 %s, %s, %d" % (s(sROT), s(sROT), RS1))
        A("s_and_b32 %s, %s, 15" % (s(sROT), s(sROT)))
        A("s_and_b32 %s, s2, 7" % s(sT1))
        if FM == 0:
            A("s_mul_i32 %s, %s, 3" % (s(sT2), s(sT1)))
            A("s_add_u32 %s, %s, %s" % (s(sFT), s(sFT), s(sT2)))
        else:
            A("s_xor_b32 %s, %s, %d" % (s(sT1), s(sT1), FM - 1))
            A("s_lshl3_add_u32 %s, %s, %s" % (s(sFT), s(sFT), s(sT1)))
    p1 = 3072
    A("s_mul_i32 %s, %s, %d" % (s(sWBASE), s(sWAVE), 16 * 32 * p1))
    A("s_lshl_b32 %s, %s, 7" % (s(sT2), s(sFT)))
    A("s_add_u32 %s, %s, %s" % (s(sWBASE), s(sWBASE), s(sT2)))
    A("s_add_u32 %s, %s, %d" % (s(sWEND), s(sWBASE), 16 * 32 * p1))
    A("s_mul_i32 %s, %s, %d" % (s(sWOFF), s(sROT), 32 * p1))
    A("s_add_u32 %s, %s, %s" % (s(sWOFF), s(sWOFF), s(sWBASE)))
    A("s_mul_i32 %s, %s, %d" % (s(sRING), s(sWAVE), REG))
    A("v_lshrrev_b32 %s, 3, v0" % v(vR8))
    A("v_bfe_u32 v54, v0, 1, 2")
    A("v_lshrrev_b32 %s, 4, v0" % v(vG))
    A("v_xor_b32 v54, v54, %s" % v(vG))
    A("v_lshlrev_b32 v54, 5, v54")
    A("v_and_b32 v56, 1, v0")
    A("v_lshl_add_u32 %s, v56, 4, v54" % v(vINR))
    A("v_mul_u32_u24 %s, %d, %s" % (v(VW1), p1, v(vR8)))
    A("v_add_u32 %s, %s, %s" % (v(VW1), v(VW1), v(vINR)))
    for q in range(1, 4):
        A("v_add_u32 %s, %d, %s" % (v(VW1 + q), q * (8 * p1 - 1024), v(VW1)))

    A("s_lshr_b32 %s, s2, 3" % s(sT0))
    A("s_and_b32 %s, %s, 7" % (s(sDT2), s(sT0)))
    A("s_lshr_b32 %s, %s, 3" % (s(sST), s(sT0)))
    A("s_and_b32 %s, s2, 7" % s(sT0))
    if SM == 0:
        A("s_lshl2_add_u32 %s, %s, %s" % (s(sST), s(sT0), s(sST)))
    elif SM == 1:
        A("s_xor_b32 %s, %s, %d" % (s(sT0), s(sT0), E("SX", 0)))
        A("s_lshl3_add_u32 %s, %s, %s" % (s(sST), s(sST), s(sT0)))
    else:
        A("s_and_b32 %s, %s, 1" % (s(sT1), s(sST)))
        A("s_lshr_b32 %s, %s, 1" % (s(sST), s(sST)))
        A("s_lshl3_add_u32 %s, %s, %s" % (s(sST), s(sST), s(sT0)))
        A("s_lshl1_add_u32 %s, %s, %s" % (s(sST), s(sST), s(sT1)))
    A("v_lshlrev_b32 %s, 2, v0" % v(vT0))
    A("v_lshlrev_b32 %s, 1, v0" % v(vT1))
    A("s_lshl_b32 %s, %s, 7" % (s(sT0), s(sFT)))
    A("s_lshl_b32 %s, %s, 7" % (s(sT1), s(sST)))
    A("s_mov_b32 %s, %d" % (s(sZ), EPOCH))
    srds = [(SX, 32, S * D * 2), (SB1, 36, F * 2), (SB2, 40, S * 2), (SW1, 34, S * F * 2), (SWS, 46, WS_SIZE), (SW2, 38, S * F * 2), (SOUT, 42, S * D * 2)]
    for d_, _, n_ in srds:
        L(srd(d_, 0, n_)[2:])
    st(A, "pre")
    A("s_waitcnt lgkmcnt(0)")
    st(A, "ka")
    L(srd(*srds[0])[:2])
    A(vm.op("buffer_load_dwordx4 v[60:63], v50, %s, 0 offen%s" % (s(SX, 4), NTX), "x"))
    A(vm.op("buffer_load_dwordx4 v[64:67], v50, %s, 0 offen offset:512%s" % (s(SX, 4), NTX), "x"))
    A(vm.op("buffer_load_dwordx2 v[68:69], v51, %s, 0 offen offset:1024%s" % (s(SX, 4), NTX), "x"))
    L(srd(*srds[1])[:2] + srd(*srds[2])[:2])
    bias_ops = [("buffer_load_dword %s, %s, %s, %s offen" % (v(vB1R), v(vT0), s(SB1, 4), s(sT0)), "b"),
                ("buffer_load_ushort %s, %s, %s, %s offen" % (v(vB2R), v(vT1), s(SB2, 4), s(sT1)), "b")]
    for x in bias_ops:
        A(vm.op(*x))
    L(srd(*srds[3])[:2] + srd(*srds[4])[:2])
    A("s_buffer_load_dword %s, %s, %s" % (s(sEP), s(SWS, 4), s(sZ)))
    if E("XD", 0) >= 2:
        A("s_mov_b32 s74, s64")
        A("s_lshr_b32 s66, s2, 3")
        A("s_or_b32 s66, s66, %s" % s(sWAVE))
        A("s_cbranch_scc1 L_nomin")
        A("s_not_b32 s66, s64")
        A("s_atomic_umax s66, s[68:69], 0")
        A("L_nomin:")
    if E("LATE", 0):
        A("s_bitcmp1_b32 s2, 2")
        A("s_cbranch_scc0 L_notlate")
        A("s_sleep %d" % E("LATE", 0))
        A("L_notlate:")
    st(A, "xi")

    def wdma(which, i):
        pitch = 3072 if which == 1 else 4096
        vw = VW1 if which == 1 else VW2
        sr = SW1 if which == 1 else SW2
        sWOFF, sWBASE, sWEND = (55, 99, 100) if which == 1 else (sW2OFF, sW2BASE, sW2END)
        nt = " nt" if which == 1 and i >= 16 - NTW else ""
        out = []
        for q in range(4):
            pre = "s_add_u32 m0, %s, %d\ns_nop 0\n" % (s(sRING), SLOT[which][i] * 4096) if q == 0 else ""
            post = ""
            if q == 3:
                post = "\ns_add_u32 %s, %s, %d\ns_cmp_eq_u32 %s, %s\ns_cselect_b32 %s, %s, %s" % (
                    s(sWOFF), s(sWOFF), 32 * pitch, s(sWOFF), s(sWEND), s(sWOFF), s(sWBASE), s(sWOFF))
            if q == 3 and which == 2 and HO:
                if i < 4:
                    post = "\ns_add_u32 %s, %s, %d" % (s(sWOFF), s(sWBASE), (8 + i) << 17)
                else:
                    post = "\ns_add_u32 %s, %s, %d\ns_and_b32 %s, %s, 0xfffff\ns_add_u32 %s, %s, %s" % (
                        s(sWEND), s(sWEND), 1 << 17, s(sWEND), s(sWEND), s(sWOFF), s(sWBASE), s(sWEND))
            out.append((pre + "buffer_load_dwordx4 %s, %s, %s offen offset:%d%s lds" % (v(vw + q), s(sr, 4), s(sWOFF), q * 1024, nt) + post,
                        "w%d_%d%s" % (which, i, "" if q == 3 else "_p")))
        return out

    def tr_reads(which, i):
        return ["ds_read_b64_tr_b16 %s, %s offset:%d" % (a(16 * i + b * 4 + 2 * t, 2), v(VT + b), SLOT[which][i] * 4096 + t * 2048)
                for b in range(4) for t in range(2)]

    w1 = [x for i in range(16) for x in wdma(1, i)]
    w2 = [x for i in range(12) for x in wdma(2, i)]
    for x in w1[:N0A]:
        A(vm.op(*x))
    st(A, "wi")
    A("v_and_b32 v56, 1, v48")
    A("v_mul_u32_u24 v56, %d, v56" % LNP)
    A("v_add_u32 v56, %s, v56" % s(sRING))
    A("v_and_b32 v54, 1, %s" % v(vWV))
    A("v_lshl_add_u32 v56, v54, 7, v56")
    A("v_lshl_add_u32 v51, v49, 3, v56")
    A("v_lshl_add_u32 v50, v49, 4, v56")
    A("v_and_b32 %s, 15, v0" % v(vI16))
    A("v_bfe_u32 v54, v0, 3, 1")
    A("v_bfe_u32 v56, v0, 2, 1")
    A("v_mul_u32_u24 v56, %d, v56" % LNP)
    A("v_mul_u32_u24 v54, %d, v54" % (REG + 128))
    A("v_and_b32 v58, 3, v0")
    A("v_add_u32 v56, v56, v54")
    A("v_lshl_add_u32 v56, v58, 3, v56")
    A("v_lshl_add_u32 v56, %s, 5, v56" % v(vG))
    A("v_lshl_add_u32 v52, %s, 7, v56" % v(vWV))
    A("v_add_u32 v55, %d, v52" % (2 * REG))
    A("v_lshlrev_b32 v53, 4, %s" % v(vI16))
    A("v_lshl_add_u32 v53, %s, 10, v53" % v(vG))
    A("v_lshl_add_u32 v53, %s, 12, v53" % v(vWV))
    A("s_lshr_b32 %s, s2, 2" % s(sT0))
    A("s_mul_i32 %s, %s, %d" % (s(sT0), s(sT0), KSTEP_B))
    A("s_and_b32 %s, s2, 3" % s(sT1))
    A("s_lshl_b32 %s, %s, 8" % (s(sT1), s(sT1)))
    A("s_add_u32 %s, %s, %s" % (s(sT0), s(sT0), s(sT1)))
    A("s_add_u32 %s, %s, 16384" % (s(sT1), s(sT0)))
    A("s_add_u32 %s, %s, 32768" % (s(sT2), s(sT0)))
    A("v_lshrrev_b32 v54, 2, v0")
    A("v_bfe_u32 v56, v0, 3, 2")
    A("v_lshlrev_b32 v54, 7, v54")
    A("v_lshl_add_u32 v54, v58, 3, v54")
    A("v_add_u32 v54, %s, v54" % s(sRING))
    for b in range(4):
        A("v_xor_b32 v59, %d, v56" % b)
        A("v_lshl_add_u32 %s, v59, 5, v54" % v(VT + b))
    A("v_lshlrev_b32 %s, 4, v0" % v(vL16))
    A("s_lshl_b32 %s, %s, 8" % (s(sC), s(sWAVE)))
    A("s_add_u32 %s, %s, s2" % (s(sC), s(sC)))
    A("s_lshl_b32 %s, %s, %d" % (s(sC), s(sC), lg(FS1)))
    A("s_add_u32 %s, %s, %d" % (s(sC), s(sC), FL1))
    A("s_mov_b32 %s, %s" % (s(sF1), s(sC)))
    def flag_store(size, soff):
        if SA:
            return "s_buffer_atomic_swap %s, %s, %s" % (s(sTAG), s(SWS, 4), s(sF1) if soff == "0" else soff)
        return "s_mov_b64 exec, %d\nbuffer_store_dwordx4 %s, %s, %s, %s offen sc1\ns_mov_b64 exec, -1" % (
            (1 << (size // 16)) - 1, v(vTAG, 4), v(vFA), s(SWS, 4), soff)

    def table(ns, rot):
        o = ["s_add_u32 %s, %s, %d" % (s(sU1), s(sU0), ns * KSTEP_B),
             "s_mul_i32 %s, %s, %d" % (s(ST), s(rot), KSTEP_B),
             "s_add_u32 %s, %s, %s" % (s(ST), s(ST), s(sU0))]
        for i in range(1, ns):
            o.append("s_add_u32 %s, %s, %d\ns_cmp_eq_u32 %s, %s\ns_cselect_b32 %s, %s, %s" % (
                s(ST + i), s(ST + i - 1), KSTEP_B, s(ST + i), s(sU1), s(ST + i), s(sU0), s(ST + i)))
        return o

    def twist(mask, src):
        if mask == 2:
            o = ["s_and_b32 %s, %s, 1" % (s(sC), s(src)), "s_lshl_b32 %s, %s, 1" % (s(sC), s(sC))]
        else:
            o = ["s_and_b32 %s, %s, %d" % (s(sC), s(src), mask)]
        o.append("s_xor_b32 %s, %s, %s" % (s(sC), s(sC), s(sWAVE)))
        for j in range(4):
            o.append("s_xor_b32 %s, %s, %d\ns_lshl_b32 %s, %s, 10\nv_add_u32 %s, %s, %s" % (
                s(sU0), s(sC), j, s(sU0), s(sU0), v(VA + j), s(sU0), v(vL16)))
        return o

    assert XA2 == 1 and SA and PRE == 100
    common = srd(*srds[5])[:2] + srd(*srds[6])[:2] + ["v_lshl_add_u32 %s, %s, 12, %s" % (v(VW2), v(vR8), v(vINR))]
    common += ["v_add_u32 %s, %d, %s" % (v(VW2 + q), q * (8 * 4096 - 1024), v(VW2)) for q in range(1, 4)]
    common += ["v_add_u32 %s, %s, %s" % (v(vXW), s(sRING), v(vL16))]
    common += ["s_xor_b32 %s, %s, %d\ns_mul_i32 %s, %s, %d\nv_add_u32 %s, %s, %s" % (
        s(sU0), s(sWAVE), j, s(sU0), s(sU0), REG, v(vXR + j - 1), s(sU0), v(vL16)) for j in range(1, 4)]
    common += ["v_lshl_add_u32 %s, %s, 10, %s" % (v(vX4), v(vWV), v(vL16)), "v_add_u32 %s, %d, %s" % (v(vX4B), 2 * REG, v(vX4))]
    bias_perm = ["v_lshlrev_b32 %s, 3, %s" % (v(vT0), v(vG)), "v_lshlrev_b32 %s, 2, %s" % (v(vT1), v(vI16))]
    bias_perm += ["ds_bpermute_b32 %s, %s, %s offset:%d" % (v(VB1 + e), v(vT0), v(vB1R), (8 * (e >> 1) + (e & 1)) * 4) for e in range(8)]
    bias_perm += ["ds_bpermute_b32 %s, %s, %s offset:%d" % (v(VB2 + q), v(vT1), v(vB2R), 64 * q) for q in range(4)]
    main1 = ["s_mul_i32 %s, %s, %d" % (s(sU0), s(sWAVE), 16 * KSTEP_B),
             "s_lshl_b32 %s, %s, 12" % (s(sU1), s(sDT)),
             "s_add_u32 %s, %s, %s" % (s(sU0), s(sU0), s(sU1))] + table(16, sROT) + twist(C1M, sFT)
    main1 += ["s_and_b32 %s, %s, 3" % (s(sU0), s(sDT)),
              "s_lshl2_add_u32 %s, %s, %s" % (s(sU0), s(sU0), s(sWAVE)),
              "s_lshl_b32 %s, %s, %d" % (s(sU0), s(sU0), 6 + lg(FS1)),
              "s_add_u32 %s, %s, %d" % (s(sU0), s(sU0), FL1),
              "v_lshl_add_u32 %s, v0, %d, %s" % (v(vPA), lg(FS1), s(sU0))]
    w2_off = ["s_mul_i32 %s, %s, %d" % (s(sROT2), s(sDT2), ROT2), "s_and_b32 %s, s2, 1" % s(sU0)]
    if ROT2X:
        w2_off += ["s_mul_i32 %s, %s, %d" % (s(sU1), s(sU0), ROT2X), "s_add_u32 %s, %s, %s" % (s(sROT2), s(sROT2), s(sU1))]
    w2_off += ["s_cmp_ge_u32 %s, 12\ns_cselect_b32 %s, 12, 0\ns_sub_u32 %s, %s, %s" % (s(sROT2), s(sU1), s(sROT2), s(sROT2), s(sU1))] * (2 if ROT2 * 3 + ROT2X >= 24 else 1)
    if XA2 == 2:
        w2_off += ["s_lshl2_add_u32 %s, %s, %s" % (s(sDT2), s(sU0), s(sDT2))]
    else:
        w2_off = ["s_lshr_b32 %s, %s, %d" % (s(sROT2), s(sDT2), RP2), "s_mul_i32 %s, %s, %d" % (s(sROT2), s(sROT2), RM2),
                  "s_lshr_b32 %s, %s, %d" % (s(sROT2), s(sROT2), RS2)]
        assert ((7 >> RP2) * RM2) >> RS2 < 12
    w2_off += [
               "s_mul_i32 %s, %s, %d" % (s(sW2BASE), s(sWAVE), 12 * 32 * 4096),
               "s_lshl_b32 %s, %s, 7" % (s(sU1), s(sST)),
               "s_add_u32 %s, %s, %s" % (s(sW2BASE), s(sW2BASE), s(sU1)),
               "s_add_u32 %s, %s, %d" % (s(sW2END), s(sW2BASE), 12 * 32 * 4096),
               "s_lshl_b32 %s, %s, 17" % (s(sW2OFF), s(sROT2)),
               "s_add_u32 %s, %s, %s" % (s(sW2OFF), s(sW2OFF), s(sW2BASE))]

    if HO:
        w2_off = ["s_mul_i32 %s, %s, %d" % (s(sW2BASE), s(sWAVE), 12 * 32 * 4096),
                  "s_lshl_b32 %s, %s, 7" % (s(sU1), s(sST)),
                  "s_add_u32 %s, %s, %s" % (s(sW2BASE), s(sW2BASE), s(sU1)),
                  "s_lshl_b32 %s, %s, 17" % (s(sW2END), s(sDT2)),
                  "s_add_u32 %s, %s, %s" % (s(sW2OFF), s(sW2END), s(sW2BASE))]
    st(A, "s1")
    L(common)
    st(A, "s2")
    if EW:
        L(w2_off)
        w2_off = []
    npre = len(main1) * PRE // 100
    L(main1[:npre])
    for x in w1[N0A:N0]:
        A(vm.op(*x))
    st(A, "setup")
    vm.wait("x")
    st(A, "x")
    X = 70
    ln = []
    for q in range(10):
        ln.append("v_lshlrev_b32 %s, 16, %s" % (v(X + 2 * q), v(60 + q)))
        ln.append("v_and_b32 %s, 0xffff0000, %s" % (v(X + 1 + 2 * q), v(60 + q)))
    ln.append("v_pk_add_f32 v[60:61], %s, %s" % (v(X, 2), v(X + 2, 2)))
    ln.append("v_pk_add_f32 v[62:63], %s, %s" % (v(X + 4, 2), v(X + 6, 2)))
    for q in range(8, 20, 4):
        ln.append("v_pk_add_f32 v[60:61], v[60:61], %s" % v(X + q, 2))
        ln.append("v_pk_add_f32 v[62:63], v[62:63], %s" % v(X + q + 2, 2))
    ln.append("v_pk_add_f32 v[60:61], v[60:61], v[62:63]")
    ln.append("v_add_f32 v60, v60, v61")
    ln += reduce32(60, 61)
    ln.append("v_mul_f32 v60, %s, v60" % f32(-1.0 / 640))
    for q in range(0, 20, 2):
        ln.append("v_pk_add_f32 %s, %s, v[60:61] op_sel_hi:[1,0]" % (v(X + q, 2), v(X + q, 2)))
    ln.append("v_pk_mul_f32 v[62:63], %s, %s" % (v(X, 2), v(X, 2)))
    ln.append("v_pk_mul_f32 v[64:65], %s, %s" % (v(X + 2, 2), v(X + 2, 2)))
    for q in range(4, 20, 4):
        ln.append("v_pk_fma_f32 v[62:63], %s, %s, v[62:63]" % (v(X + q, 2), v(X + q, 2)))
        ln.append("v_pk_fma_f32 v[64:65], %s, %s, v[64:65]" % (v(X + q + 2, 2), v(X + q + 2, 2)))
    ln.append("v_pk_add_f32 v[62:63], v[62:63], v[64:65]")
    ln.append("v_add_f32 v62, v62, v63")
    ln += reduce32(62, 63)
    ln.append("v_mul_f32 v62, %s, v62" % f32(1.0 / 640))
    ln.append("v_cvt_pk_bf16_f32 v64, v60, v62")
    ln.append("v_lshlrev_b32 v66, 16, v64")
    ln.append("v_and_b32 v64, 0xffff0000, v64")
    ln.append("v_add_f32 v64, %s, v64" % f32(1e-5))
    ln.append("v_cvt_pk_bf16_f32 v64, v64, v64")
    ln.append("v_lshlrev_b32 v64, 16, v64")
    ln.append("v_sqrt_f32 v64, v64\nv_sub_f32 v66, v66, v60")
    ln.append("v_cvt_pk_bf16_f32 v64, v64, v64")
    ln.append("v_lshlrev_b32 v64, 16, v64")
    ln.append("v_rcp_f32 v64, v64\ns_nop 0")
    ln.append("v_mul_f32 v66, v66, v64")
    for q in range(0, 20, 2):
        ln.append("v_pk_fma_f32 %s, %s, v[64:65], v[66:67] op_sel_hi:[1,0,0]" % (v(X + q, 2), v(X + q, 2)))
    for q in range(10):
        ln.append("v_cvt_pk_bf16_f32 %s, %s, %s" % (v(60 + q), v(X + 2 * q), v(X + 1 + 2 * q)))
    k = N0
    stepn = E("NLS", 0) or len(ln) // (NL + 1)
    for n, x in enumerate(ln):
        A(x)
        if n % stepn == 0 and k < N0 + NL:
            A(vm.op(*w1[k]))
            k += 1
    st(A, "lnm")
    A("ds_write_b128 v50, v[60:63]")
    A("ds_write_b128 v50, v[64:67] offset:512")
    A("ds_write_b64 v51, v[68:69] offset:1024")
    A("s_waitcnt lgkmcnt(0)")
    A("s_barrier")
    st(A, "lnb")
    A("ds_read_b64_tr_b16 v[60:61], v52")
    A("ds_read_b64_tr_b16 v[62:63], v55")
    A("ds_read_b64_tr_b16 v[64:65], v52 offset:512")
    A("ds_read_b64_tr_b16 v[66:67], v55 offset:512")
    A("s_mul_i32 %s, %s, 0x41c64e6d" % (s(sTAG), s(sEP)))
    A("s_add_u32 %s, %s, 0x3039" % (s(sTAG), s(sTAG)))
    A("v_mov_b32 %s, %s" % (v(vTAG), s(sTAG)))
    HD, HS = E("HD", 0), E("HS", 0)
    if HD + HS == 0:
        A("s_cmp_ge_u32 %s, 2" % s(sWAVE))
        A("s_cbranch_scc1 L_ln_two")
        A("ds_read_b64_tr_b16 v[68:69], v52 offset:1024")
        A("ds_read_b64_tr_b16 v[70:71], v55 offset:1024")
        A("s_waitcnt lgkmcnt(0)")
        A(vm.op("buffer_store_dwordx4 v[68:71], v53, %s, %s offen sc1" % (s(SWS, 4), s(sT2)), "hst", True))
        A("L_ln_two:")
        A("s_waitcnt lgkmcnt(0)")
        A(vm.op("buffer_store_dwordx4 v[60:63], v53, %s, %s offen sc1" % (s(SWS, 4), s(sT0)), "hst"))
        A(vm.op("buffer_store_dwordx4 v[64:67], v53, %s, %s offen sc1" % (s(SWS, 4), s(sT1)), "hst"))
    else:
        A("ds_read_b64_tr_b16 v[68:69], v52 offset:1024")
        A("ds_read_b64_tr_b16 v[70:71], v55 offset:1024")
        kk = N0 + NL
        for g_ in range(3):
            for x in w1[kk:kk + (HS if g_ else HD)]:
                vm.waitbig(DW1A - 1)
                A(vm.op(*x))
            kk += HS if g_ else HD
            if g_ == 0:
                A("s_waitcnt lgkmcnt(0)")
                A(vm.op("buffer_store_dwordx4 v[60:63], v53, %s, %s offen sc1" % (s(SWS, 4), s(sT0)), "hst"))
            if g_ == 1:
                A("s_cmp_ge_u32 %s, 2" % s(sWAVE))
                A("s_cbranch_scc1 L_ln_two")
                A(vm.op("buffer_store_dwordx4 v[68:71], v53, %s, %s offen sc1" % (s(SWS, 4), s(sT2)), "hst", True))
                A("L_ln_two:")
            if g_ == 2:
                A(vm.op("buffer_store_dwordx4 v[64:67], v53, %s, %s offen sc1" % (s(SWS, 4), s(sT1)), "hst"))
    st(A, "hst")
    A("s_cmp_eq_u32 %s, 0" % s(sMAIN))
    A("s_cbranch_scc1 L_helper")

    def poll_check(lab, vPA=vPA, also=""):
        A("v_cmp_ne_u32 vcc, %s, %s" % (v(vPOLL), v(vTAG)))
        A("s_cbranch_vccz %s_ok" % lab)
        A("s_mov_b32 %s, 0" % s(sU2))
        A("%s_spin:" % lab)
        A(also)
        A("buffer_load_dword %s, %s, %s, 0 offen sc1" % (v(vPOLL), v(vPA), s(SWS, 4)))
        A("s_add_u32 %s, %s, 1" % (s(sU2), s(sU2)))
        A("s_cmp_ge_u32 %s, %d" % (s(sU2), SPIN))
        A("s_waitcnt vmcnt(0)")
        A("s_cbranch_scc1 %s_ok" % lab)
        if SL:
            A("s_sleep %d" % SL)
        A("v_cmp_ne_u32 vcc, %s, %s" % (v(vPOLL), v(vTAG)))
        A("s_cbranch_vccnz %s_spin" % lab)
        A("%s_ok:" % lab)

    def w_stream(which, ns, ops, k0, da, db, d, pe, acts, fill, sttag, flag_fn, after_flag, late):
        state = {"read": -1, "safe": -1, "flag": False}

        def mk(i):
            def fn():
                st(A, "w%d_%d" % (which, i))
                if state["read"] >= 0:
                    A("s_waitcnt lgkmcnt(7)")
                    state["safe"] = state["read"] - 1
                L(tr_reads(which, i))
                state["read"] = i
            return fn

        def flag():
            flag_fn()
            state["flag"] = True

        vm.on(sttag, flag)
        for i in range(ns):
            vm.on("w%d_%d" % (which, i), mk(i))
        fill = list(fill)
        seq = list(ops[k0:])
        mx = E("MX%d" % which, 0)
        held = seq[len(seq) - mx:]
        seq = seq[:len(seq) - mx]
        acts = [x for pr in zip(acts, held) for x in pr] + list(acts[mx:]) + held[len(acts):]
        seq.insert(max(0, len(seq) - pe), ("buffer_load_dword %s, %s, %s, 0 offen sc1" % (v(vPOLL), v(vPA), s(SWS, 4)), "poll%d" % which))
        nfill = (len(fill) + NF - 1) // NF
        after = list(after_flag)
        while seq:
            if state["flag"] and after and not fill:
                for x in after:
                    A(vm.op(*x) if x[1] else x[0])
                after = []
            t, tag = seq.pop(0)
            slow = [j for j, (tg, _) in enumerate(vm.ops) if tg in ("b", "fl1", "fl2", "ep")]
            if not state["flag"]:
                cur = da
            elif after or (slow and max(slow) >= vm.done):
                cur = db
            else:
                cur = max(d, cur - 2)
            vm.waitbig(cur - 1, sttag)
            if tag.startswith("poll"):
                assert not fill and state["flag"]
            if t.startswith("s_add_u32 m0") and tag.startswith("w%d" % which):
                i = int(tag.split("_")[1])
                prev = max([j for j in range(i) if SLOT[which][j] == SLOT[which][i]] + [-1])
                if prev > state["safe"]:
                    vm.wait("w%d_%d" % (which, prev))
                    A("s_waitcnt lgkmcnt(0)")
                    state["safe"] = state["read"]
            A(vm.op(t, tag))
            vm.fire(limit=1)
            L(fill[:nfill])
            fill = fill[nfill:]
        assert not after
        L(late)
        vm.wait("poll%d" % which)
        poll_check("L_p%d" % which)
        st(A, "poll%d" % which)
        for t, tag in acts:
            vm.waitbig(d - 1, sttag)
            if t.startswith("s_add_u32 m0"):
                i = int(tag.split("_")[1])
                assert max([j for j in range(i) if SLOT[which][j] == SLOT[which][i]] + [-1]) <= state["safe"]
            A(vm.op(t, tag))
            vm.fire()
        vm.wait("w%d_%d" % (which, ns - 1))
        assert not vm.actions
        A("s_waitcnt lgkmcnt(0)")

    GR, GE = E("GR", 1), E("GE", 4)
    DEP = {1: E("DEPTH1", DEPTH), 2: DEPTH}
    NBF = {k: x + GR for k, x in DEP.items()}
    assert max(NBF.values()) <= 20

    def act_load(which, n, ns, va_of_block):
        blk, i = divmod(n, ns)
        return ("buffer_load_dwordx4 %s, %s, %s, %s offen sc1" % (v(AB + (n % NBF[which]) * 4, 4), v(va_of_block(blk)), s(SWS, 4), s(ST + i)), "a%d_%d" % (which, n))

    def units(which, ns, nblk, va_of_block, tail_vm, extra, preset):
        nun = ns * nblk
        tail_vm = list(tail_vm)
        DEPTH, NBUF = DEP[which], NBF[which]
        for n in range(nun):
            blk, i = divmod(n, ns)
            gr = GR if n < nun - GE else 1
            if n % gr == 0:
                vm.wait("a%d_%d" % (which, n + gr - 1))
            st(A, "u%d_%d" % (which, n))
            fill = []
            if n + DEPTH < nun:
                fill.append(vm.op(*act_load(which, n + DEPTH, ns, va_of_block)))
            elif tail_vm and n >= E("TU", 0):
                fill.append(vm.op(*tail_vm.pop(0)))
            fill += [vm.op(*x) if isinstance(x, tuple) else x for x in extra.get(n, [])]
            m = []
            for k in range(4):
                e = (n % gr) * 4 + k
                o, dn = e // gr, e % gr - n % gr
                ar = v(AB + ((n + dn) % NBUF) * 4, 4)
                d = v(ACC + blk * 16 + o * 4, 4)
                wr = a(16 * (i + dn) + 4 * o, 4)
                c = "0" if i + dn == 0 and blk not in preset else d
                m.append("v_mfma_f32_16x16x32_bf16 %s, %s, %s, %s" % ((d, wr, ar, c) if which == 1 else (d, ar, wr, c)))
            if E("LF", 0) and fill and fill[0].startswith("buffer_load"):
                A(fill.pop(0))
            L(interleave(m, fill, 0, 1, max((len(fill) + 3) // 4, 1)))
        assert not tail_vm

    def xwrites(blk, slot):
        return ["ds_write_b128 %s, %s offset:%d" % (v(vXW), v(ACC + blk * 16 + o * 4, 4), slot * 4096 + o * 1024) for o in range(4)]

    def add_extra(extra, n, lst):
        extra.setdefault(n, []).extend(lst)

    va1 = lambda blk: VA + 3 - blk

    bias1 = [("v_and_b32 %s, 0xffff0000, %s" if e & 1 else "v_lshlrev_b32 %s, 16, %s") % (v(ACC + e), v(VB1 + e // 2)) for e in range(16)]

    def flag1():
        A(flag_store(FS1, "0") if SA else vm.op(flag_store(FS1, "0"), "fl1"))
        st(A, "fl1")

    assert 4 * EP >= N0 + NL or not EW
    w1 = w1[:4 * EP] + w2[:4 * EW] + w1[4 * EP:]
    w_stream(1, 16, w1, N0 + NL + HD + 2 * HS, DW1A, DW1B, DW1, PE1, [act_load(1, n, 16, va1) for n in range(DEP[1])], main1[npre:], "hst", flag1, [("s_waitcnt lgkmcnt(3)\n" + "\n".join(bias_perm), None)], bias1)
    st(A, "w1")
    extra = {}
    for n, x in enumerate(w2_off):
        add_extra(extra, 2 + n // 2, [x])
    for blk in range(3):
        w = xwrites(blk, blk + 1)
        for o in range(4):
            add_extra(extra, 16 * (blk + 1) + 2 + (o // 2 if blk == 2 else o), [w[o]])
    k1 = 2 * 0.7978845608028654 * 1.4426950408889634
    k3 = k1 * 0.044715
    gs = ["v_mov_b32 %s, %s" % (v(vT0), f32(-k3)), "v_mov_b32 %s, %s" % (v(vT1), f32(-k1)),
          "s_lshl2_add_u32 %s, %s, %s" % (s(sT2), s(sDT), s(sC)),
          "s_mul_i32 %s, %s, %d" % (s(sT0), s(sFT), 2 * KSTEP_B),
          "s_lshl_b32 %s, %s, 10" % (s(sT1), s(sT2)),
          "s_add_u32 %s, %s, %s" % (s(sT0), s(sT0), s(sT1)),
          "s_add_u32 %s, %s, %d" % (s(sT0), s(sT0), G_OFF),
          "s_add_u32 %s, %s, %d" % (s(sT1), s(sT0), KSTEP_B),
          "s_mul_i32 %s, %s, 24" % (s(sT2), s(sT2)),
          "s_add_u32 %s, %s, %s" % (s(sT2), s(sT2), s(sFT)),
          "s_lshl_b32 %s, %s, %d" % (s(sT2), s(sT2), lg(FS2)),
          "s_add_u32 %s, %s, %d" % (s(sT2), s(sT2), FL2),
          "v_mov_b32 %s, %s" % (v(vFA), v(vL16))]
    if PF:
        gs += ["s_mov_b32 %s, 0" % s(sZ), "s_buffer_atomic_or %s, %s, %s" % (s(sZ), s(SWS, 4), s(sT2))]
    for n, x in enumerate(gs):
        add_extra(extra, 23 + n // 2, [x])

    def xread(dst, j):
        return ["ds_read_b128 %s, %s offset:%d" % (v(dst + o * 4, 4), v(vXR + j - 1), (4 - j) * 4096 + o * 1024) for o in range(4)]

    def exchange(extra, own, first_own, nb):
        add_extra(extra, nb, ["s_waitcnt lgkmcnt(0)\ns_barrier"])
        add_extra(extra, nb + 1, xread(own, 3))
        add_extra(extra, nb + 2, xread(RB, 2))
        adds = ["v_add_f32 %s, %s, %s" % (v(own + e), v(own + e), v(RB + e)) for e in range(16)]
        return adds

    adds = exchange(extra, ACC + 48, 48, 39)
    adds[0] = "s_waitcnt lgkmcnt(0)\n" + adds[0]
    for e in range(16):
        add_extra(extra, 43 + e // 4, [adds[e]])
    add_extra(extra, 64 - BL, ["s_waitcnt lgkmcnt(0)\ns_barrier"])
    for o, x in enumerate(xread(PS, 1)):
        add_extra(extra, 65 - BL + o // 2, [x])
    assert C1M == 0 and C2M == 0
    setup2 = ["s_mul_i32 %s, %s, -3072" % (s(sU0), s(sDT2)),
                                "s_add_u32 %s, %s, 32768" % (s(sU0), s(sU0)),
                                "v_add_u32 %s, %s, %s" % (v(VA + 4), s(sU0), v(vL16)),
                                "v_min_u32 %s, 29, v0" % v(vS0),
                                "v_mul_u32_u24 %s, 43, %s" % (v(vS1), v(vS0)),
                                "v_lshrrev_b32 %s, 8, %s" % (v(vS1), v(vS1)),
                                "v_lshrrev_b32 %s, 2, %s" % (v(vPA), v(vS1)),
                                "v_mul_u32_u24 %s, 18, %s" % (v(vS1), v(vS1)),
                                "v_add_u32 %s, %s, %s" % (v(vS0), v(vS0), v(vS1)),
                                "s_mul_i32 %s, %s, -72" % (s(sU0), s(sDT2)),
                                "s_add_u32 %s, %s, %d" % (s(sU0), s(sU0), 28 * 24),
                                "v_mad_u32_u24 %s, %s, %s, %s" % (v(vS0), v(vPA), s(sU0), v(vS0)),
                                "s_mul_i32 %s, %s, 96" % (s(sU0), s(sDT2)),
                                "s_mul_i32 %s, %s, 6" % (s(sU1), s(sWAVE)),
                                "s_add_u32 %s, %s, %s" % (s(sU0), s(sU0), s(sU1)),
                                "s_lshl_b32 %s, %s, %d" % (s(sU0), s(sU0), lg(FS2)),
                                "s_add_u32 %s, %s, %d" % (s(sU0), s(sU0), FL2),
                                "v_lshl_add_u32 %s, %s, %d, %s" % (v(vPA), v(vS0), lg(FS2), s(sU0)),
                                "s_mul_i32 %s, %s, %d" % (s(sU0), s(sWAVE), 12 * KSTEP_B),
                                "s_lshl_b32 %s, %s, 12" % (s(sU1), s(sDT2)),
                                "s_add_u32 %s, %s, %s" % (s(sU0), s(sU0), s(sU1)),
                                "s_add_u32 %s, %s, %d" % (s(sU0), s(sU0), G_OFF)]
    table2 = table(12, sROT2)
    if HO:
        table2 = ["s_add_u32 %s, %s, %d" % (s(sU1), s(sU0), 8 * KSTEP_B),
                  "s_mul_i32 %s, %s, %d" % (s(ST), s(sDT2), KSTEP_B), "s_add_u32 %s, %s, %s" % (s(ST), s(ST), s(sU0))]
        table2 += ["s_add_u32 %s, %s, %d" % (s(ST + i), s(sU0), (7 + i) * KSTEP_B) for i in range(1, 5)]
        for i in range(5, 12):
            table2.append("s_add_u32 %s, %s, %d\ns_cmp_eq_u32 %s, %s\ns_cselect_b32 %s, %s, %s" % (
                s(ST + i), s(ST + i - 1 if i > 5 else ST), KSTEP_B, s(ST + i), s(sU1), s(ST + i), s(sU0), s(ST + i)))
    bias2 = ["v_lshlrev_b32 %s, 16, %s" % (v(ACC + 16 + e), v(VB2 + e // 4)) for e in range(16)]
    bias2 += ["v_mul_f32 %s, 0x3e800000, %s" % (v(ACC + e), v(ACC + 16 + e)) for e in range(16)]
    for n, x in enumerate(setup2):
        add_extra(extra, 7 + n // 2 + (4 if n >= 18 else 0), [x])
    first = max(40, 48 - DEP[1] + 1)
    add_extra(extra, first - 1, table2[:1])
    add_extra(extra, first, table2[1:3])
    for i in range(1, 12):
        add_extra(extra, first + i, [table2[2 + i]])
    for n, x in enumerate(bias2):
        add_extra(extra, 47 + n // 4 + (2 if n >= 12 else 0), [x])
    add_extra(extra, 47, ["s_or_b32 %s, s2, %s\ns_cbranch_scc1 L_noepoch\ns_mov_b32 %s, %d\ns_buffer_atomic_swap %s, %s, %s\nL_noepoch:" % (
        s(sZ), s(sWAVE), s(sZ), EPOCH, s(sTAG), s(SWS, 4), s(sZ))])
    TE, UE, US = E("TE", 0), E("UE", 44), E("US", 4)
    for n, x in enumerate(w2[:TE]):
        add_extra(extra, UE + n // US, [x])
    assert T0 <= DEP[1]
    units(1, 16, 4, va1, w2[4 * EW + TE:4 * EW + TE + T0], extra, (0, 3))
    st(A, "g1")
    U = ACC + 48
    T = RB
    A("s_waitcnt lgkmcnt(0)")
    A("s_nop 3")
    for h in range(2):
        r2 = range(8 * h, 8 * h + 8, 2)
        r1 = range(8 * h, 8 * h + 8)
        gl = []
        gl += ["v_pk_add_f32 %s, %s, %s" % (v(U + e, 2), v(U + e, 2), v(PS + e, 2)) for e in r2]
        gl += ["v_pk_mul_f32 %s, %s, %s" % (v(T + e, 2), v(U + e, 2), v(U + e, 2)) for e in r2]
        gl += ["v_pk_fma_f32 %s, %s, %s, %s op_sel:[0,0,1] op_sel_hi:[1,0,1]" % (v(T + e, 2), v(T + e, 2), v(vT0, 2), v(vT0, 2)) for e in r2]
        gl += ["v_pk_mul_f32 %s, %s, %s" % (v(T + e, 2), v(T + e, 2), v(U + e, 2)) for e in r2]
        gl += ["v_exp_f32 %s, %s" % (v(T + e), v(T + e)) for e in r1]
        gl += ["v_pk_add_f32 %s, %s, 1.0 op_sel_hi:[1,0]" % (v(T + e, 2), v(T + e, 2)) for e in r2]
        gl += ["v_rcp_f32 %s, %s" % (v(T + e), v(T + e)) for e in r1]
        gl += ["v_pk_mul_f32 %s, %s, %s" % (v(U + e, 2), v(U + e, 2), v(T + e, 2)) for e in r2]
        gl += ["v_cvt_pk_bf16_f32 %s, %s, %s" % (v(T + 16 + e // 2), v(U + e), v(U + e + 1)) for e in r2]
        ins = w2[4 * EW + TE + T0 + h * MG0:4 * EW + TE + T0 + MG0 + h * MG]
        for n, x in enumerate(gl):
            if ins and n % max(1, 36 // (MG if h else MG0)) == 0:
                A(vm.op(*ins.pop(0)))
            A(x)
        assert not ins
        A(vm.op("buffer_store_dwordx4 %s, %s, %s, %s offen sc1" % (v(T + 16 + 4 * h, 4), v(vFA), s(SWS, 4), s(sT0 + h)), "gst"))
    if E("RACY", 0) == 1:
        A(flag_store(FS2, s(sT2)))
    if E("RACY", 0) == 2:
        A("s_mov_b64 exec, 1")
        A(vm.op("buffer_store_dword %s, %s, %s, %s offen sc1" % (v(vTAG), v(vFA), s(SWS, 4), s(sT2)), "fl2", True))
        A("s_mov_b64 exec, -1")
    if E("RACY", 0) == 3:
        A("s_mov_b64 exec, 1")
        A(vm.op("buffer_atomic_swap %s, %s, %s, %s offen" % (v(vTAG), v(vFA), s(SWS, 4), s(sT2)), "fl2", True))
        A("s_mov_b64 exec, -1")
    st(A, "gst")
    A("L_join:")

    def flag2():
        if E("RACY", 0):
            return
        A("s_cmp_eq_u32 %s, 0" % s(sMAIN))
        A("s_cbranch_scc1 L_noflag")
        A(flag_store(FS2, s(sT2)) if SA else vm.op(flag_store(FS2, s(sT2)), "fl2", True))
        A("L_noflag:")
        st(A, "fl2")

    va2 = lambda blk: VA + 4 - blk
    w_stream(2, 12, w2, 4 * EW + TE + T0 + MG0 + MG, DW2A, DW2B, DW2, PE2, [act_load(2, n, 12, va2) for n in range(DEPTH)], [], "gst", flag2, [], [])
    st(A, "w2")
    extra = {}
    OP, OB = 144, 16384
    vOW, vOR, vOS = VW1, VW1 + 1, VW1 + 2
    oa = ["v_and_b32 %s, 15, v0" % v(vT0),
          "v_lshrrev_b32 %s, 4, v0" % v(vT1),
          "v_mul_u32_u24 %s, 1280, %s" % (v(vFA), v(vT0)),
          "v_lshl_add_u32 %s, %s, 3, %s" % (v(vFA), v(vT1), v(vFA)),
          "v_mul_u32_u24 %s, %d, %s" % (v(vOW), OP, v(vT0)),
          "v_lshl_add_u32 %s, %s, 3, %s" % (v(vOW), v(vT1), v(vOW)),
          "s_lshl_b32 %s, %s, 5" % (s(sT1), s(sC)),
          "v_add_u32 %s, %s, %s" % (v(vOW), s(sT1), v(vOW)),
          "v_lshrrev_b32 %s, 3, v0" % v(vT0),
          "v_and_b32 %s, 7, v0" % v(vT1),
          "v_mul_u32_u24 %s, %d, %s" % (v(vOR), OP, v(vT0)),
          "v_lshl_add_u32 %s, %s, 4, %s" % (v(vOR), v(vT1), v(vOR)),
          "s_mul_i32 %s, %s, %d" % (s(sT1), s(sWAVE), 16 * OP),
          "v_add_u32 %s, %s, %s" % (v(vOR), s(sT1), v(vOR)),
          "v_mul_u32_u24 %s, 1280, %s" % (v(vOS), v(vT0)),
          "v_lshl_add_u32 %s, %s, 4, %s" % (v(vOS), v(vT1), v(vOS)),
          "s_lshl2_add_u32 %s, %s, %s" % (s(sT0), s(sST), s(sWAVE)),
          "s_mul_i32 %s, %s, %d" % (s(sT0), s(sT0), 16 * 1280),
          "s_lshl_b32 %s, %s, 5" % (s(sT1), s(sDT2)),
          "s_add_u32 %s, %s, %s" % (s(sU2), s(sT0), s(sT1)),
          "s_lshl2_add_u32 %s, %s, %s" % (s(sT0), s(sT1), s(sT0)),
          "s_add_u32 %s, %s, %d" % (s(sT1), s(sT0), 8 * 1280)]
    for n, x in enumerate(oa):
        add_extra(extra, 1 + n // 2, [x])
    for blk in range(4):
        w = xwrites(blk, blk)
        for o in range(4):
            add_extra(extra, 12 * (blk + 1) + 2 + (o // 2 if blk >= 2 else o), [w[o]])
    adds = exchange(extra, ACC + 64, 48, 41)
    adds[0] = "s_waitcnt lgkmcnt(4)\n" + adds[0]
    Y = RB + 16
    add_extra(extra, 44, ["ds_read_b128 %s, %s offset:%d" % (v(Y + sw * 4, 4), v(vX4B if sw & 2 else vX4), (sw & 1) * REG) for sw in range(4)])
    for e in range(16):
        add_extra(extra, 45 + e // 6, [adds[e]])
    add_extra(extra, 47, ["s_nop 0"])
    add_extra(extra, 60 - BL, ["s_waitcnt lgkmcnt(0)\ns_barrier"])
    for o, x in enumerate(xread(PS, 1)):
        add_extra(extra, 61 - BL + o // 2, [x])
    l = ["v_add_f32 %s, %s, %s" % (v(Y + e), v(Y + e), v(Y + 4 + e)) for e in (0, 1, 2, 3, 8, 9, 10, 11)]
    l[0] = "s_waitcnt lgkmcnt(0)\n" + l[0]
    add_extra(extra, 48, l[:4])
    add_extra(extra, 49, l[4:])
    add_extra(extra, 52, ["v_add_f32 %s, %s, %s" % (v(Y + e), v(Y + e), v(Y + 8 + e)) for e in range(4)])
    add_extra(extra, 53, ["v_cvt_pk_bf16_f32 %s, %s, %s" % (v(Y), v(Y), v(Y + 1)),
                          "v_cvt_pk_bf16_f32 %s, %s, %s" % (v(Y + 1), v(Y + 2), v(Y + 3))])
    tile4 = ("buffer_store_dwordx2 %s, %s, %s, %s offen offset:1024 sc1" % (v(Y, 2), v(vFA), s(SOUT, 4), s(sU2)), "o4")
    add_extra(extra, 54, [tile4])
    units(2, 12, 5, va2, [], extra, (0, 1, 4))
    st(A, "g2")
    U = ACC + 64
    A("s_waitcnt lgkmcnt(0)")
    A("s_nop 3")
    for q in range(4):
        A("v_pk_add_f32 %s, %s, %s" % (v(U + 4 * q, 2), v(U + 4 * q, 2), v(PS + 4 * q, 2)))
        A("v_pk_add_f32 %s, %s, %s" % (v(U + 4 * q + 2, 2), v(U + 4 * q + 2, 2), v(PS + 4 * q + 2, 2)))
        A("v_cvt_pk_bf16_f32 %s, %s, %s" % (v(RB + 2 * q), v(U + 4 * q), v(U + 4 * q + 1)))
        A("v_cvt_pk_bf16_f32 %s, %s, %s" % (v(RB + 2 * q + 1), v(U + 4 * q + 2), v(U + 4 * q + 3)))
        A("ds_write_b64 %s, %s offset:%d" % (v(vOW), v(RB + 2 * q, 2), OB + 16 * OP * q))
    A("s_waitcnt lgkmcnt(0)")
    A("s_barrier")
    for j in range(2):
        A("ds_read_b128 %s, %s offset:%d" % (v(RB + 8 + 4 * j, 4), v(vOR), OB + 8 * OP * j))
    for j in range(2):
        A("s_waitcnt lgkmcnt(%d)" % (1 - j))
        A("buffer_store_dwordx4 %s, %s, %s, %s offen sc1" % (v(RB + 8 + 4 * j, 4), v(vOS), s(SOUT, 4), s(sT0 + j)))
    if E("XD", 0) >= 2:
        A("s_waitcnt vmcnt(0) lgkmcnt(0)")
        A("s_load_dword s66, s[68:69], 0")
        A("s_memrealtime s[72:73]")
        A("s_waitcnt lgkmcnt(0)")
        A("s_not_b32 s66, s66")
        A("s_sub_u32 s66, s74, s66")
        A("s_max_i32 s66, s66, 0")
        A("s_min_i32 s66, s66, 3000")
        A("s_mul_i32 s66, s66, %d" % E("EM", 10))
        A("L_echo:")
        A("s_memrealtime s[70:71]")
        A("s_waitcnt lgkmcnt(0)")
        A("s_sub_u32 s67, s70, s72")
        A("s_cmp_lt_u32 s67, s66")
        A("s_cbranch_scc1 L_echo")
    if E("XD", 0) == 1:
        A("s_getreg_b32 s66, hwreg(HW_REG_XCC_ID)")
        A("s_and_b32 s66, s66, 15")
        A("s_and_b32 s64, s64, 0xffff")
        A("s_mul_i32 s64, s64, 100")
        A("s_add_u32 s66, s66, s64")
        A("s_and_b32 s69, s69, 0xffff")
        A("s_mov_b32 s70, 64")
        A("s_mov_b32 s71, 0x20000")
        A("s_lshl_b32 s67, s2, 2")
        A("v_mov_b32 v1, 0")
        A("v_mov_b32 v2, s66")
        A("buffer_store_dword v2, v1, s[68:71], s67 offen")
    st(A, "ost")
    stamp_flush(A, 0, s(sWAVE), 14, "L_st", wave=-1)
    A("L_done:")
    A("s_endpgm")
    A("L_helper:")
    A("s_waitcnt vmcnt(0)")
    A(flag_store(FS1, "0"))
    A("s_barrier")
    if E("HL", 0):
        A("v_not_b32 %s, %s" % (v(vPOLL), v(vTAG)))
        poll_check("L_phl")
    L(bias_perm)
    L(w2_off)
    L(setup2 + table2)
    A("s_waitcnt lgkmcnt(0)")
    L(bias2)
    touch = ""
    if E("HT", 0):
        A("v_lshlrev_b32 %s, 12, v0" % v(vT0))
        A("s_bfe_u32 %s, s2, 0x10003" % s(sU1))
        A("s_mul_i32 %s, %s, %d" % (s(sU1), s(sU1), 192 * 4096))
        A("s_add_u32 %s, %s, %s" % (s(sU0), s(sW2BASE), s(sU1)))
        for n in range(3):
            A("s_add_u32 %s, %s, %d" % (s(sU1), s(sU0), n * 64 * 4096))
            A("buffer_load_dword v164, %s, %s, %s offen" % (v(vT0), s(SW2, 4), s(sU1)))
        A("s_waitcnt vmcnt(0)")
    if HP:
        assert XA2 == 1
        A("v_and_b32 %s, 3, v0" % v(vT0))
        A("v_lshlrev_b32 %s, 7, %s" % (v(vT0), v(vT0)))
        A("v_lshrrev_b32 %s, 2, v0" % v(vT1))
        A("v_lshl_add_u32 %s, %s, 12, %s" % (v(vT0), v(vT1), v(vT0)))
        A("s_and_b32 %s, s2, 7" % s(sU0))
        A("s_lshl_b32 %s, %s, 9" % (s(sU0), s(sU0)))
        A("s_mul_i32 %s, %s, %d" % (s(sU1), s(sWAVE), 12 * 32 * 4096))
        A("s_add_u32 %s, %s, %s" % (s(sU0), s(sU0), s(sU1)))
        A("s_bfe_u32 %s, s2, 0x10003" % s(sU1))
        A("s_lshl_b32 %s, %s, 16" % (s(sU1), s(sU1)))
        A("s_add_u32 %s, %s, %s" % (s(sU0), s(sU0), s(sU1)))
        order = [int(x) for x in os.environ.get("HPO", "8,9,10,11" if HO else "2,5,8,11").split(",")]
        for n in order[:HP]:
            touch += "s_add_u32 %s, %s, %d\n" % (s(sU1), s(sU0), n * 32 * 4096)
            touch += "buffer_load_dword v164, %s, %s, %s offen sc1\n" % (v(vT0), s(SW2, 4), s(sU1))
        if not E("HR", 0):
            A(touch)
            touch = ""
    L([t for t, _ in w2[:4 * EW + TE + T0 + MG0 + MG]])
    A("v_mov_b32 %s, %d" % (v(vEA), EPOCH))
    A("v_not_b32 %s, %s" % (v(vPOLL), v(vTAG)))
    if E("HW", 1):
        also = ""
        if E("HC", 1):
            A("s_getpc_b64 s[24:25]")
            A("L_pc2:")
            A("s_sub_u32 s24, s24, L_pc2 - L_p1_ok")
            A("s_subb_u32 s25, s25, 0")
            A("v_lshlrev_b32 %s, 7, v0" % v(vS0))
            A("v_lshl_add_u32 %s, %s, 13, %s" % (v(vS0), v(vWV), v(vS0)))
            A("v_min_u32 %s, L_helper - L_p1_ok - 4, %s" % (v(vS0), v(vS0)))
            also = "global_load_dword %s, %s, s[24:25] sc1" % (v(vS1), v(vS0))
        poll_check("L_ph", vEA, touch + also)
    A("s_waitcnt vmcnt(0) lgkmcnt(0)")
    A("s_branch L_join")
    A("L_end:")
    kernel_desc(A, NAME, 512, 256, 102)
    hdr = HEADER + "; @launch grid=(256,1,1) block=(256,1,1) lds=163840\n"
    txt = A.text()
    dbg = os.environ.get("DBG", "")
    if dbg:
        out = []
        for ln_ in txt.split("\n"):
            if "nohst" in dbg and "buffer_store_dwordx4" in ln_ and "v53" in ln_:
                ln_ = ln_.replace("buffer_store_dwordx4", "buffer_load_dwordx4").replace("v53", "v47").replace("s96", "0").replace("s97", "0").replace("s98", "0")
            if "plainh" in dbg and "buffer_store_dwordx4" in ln_ and "v53" in ln_:
                ln_ = ln_.replace(" sc1", "")
            if "nofl" in dbg and "buffer_store_dwordx4 v[20:23]" in ln_:
                ln_ = "    buffer_load_dword v164, v47, s[16:19], 0 offen"
            if "nobias" in dbg and ("s[24:27]" in ln_ or "s[28:31]" in ln_) and "buffer" in ln_:
                ln_ = "    buffer_load_dword v164, v47, s[16:19], 0 offen"
            if "nopoll" in dbg and "s_cbranch_vccz" in ln_:
                ln_ = ln_.replace("s_cbranch_vccz", "s_branch")
            if "nopoll" in dbg and "buffer_load_dword v18" in ln_:
                ln_ = "    buffer_load_dword v164, v47, s[16:19], 0 offen"
            if "w2hot" in dbg and "s[12:15]" in ln_ and " lds" in ln_:
                ln_ = ln_.replace(" lds", " sc1 lds").replace("s55", "s99")
            if "w1hot" in dbg and "s[8:11]" in ln_ and " lds" in ln_:
                ln_ = ln_.replace(" lds", " sc1 lds").replace("s55", "s99")
            if "acthot" in dbg and "buffer_load_dwordx4 v[" in ln_ and "s[16:19]" in ln_:
                import re
                ln_ = re.sub(r"s\[16:19\], s\d+", "s[16:19], s32", ln_)
            if "s[20:23]" in ln_ and "buffer_store" in ln_:
                if "noout" in dbg:
                    ln_ = "    s_nop 0" if "offset:1024" not in ln_ else ln_
                for f_ in ("sc1", "nt", "sc0"):
                    if "o" + f_ in dbg.split(",") and ("x4" in ln_ or "oall" in dbg):
                        ln_ += " " + f_
            if "buffer_load_dwordx4 v[" in ln_ and "s[16:19]" in ln_:
                if "aplain" in dbg:
                    ln_ = ln_.replace(" sc1", "")
                if "ant" in dbg:
                    ln_ += " nt"
                if "asc0" in dbg:
                    ln_ = ln_.replace(" sc1", " sc0 sc1")
            if " lds" in ln_ and "wsc1" in dbg:
                ln_ = ln_.replace(" lds", " sc1 lds")
            if "buffer_store_dwordx4" in ln_ and "s[16:19]" in ln_:
                if "ssc0" in dbg:
                    ln_ = ln_.replace(" sc1", " sc0 sc1")
                if "snt" in dbg:
                    ln_ += " nt"
            if "cyc" in dbg:
                ln_ = ln_.replace("s_memrealtime", "s_memtime")
            if "nomfma" in dbg and "v_mfma" in ln_:
                continue
            out.append(ln_)
        txt = "\n".join(out)
    return hdr + txt


if __name__ == "__main__":
    open(sys.argv[1], "w").write(gen())
```

```python
import sys, os
from asmlib import *

E = lambda k, d: int(os.environ.get(k, d))
STAMPS_ON = bool(E("STAMPS", 0))
set_stamps(STAMPS_ON)
_STL = os.environ.get("STL", "setup,x,hst,fl1,poll1,w1,g1,gst,fl2,poll2,w2,g2,ost").split(",")


def st(A, name):
    if name == os.environ.get("ES", ""):
        A("s_memrealtime s[74:75]")
    if name in _STL:
        stamp(A, 1 + _STL.index(name))


DOC = """;
; (atomic swap of this launch's tag) after its stores are acknowledged and each consuming wave polls the flags of
; the fragments it loads.  The tag is one LCG step on from the epoch word found in d_ws, which workgroup 0
; replaces once every workgroup has read it.  A weight tile is streamed into AGPRs while the hand-off is under way.
"""
NAME = "standalone__mixer_token_mlp__prompt_kernel"
S, D, F = 2048, 640, 1536
KSTEP_B = 40960
G_OFF = 0x280000
FL1 = 0x480000
FL2 = 0x490000
EPOCH = 0x4A0000
WS_SIZE = 0x4B0000
LNP = 1344
REG = 40960
SLOT = {1: [1 + i % 9 for i in range(16)], 2: [4, 5, 6, 7, 8, 9, 0, 1, 2, 4, 5, 6]}

DEPTH = E("DEPTH", 9)
N0 = E("N0", 8)
N0A = min(N0, E("N0A", 6))
NL = E("NL", 0)
DW1A = E("DW1A", 9)
DW1B = E("DW1B", 20)
DW2B = E("DW2B", 20)
DW1 = E("DW1", 10)
T0 = E("T0", 4)
DW2A = E("DW2A", 7)
DW2 = E("DW2", 10)
PE1 = E("PE1", 10)
PE2 = E("PE2", 7)
ROT1 = E("ROT1", 3)
ROT1X = E("ROT1X", 0)
ROT1T = os.environ.get("ROT1T", "")
C1M = E("C1M", 0)
ROT2 = E("ROT2", 3)
ROT2X = E("ROT2X", 0)
C2M = E("C2M", 0)
FS1 = E("FS1", 8)
FS2 = E("FS2", 64)
CP = E("CP", 2)
HP = E("HP", 4)
XA1 = E("XA1", 1)
XA2 = E("XA2", 1)
RM1, RS1 = E("RM1", 13), E("RS1", 3)
RP1 = E("RP1", 0)
RM2, RS2, RP2 = E("RM2", 3), E("RS2", 1), E("RP2", 0)
PRE = E("PRE", 100)
NF = E("NF", 14)
BL = E("BL", 6)
SA = E("SA", 1)
MG = E("MG", 0)
MG0 = E("MG0", 0)
PF = E("PF", 1)
SL = E("SL", 0)
EW = E("EW", 0)
EP = E("EP", 2)
NTX = " nt" if E("NTX", 0) else ""
NTW = E("NTW", 0)
if EW:
    SLOT = {1: [1 + i % 7 for i in range(16)], 2: [8, 9, 4, 5, 6, 7, 0, 1, 2, 8, 9, 4]}
FM, SM = E("FM", 3), E("SM", 0)
HO = E("HO", 0)
SPIN = 1 << 17
lg = lambda x: x.bit_length() - 1

SX, SW1, SW2, SWS, SOUT, SB1, SB2 = 4, 8, 12, 16, 20, 24, 28
ST = 32
sWAVE, sDT, sFT, sDT2, sST, sC, sRING, sWOFF = 48, 49, 50, 51, 52, 53, 54, 55
sT0, sT1, sT2, sWBASE, sWEND, sROT, sMAIN = 96, 97, 98, 99, 100, 101, 3
sTAG, sF1, sZ, sEP = 7, 62, 63, 0
sW2OFF, sW2BASE, sW2END, sROT2 = 58, 59, 60, 61
sU0, sU1, sU2 = 4, 5, 6
VW1, VW2, VT, VA = 1, 5, 9, 13
vTAG = 20
vPOLL, vPA, vFA, vXW, vXR, vX4 = 18, 19, 24, 25, 26, 29
vT0, vT1 = 30, 31
VB1 = 32
VB2 = 40
vX4B = 45
vS0, vS1, vEA = 167, 168, 169
vWV, vL16 = 46, 47
AB = 48
RB = 128
PS = 160
ACC = 176
vR8, vINR, vG, vI16, vB1R, vB2R = 160, 161, 162, 163, 165, 166


class VM:
    def __init__(self, A):
        self.A = A
        self.ops = []
        self.done = 0
        self.actions = []

    def op(self, text, tag, optional=False):
        self.ops.append((tag, optional))
        return text

    def last(self, tag):
        return max(i for i, (t, _) in enumerate(self.ops) if t == tag)

    def count(self, tag):
        n = sum(1 for (t, o) in self.ops[self.last(tag) + 1:] if not o)
        assert n <= 63
        return n

    def waitbig(self, n, only=None):
        k, c, m = len(self.ops), 0, 0
        small = lambda t: t in ("b", "fl1", "fl2", "ep", "poll1", "poll2")
        while k > 0 and (self.ops[k - 1][1] or small(self.ops[k - 1][0]) or c < n):
            if not self.ops[k - 1][1]:
                m += 1
                if not small(self.ops[k - 1][0]):
                    c += 1
            k -= 1
        self.waitn(m, only)

    def waitn(self, n, only=None):
        k, c = len(self.ops), 0
        while k > 0 and (self.ops[k - 1][1] or c < n):
            if not self.ops[k - 1][1]:
                c += 1
            k -= 1
        if k > self.done:
            self.A("s_waitcnt vmcnt(%d)" % n)
            self.done = k
        self.fire(only)

    def wait(self, tag):
        self.waitn(self.count(tag))

    def on(self, tag, fn):
        self.actions.append((tag, fn))

    def fire(self, only=None, limit=99):
        again = True
        while again and limit > 0:
            again = False
            limit -= 1
            for j, (tag, fn) in enumerate(self.actions):
                if only not in (None, tag):
                    continue
                if any(t == tag for t, _ in self.ops) and self.last(tag) < self.done:
                    self.actions.pop(j)
                    fn()
                    again = True
                    break


def srd(dst, src, bytes_):
    return ["s_mov_b32 %s, %s" % (s(dst), s(src)), "s_and_b32 %s, %s, 0xffff" % (s(dst + 1), s(src + 1)),
            "s_mov_b32 %s, %d" % (s(dst + 2), bytes_), "s_mov_b32 %s, 0x20000" % s(dst + 3)]


def reduce32(x, t):
    o = []
    for mod in ("quad_perm:[1,0,3,2]", "quad_perm:[2,3,0,1]", "row_half_mirror", "row_mirror"):
        o.append("s_nop 1\nv_add_f32_dpp %s, %s, %s %s row_mask:0xf bank_mask:0xf" % (v(x), v(x), v(x), mod))
    o.append("v_mov_b32 %s, %s\ns_nop 1\nv_permlane16_swap_b32 %s, %s\ns_nop 1\nv_add_f32 %s, %s, %s" % (v(t), v(x), v(t), v(x), v(x), v(x), v(t)))
    return o


def gen():
    A = Asm()
    vm = VM(A)

    def L(lst):
        for x in lst:
            A(x)

    A('.amdgcn_target "amdgcn-amd-amdhsa--gfx950"')
    kernel_begin(A, NAME)
    A.c('workgroups past the 256 that carry work leave at once')
    A("s_cmp_ge_u32 s2, 256")
    A("s_cbranch_scc1 L_done")
    A("s_load_dwordx16 s[32:47], s[0:1], 0")
    if E("XD", 0):
        A("s_memrealtime s[64:65]")
        A("s_load_dwordx2 s[68:69], s[0:1], 48")
    stamp_init(A)
    if CP:
        A.c("the first workgroups pull this kernel's code into L2 (one dword per 128-byte line)")
        A("s_cmp_ge_u32 s2, %d" % (8 * CP))
        A("s_cbranch_scc1 L_nocp")
        A("s_getpc_b64 s[4:5]")
        A("L_pc:")
        A("v_lshlrev_b32 v1, 7, v0")
        A("v_min_u32 v1, L_end - L_pc - 4, v1")
        A(vm.op("global_load_dword v164, v1, s[4:5]", "cp", True))
        A("L_nocp:")
    A.c('ids: wave, LayerNorm rows, GEMM1 tile (dt, ft), GEMM2 tile (dt2, st), weight-stream offsets')
    A("v_lshrrev_b32 %s, 6, v0" % v(vWV))
    A("v_lshrrev_b32 v48, 5, v0")
    A("v_readfirstlane_b32 %s, %s" % (s(sWAVE), v(vWV)))
    A("v_and_b32 v49, 31, v0")
    A("v_and_b32 v0, 63, v0")
    A("s_lshr_b32 %s, s2, 2" % s(sT0))
    A("s_and_b32 %s, s2, 3" % s(sT1))
    A("s_lshl_b32 %s, %s, 5" % (s(sT2), s(sT0)))
    A("s_lshl2_add_u32 %s, %s, %s" % (s(sT2), s(sT1), s(sT2)))
    A("v_and_b32 v50, 3, v48")
    A("v_lshrrev_b32 v51, 2, v48")
    A("v_lshl_add_u32 v50, v51, 4, v50")
    A("v_add_u32 v50, %s, v50" % s(sT2))
    A("v_mul_u32_u24 v50, 1280, v50")
    A("v_lshl_add_u32 v51, v49, 3, v50")
    A("v_lshl_add_u32 v50, v49, 4, v50")
    A("s_lshr_b32 %s, s2, 3" % s(sT0))
    A("s_cmp_lt_u32 %s, 30" % s(sT0))
    A("s_cselect_b32 %s, 1, 0" % s(sMAIN))
    A("s_min_u32 %s, %s, 29" % (s(sT1), s(sT0)))
    if XA1 == 2:
        A("s_mul_i32 %s, %s, 52" % (s(sFT), s(sT1)))
        A("s_lshr_b32 %s, %s, 8" % (s(sFT), s(sFT)))
        A("s_mul_i32 %s, %s, 5" % (s(sT2), s(sFT)))
        A("s_sub_u32 %s, %s, %s" % (s(sDT), s(sT1), s(sT2)))
        if ROT1T:
            tb = sum(int(x) << (4 * i) for i, x in enumerate(ROT1T.split(",")))
            A("s_lshl_b32 %s, %s, 2" % (s(sT2), s(sDT)))
            A("s_lshr_b32 %s, %d, %s" % (s(sROT), tb, s(sT2)))
        else:
            A("s_mul_i32 %s, %s, %d" % (s(sROT), s(sDT), ROT1))
        A("s_and_b32 %s, s2, 1" % s(sT1))
        if ROT1X:
            A("s_mul_i32 %s, %s, %d" % (s(sT2), s(sT1), ROT1X))
            A("s_add_u32 %s, %s, %s" % (s(sROT), s(sROT), s(sT2)))
        A("s_and_b32 %s, %s, 15" % (s(sROT), s(sROT)))
        A("s_mul_i32 %s, %s, 5" % (s(sT2), s(sT1)))
        A("s_add_u32 %s, %s, %s" % (s(sDT), s(sDT), s(sT2)))
        A("s_bfe_u32 %s, s2, 0x20001" % s(sT1))
        A("s_mul_i32 %s, %s, 6" % (s(sT2), s(sT1)))
        A("s_add_u32 %s, %s, %s" % (s(sFT), s(sFT), s(sT2)))
    else:
        A("s_mul_i32 %s, %s, 26" % (s(sFT), s(sT1)))
        A("s_lshr_b32 %s, %s, 8" % (s(sFT), s(sFT)))
        A("s_mul_i32 %s, %s, 10" % (s(sT2), s(sFT)))
        A("s_sub_u32 %s, %s, %s" % (s(sDT), s(sT1), s(sT2)))
        A("s_lshr_b32 %s, %s, %d" % (s(sROT), s(sDT), RP1))
        A("s_mul_i32 %s, %s, %d" % (s(sROT), s(sROT), RM1))
        A("s_lshr_b32 %s, %s, %d" % (s(sROT), s(sROT), RS1))
        A("s_and_b32 %s, %s, 15" % (s(sROT), s(sROT)))
        A("s_and_b32 %s, s2, 7" % s(sT1))
        if FM == 0:
            A("s_mul_i32 %s, %s, 3" % (s(sT2), s(sT1)))
            A("s_add_u32 %s, %s, %s" % (s(sFT), s(sFT), s(sT2)))
        else:
            A("s_xor_b32 %s, %s, %d" % (s(sT1), s(sT1), FM - 1))
            A("s_lshl3_add_u32 %s, %s, %s" % (s(sFT), s(sFT), s(sT1)))
    p1 = 3072
    A("s_mul_i32 %s, %s, %d" % (s(sWBASE), s(sWAVE), 16 * 32 * p1))
    A("s_lshl_b32 %s, %s, 7" % (s(sT2), s(sFT)))
    A("s_add_u32 %s, %s, %s" % (s(sWBASE), s(sWBASE), s(sT2)))
    A("s_add_u32 %s, %s, %d" % (s(sWEND), s(sWBASE), 16 * 32 * p1))
    A("s_mul_i32 %s, %s, %d" % (s(sWOFF), s(sROT), 32 * p1))
    A("s_add_u32 %s, %s, %s" % (s(sWOFF), s(sWOFF), s(sWBASE)))
    A("s_mul_i32 %s, %s, %d" % (s(sRING), s(sWAVE), REG))
    A("v_lshrrev_b32 %s, 3, v0" % v(vR8))
    A("v_bfe_u32 v54, v0, 1, 2")
    A("v_lshrrev_b32 %s, 4, v0" % v(vG))
    A("v_xor_b32 v54, v54, %s" % v(vG))
    A("v_lshlrev_b32 v54, 5, v54")
    A("v_and_b32 v56, 1, v0")
    A("v_lshl_add_u32 %s, v56, 4, v54" % v(vINR))
    A("v_mul_u32_u24 %s, %d, %s" % (v(VW1), p1, v(vR8)))
    A("v_add_u32 %s, %s, %s" % (v(VW1), v(VW1), v(vINR)))
    for q in range(1, 4):
        A("v_add_u32 %s, %d, %s" % (v(VW1 + q), q * (8 * p1 - 1024), v(VW1)))

    A("s_lshr_b32 %s, s2, 3" % s(sT0))
    A("s_and_b32 %s, %s, 7" % (s(sDT2), s(sT0)))
    A("s_lshr_b32 %s, %s, 3" % (s(sST), s(sT0)))
    A("s_and_b32 %s, s2, 7" % s(sT0))
    if SM == 0:
        A("s_lshl2_add_u32 %s, %s, %s" % (s(sST), s(sT0), s(sST)))
    elif SM == 1:
        A("s_xor_b32 %s, %s, %d" % (s(sT0), s(sT0), E("SX", 0)))
        A("s_lshl3_add_u32 %s, %s, %s" % (s(sST), s(sST), s(sT0)))
    else:
        A("s_and_b32 %s, %s, 1" % (s(sT1), s(sST)))
        A("s_lshr_b32 %s, %s, 1" % (s(sST), s(sST)))
        A("s_lshl3_add_u32 %s, %s, %s" % (s(sST), s(sST), s(sT0)))
        A("s_lshl1_add_u32 %s, %s, %s" % (s(sST), s(sST), s(sT1)))
    A("v_lshlrev_b32 %s, 2, v0" % v(vT0))
    A("v_lshlrev_b32 %s, 1, v0" % v(vT1))
    A("s_lshl_b32 %s, %s, 7" % (s(sT0), s(sFT)))
    A("s_lshl_b32 %s, %s, 7" % (s(sT1), s(sST)))
    A("s_mov_b32 %s, %d" % (s(sZ), EPOCH))
    srds = [(SX, 32, S * D * 2), (SB1, 36, F * 2), (SB2, 40, S * 2), (SW1, 34, S * F * 2), (SWS, 46, WS_SIZE), (SW2, 38, S * F * 2), (SOUT, 42, S * D * 2)]
    for d_, _, n_ in srds:
        L(srd(d_, 0, n_)[2:])
    st(A, "pre")
    A("s_waitcnt lgkmcnt(0)")
    st(A, "ka")
    A.c('x rows, biases, epoch word, first w1 slabs')
    L(srd(*srds[0])[:2])
    A(vm.op("buffer_load_dwordx4 v[60:63], v50, %s, 0 offen%s" % (s(SX, 4), NTX), "x"))
    A(vm.op("buffer_load_dwordx4 v[64:67], v50, %s, 0 offen offset:512%s" % (s(SX, 4), NTX), "x"))
    A(vm.op("buffer_load_dwordx2 v[68:69], v51, %s, 0 offen offset:1024%s" % (s(SX, 4), NTX), "x"))
    L(srd(*srds[1])[:2] + srd(*srds[2])[:2])
    bias_ops = [("buffer_load_dword %s, %s, %s, %s offen" % (v(vB1R), v(vT0), s(SB1, 4), s(sT0)), "b"),
                ("buffer_load_ushort %s, %s, %s, %s offen" % (v(vB2R), v(vT1), s(SB2, 4), s(sT1)), "b")]
    for x in bias_ops:
        A(vm.op(*x))
    L(srd(*srds[3])[:2] + srd(*srds[4])[:2])
    A("s_buffer_load_dword %s, %s, %s" % (s(sEP), s(SWS, 4), s(sZ)))
    if E("XD", 0) >= 2:
        A("s_mov_b32 s74, s64")
        A("s_lshr_b32 s66, s2, 3")
        A("s_or_b32 s66, s66, %s" % s(sWAVE))
        A("s_cbranch_scc1 L_nomin")
        A("s_not_b32 s66, s64")
        A("s_atomic_umax s66, s[68:69], 0")
        A("L_nomin:")
    if E("LATE", 0):
        A("s_bitcmp1_b32 s2, 2")
        A("s_cbranch_scc0 L_notlate")
        A("s_sleep %d" % E("LATE", 0))
        A("L_notlate:")
    st(A, "xi")

    def wdma(which, i):
        pitch = 3072 if which == 1 else 4096
        vw = VW1 if which == 1 else VW2
        sr = SW1 if which == 1 else SW2
        sWOFF, sWBASE, sWEND = (55, 99, 100) if which == 1 else (sW2OFF, sW2BASE, sW2END)
        nt = " nt" if which == 1 and i >= 16 - NTW else ""
        out = []
        for q in range(4):
            pre = "s_add_u32 m0, %s, %d\ns_nop 0\n" % (s(sRING), SLOT[which][i] * 4096) if q == 0 else ""
            post = ""
            if q == 3:
                post = "\ns_add_u32 %s, %s, %d\ns_cmp_eq_u32 %s, %s\ns_cselect_b32 %s, %s, %s" % (
                    s(sWOFF), s(sWOFF), 32 * pitch, s(sWOFF), s(sWEND), s(sWOFF), s(sWBASE), s(sWOFF))
            if q == 3 and which == 2 and HO:
                if i < 4:
                    post = "\ns_add_u32 %s, %s, %d" % (s(sWOFF), s(sWBASE), (8 + i) << 17)
                else:
                    post = "\ns_add_u32 %s, %s, %d\ns_and_b32 %s, %s, 0xfffff\ns_add_u32 %s, %s, %s" % (
                        s(sWEND), s(sWEND), 1 << 17, s(sWEND), s(sWEND), s(sWOFF), s(sWBASE), s(sWEND))
            out.append((pre + "buffer_load_dwordx4 %s, %s, %s offen offset:%d%s lds" % (v(vw + q), s(sr, 4), s(sWOFF), q * 1024, nt) + post,
                        "w%d_%d%s" % (which, i, "" if q == 3 else "_p")))
        return out

    def tr_reads(which, i):
        return ["ds_read_b64_tr_b16 %s, %s offset:%d" % (a(16 * i + b * 4 + 2 * t, 2), v(VT + b), SLOT[which][i] * 4096 + t * 2048)
                for b in range(4) for t in range(2)]

    w1 = [x for i in range(16) for x in wdma(1, i)]
    w2 = [x for i in range(12) for x in wdma(2, i)]
    for x in w1[:N0A]:
        A(vm.op(*x))
    st(A, "wi")
    A.c('addresses: LN staging, h stores, transposing reads, partial-sum exchange, step table, poll')
    A("v_and_b32 v56, 1, v48")
    A("v_mul_u32_u24 v56, %d, v56" % LNP)
    A("v_add_u32 v56, %s, v56" % s(sRING))
    A("v_and_b32 v54, 1, %s" % v(vWV))
    A("v_lshl_add_u32 v56, v54, 7, v56")
    A("v_lshl_add_u32 v51, v49, 3, v56")
    A("v_lshl_add_u32 v50, v49, 4, v56")
    A("v_and_b32 %s, 15, v0" % v(vI16))
    A("v_bfe_u32 v54, v0, 3, 1")
    A("v_bfe_u32 v56, v0, 2, 1")
    A("v_mul_u32_u24 v56, %d, v56" % LNP)
    A("v_mul_u32_u24 v54, %d, v54" % (REG + 128))
    A("v_and_b32 v58, 3, v0")
    A("v_add_u32 v56, v56, v54")
    A("v_lshl_add_u32 v56, v58, 3, v56")
    A("v_lshl_add_u32 v56, %s, 5, v56" % v(vG))
    A("v_lshl_add_u32 v52, %s, 7, v56" % v(vWV))
    A("v_add_u32 v55, %d, v52" % (2 * REG))
    A("v_lshlrev_b32 v53, 4, %s" % v(vI16))
    A("v_lshl_add_u32 v53, %s, 10, v53" % v(vG))
    A("v_lshl_add_u32 v53, %s, 12, v53" % v(vWV))
    A("s_lshr_b32 %s, s2, 2" % s(sT0))
    A("s_mul_i32 %s, %s, %d" % (s(sT0), s(sT0), KSTEP_B))
    A("s_and_b32 %s, s2, 3" % s(sT1))
    A("s_lshl_b32 %s, %s, 8" % (s(sT1), s(sT1)))
    A("s_add_u32 %s, %s, %s" % (s(sT0), s(sT0), s(sT1)))
    A("s_add_u32 %s, %s, 16384" % (s(sT1), s(sT0)))
    A("s_add_u32 %s, %s, 32768" % (s(sT2), s(sT0)))
    A("v_lshrrev_b32 v54, 2, v0")
    A("v_bfe_u32 v56, v0, 3, 2")
    A("v_lshlrev_b32 v54, 7, v54")
    A("v_lshl_add_u32 v54, v58, 3, v54")
    A("v_add_u32 v54, %s, v54" % s(sRING))
    for b in range(4):
        A("v_xor_b32 v59, %d, v56" % b)
        A("v_lshl_add_u32 %s, v59, 5, v54" % v(VT + b))
    A("v_lshlrev_b32 %s, 4, v0" % v(vL16))
    A("s_lshl_b32 %s, %s, 8" % (s(sC), s(sWAVE)))
    A("s_add_u32 %s, %s, s2" % (s(sC), s(sC)))
    A("s_lshl_b32 %s, %s, %d" % (s(sC), s(sC), lg(FS1)))
    A("s_add_u32 %s, %s, %d" % (s(sC), s(sC), FL1))
    A("s_mov_b32 %s, %s" % (s(sF1), s(sC)))
    def flag_store(size, soff):
        if SA:
            return "s_buffer_atomic_swap %s, %s, %s" % (s(sTAG), s(SWS, 4), s(sF1) if soff == "0" else soff)
        return "s_mov_b64 exec, %d\nbuffer_store_dwordx4 %s, %s, %s, %s offen sc1\ns_mov_b64 exec, -1" % (
            (1 << (size // 16)) - 1, v(vTAG, 4), v(vFA), s(SWS, 4), soff)

    def table(ns, rot):
        o = ["s_add_u32 %s, %s, %d" % (s(sU1), s(sU0), ns * KSTEP_B),
             "s_mul_i32 %s, %s, %d" % (s(ST), s(rot), KSTEP_B),
             "s_add_u32 %s, %s, %s" % (s(ST), s(ST), s(sU0))]
        for i in range(1, ns):
            o.append("s_add_u32 %s, %s, %d\ns_cmp_eq_u32 %s, %s\ns_cselect_b32 %s, %s, %s" % (
                s(ST + i), s(ST + i - 1), KSTEP_B, s(ST + i), s(sU1), s(ST + i), s(sU0), s(ST + i)))
        return o

    def twist(mask, src):
        if mask == 2:
            o = ["s_and_b32 %s, %s, 1" % (s(sC), s(src)), "s_lshl_b32 %s, %s, 1" % (s(sC), s(sC))]
        else:
            o = ["s_and_b32 %s, %s, %d" % (s(sC), s(src), mask)]
        o.append("s_xor_b32 %s, %s, %s" % (s(sC), s(sC), s(sWAVE)))
        for j in range(4):
            o.append("s_xor_b32 %s, %s, %d\ns_lshl_b32 %s, %s, 10\nv_add_u32 %s, %s, %s" % (
                s(sU0), s(sC), j, s(sU0), s(sU0), v(VA + j), s(sU0), v(vL16)))
        return o

    assert XA2 == 1 and SA and PRE == 100
    common = srd(*srds[5])[:2] + srd(*srds[6])[:2] + ["v_lshl_add_u32 %s, %s, 12, %s" % (v(VW2), v(vR8), v(vINR))]
    common += ["v_add_u32 %s, %d, %s" % (v(VW2 + q), q * (8 * 4096 - 1024), v(VW2)) for q in range(1, 4)]
    common += ["v_add_u32 %s, %s, %s" % (v(vXW), s(sRING), v(vL16))]
    common += ["s_xor_b32 %s, %s, %d\ns_mul_i32 %s, %s, %d\nv_add_u32 %s, %s, %s" % (
        s(sU0), s(sWAVE), j, s(sU0), s(sU0), REG, v(vXR + j - 1), s(sU0), v(vL16)) for j in range(1, 4)]
    common += ["v_lshl_add_u32 %s, %s, 10, %s" % (v(vX4), v(vWV), v(vL16)), "v_add_u32 %s, %d, %s" % (v(vX4B), 2 * REG, v(vX4))]
    bias_perm = ["v_lshlrev_b32 %s, 3, %s" % (v(vT0), v(vG)), "v_lshlrev_b32 %s, 2, %s" % (v(vT1), v(vI16))]
    bias_perm += ["ds_bpermute_b32 %s, %s, %s offset:%d" % (v(VB1 + e), v(vT0), v(vB1R), (8 * (e >> 1) + (e & 1)) * 4) for e in range(8)]
    bias_perm += ["ds_bpermute_b32 %s, %s, %s offset:%d" % (v(VB2 + q), v(vT1), v(vB2R), 64 * q) for q in range(4)]
    main1 = ["s_mul_i32 %s, %s, %d" % (s(sU0), s(sWAVE), 16 * KSTEP_B),
             "s_lshl_b32 %s, %s, 12" % (s(sU1), s(sDT)),
             "s_add_u32 %s, %s, %s" % (s(sU0), s(sU0), s(sU1))] + table(16, sROT) + twist(C1M, sFT)
    main1 += ["s_and_b32 %s, %s, 3" % (s(sU0), s(sDT)),
              "s_lshl2_add_u32 %s, %s, %s" % (s(sU0), s(sU0), s(sWAVE)),
              "s_lshl_b32 %s, %s, %d" % (s(sU0), s(sU0), 6 + lg(FS1)),
              "s_add_u32 %s, %s, %d" % (s(sU0), s(sU0), FL1),
              "v_lshl_add_u32 %s, v0, %d, %s" % (v(vPA), lg(FS1), s(sU0))]
    w2_off = ["s_mul_i32 %s, %s, %d" % (s(sROT2), s(sDT2), ROT2), "s_and_b32 %s, s2, 1" % s(sU0)]
    if ROT2X:
        w2_off += ["s_mul_i32 %s, %s, %d" % (s(sU1), s(sU0), ROT2X), "s_add_u32 %s, %s, %s" % (s(sROT2), s(sROT2), s(sU1))]
    w2_off += ["s_cmp_ge_u32 %s, 12\ns_cselect_b32 %s, 12, 0\ns_sub_u32 %s, %s, %s" % (s(sROT2), s(sU1), s(sROT2), s(sROT2), s(sU1))] * (2 if ROT2 * 3 + ROT2X >= 24 else 1)
    if XA2 == 2:
        w2_off += ["s_lshl2_add_u32 %s, %s, %s" % (s(sDT2), s(sU0), s(sDT2))]
    else:
        w2_off = ["s_lshr_b32 %s, %s, %d" % (s(sROT2), s(sDT2), RP2), "s_mul_i32 %s, %s, %d" % (s(sROT2), s(sROT2), RM2),
                  "s_lshr_b32 %s, %s, %d" % (s(sROT2), s(sROT2), RS2)]
        assert ((7 >> RP2) * RM2) >> RS2 < 12
    w2_off += [
               "s_mul_i32 %s, %s, %d" % (s(sW2BASE), s(sWAVE), 12 * 32 * 4096),
               "s_lshl_b32 %s, %s, 7" % (s(sU1), s(sST)),
               "s_add_u32 %s, %s, %s" % (s(sW2BASE), s(sW2BASE), s(sU1)),
               "s_add_u32 %s, %s, %d" % (s(sW2END), s(sW2BASE), 12 * 32 * 4096),
               "s_lshl_b32 %s, %s, 17" % (s(sW2OFF), s(sROT2)),
               "s_add_u32 %s, %s, %s" % (s(sW2OFF), s(sW2OFF), s(sW2BASE))]

    if HO:
        w2_off = ["s_mul_i32 %s, %s, %d" % (s(sW2BASE), s(sWAVE), 12 * 32 * 4096),
                  "s_lshl_b32 %s, %s, 7" % (s(sU1), s(sST)),
                  "s_add_u32 %s, %s, %s" % (s(sW2BASE), s(sW2BASE), s(sU1)),
                  "s_lshl_b32 %s, %s, 17" % (s(sW2END), s(sDT2)),
                  "s_add_u32 %s, %s, %s" % (s(sW2OFF), s(sW2END), s(sW2BASE))]
    st(A, "s1")
    L(common)
    st(A, "s2")
    if EW:
        L(w2_off)
        w2_off = []
    npre = len(main1) * PRE // 100
    L(main1[:npre])
    for x in w1[N0A:N0]:
        A(vm.op(*x))
    st(A, "setup")
    A.c('==== LayerNorm of 8 rows (two per wave, one per half-wave), two-pass, fp32')
    vm.wait("x")
    st(A, "x")
    X = 70
    ln = []
    for q in range(10):
        ln.append("v_lshlrev_b32 %s, 16, %s" % (v(X + 2 * q), v(60 + q)))
        ln.append("v_and_b32 %s, 0xffff0000, %s" % (v(X + 1 + 2 * q), v(60 + q)))
    ln.append("v_pk_add_f32 v[60:61], %s, %s" % (v(X, 2), v(X + 2, 2)))
    ln.append("v_pk_add_f32 v[62:63], %s, %s" % (v(X + 4, 2), v(X + 6, 2)))
    for q in range(8, 20, 4):
        ln.append("v_pk_add_f32 v[60:61], v[60:61], %s" % v(X + q, 2))
        ln.append("v_pk_add_f32 v[62:63], v[62:63], %s" % v(X + q + 2, 2))
    ln.append("v_pk_add_f32 v[60:61], v[60:61], v[62:63]")
    ln.append("v_add_f32 v60, v60, v61")
    ln += reduce32(60, 61)
    ln.append("v_mul_f32 v60, %s, v60" % f32(-1.0 / 640))
    for q in range(0, 20, 2):
        ln.append("v_pk_add_f32 %s, %s, v[60:61] op_sel_hi:[1,0]" % (v(X + q, 2), v(X + q, 2)))
    ln.append("v_pk_mul_f32 v[62:63], %s, %s" % (v(X, 2), v(X, 2)))
    ln.append("v_pk_mul_f32 v[64:65], %s, %s" % (v(X + 2, 2), v(X + 2, 2)))
    for q in range(4, 20, 4):
        ln.append("v_pk_fma_f32 v[62:63], %s, %s, v[62:63]" % (v(X + q, 2), v(X + q, 2)))
        ln.append("v_pk_fma_f32 v[64:65], %s, %s, v[64:65]" % (v(X + q + 2, 2), v(X + q + 2, 2)))
    ln.append("v_pk_add_f32 v[62:63], v[62:63], v[64:65]")
    ln.append("v_add_f32 v62, v62, v63")
    ln += reduce32(62, 63)
    ln.append("v_mul_f32 v62, %s, v62" % f32(1.0 / 640))
    ln.append("v_cvt_pk_bf16_f32 v64, v60, v62")
    ln.append("v_lshlrev_b32 v66, 16, v64")
    ln.append("v_and_b32 v64, 0xffff0000, v64")
    ln.append("v_add_f32 v64, %s, v64" % f32(1e-5))
    ln.append("v_cvt_pk_bf16_f32 v64, v64, v64")
    ln.append("v_lshlrev_b32 v64, 16, v64")
    ln.append("v_sqrt_f32 v64, v64\nv_sub_f32 v66, v66, v60")
    ln.append("v_cvt_pk_bf16_f32 v64, v64, v64")
    ln.append("v_lshlrev_b32 v64, 16, v64")
    ln.append("v_rcp_f32 v64, v64\ns_nop 0")
    ln.append("v_mul_f32 v66, v66, v64")
    for q in range(0, 20, 2):
        ln.append("v_pk_fma_f32 %s, %s, v[64:65], v[66:67] op_sel_hi:[1,0,0]" % (v(X + q, 2), v(X + q, 2)))
    for q in range(10):
        ln.append("v_cvt_pk_bf16_f32 %s, %s, %s" % (v(60 + q), v(X + 2 * q), v(X + 1 + 2 * q)))
    if E("L1", 0):
        ln = ["ds_swizzle_b32 v90, v60 offset:0"]
        for q in range(10):
            ln.append("v_lshlrev_b32 %s, 16, %s" % (v(X + 2 * q), v(60 + q)))
            ln.append("v_and_b32 %s, 0xffff0000, %s" % (v(X + 1 + 2 * q), v(60 + q)))
        ln.append("s_waitcnt lgkmcnt(0)\nv_lshlrev_b32 v90, 16, v90")
        for q in range(0, 20, 2):
            ln.append("v_pk_add_f32 %s, %s, v[90:91] op_sel_hi:[1,0] neg_lo:[0,1] neg_hi:[0,1]" % (v(X + q, 2), v(X + q, 2)))
        ln.append("v_pk_add_f32 v[60:61], %s, %s" % (v(X, 2), v(X + 2, 2)))
        ln.append("v_pk_mul_f32 v[62:63], %s, %s" % (v(X, 2), v(X, 2)))
        ln.append("v_pk_mul_f32 v[64:65], %s, %s" % (v(X + 2, 2), v(X + 2, 2)))
        for q in range(4, 20, 2):
            ln.append("v_pk_add_f32 v[60:61], v[60:61], %s" % v(X + q, 2))
            r_ = 62 + (q & 2)
            ln.append("v_pk_fma_f32 %s, %s, %s, %s" % (v(r_, 2), v(X + q, 2), v(X + q, 2), v(r_, 2)))
        ln.append("v_add_f32 v60, v60, v61")
        ln.append("v_pk_add_f32 v[62:63], v[62:63], v[64:65]")
        ln.append("v_add_f32 v62, v62, v63")
        for mod in ("quad_perm:[1,0,3,2]", "quad_perm:[2,3,0,1]", "row_half_mirror", "row_mirror"):
            ln.append("v_add_f32_dpp v60, v60, v60 %s row_mask:0xf bank_mask:0xf\ns_nop 0\nv_add_f32_dpp v62, v62, v62 %s row_mask:0xf bank_mask:0xf" % (mod, mod))
        ln.append("v_mov_b32 v61, v60\nv_mov_b32 v63, v62\ns_nop 0\nv_permlane16_swap_b32 v61, v60\nv_permlane16_swap_b32 v63, v62\ns_nop 0")
        ln.append("v_add_f32 v60, v60, v61\nv_add_f32 v62, v62, v63")
        ln.append("v_mul_f32 v60, %s, v60" % f32(-1.0 / 640))
        ln.append("v_mul_f32 v62, %s, v62" % f32(1.0 / 640))
        ln.append("v_fma_f32 v62, -v60, v60, v62")
        ln.append("v_max_f32 v62, 0, v62")
        if E("L1", 0) == 1:
            ln += ["v_sub_f32 v61, v90, v60", "v_cvt_pk_bf16_f32 v64, v61, v62", "v_lshlrev_b32 v66, 16, v64", "v_and_b32 v64, 0xffff0000, v64",
                   "v_add_f32 v64, %s, v64" % f32(1e-5), "v_cvt_pk_bf16_f32 v64, v64, v64", "v_lshlrev_b32 v64, 16, v64",
                   "v_sqrt_f32 v64, v64\nv_sub_f32 v66, v90, v66", "v_cvt_pk_bf16_f32 v64, v64, v64", "v_lshlrev_b32 v64, 16, v64",
                   "v_rcp_f32 v64, v64\ns_nop 0", "v_mul_f32 v66, v66, v64"]
        else:
            ln += ["v_add_f32 v64, %s, v62" % f32(1e-5), "v_rsq_f32 v64, v64\ns_nop 0", "v_mul_f32 v66, v60, v64"]
        for q in range(0, 20, 2):
            ln.append("v_pk_fma_f32 %s, %s, v[64:65], v[66:67] op_sel_hi:[1,0,0]" % (v(X + q, 2), v(X + q, 2)))
        for q in range(10):
            ln.append("v_cvt_pk_bf16_f32 %s, %s, %s" % (v(60 + q), v(X + 2 * q), v(X + 1 + 2 * q)))
    k = N0
    stepn = E("NLS", 0) or len(ln) // (NL + 1)
    for n, x in enumerate(ln):
        A(x)
        if n % stepn == 0 and k < N0 + NL:
            A(vm.op(*w1[k]))
            k += 1
    st(A, "lnm")
    A.c('transpose through LDS into MFMA fragment order, publish h (write-through)')
    A("ds_write_b128 v50, v[60:63]")
    A("ds_write_b128 v50, v[64:67] offset:512")
    A("ds_write_b64 v51, v[68:69] offset:1024")
    A("s_waitcnt lgkmcnt(0)")
    A("s_barrier")
    st(A, "lnb")
    A("ds_read_b64_tr_b16 v[60:61], v52")
    A("ds_read_b64_tr_b16 v[62:63], v55")
    A("ds_read_b64_tr_b16 v[64:65], v52 offset:512")
    A("ds_read_b64_tr_b16 v[66:67], v55 offset:512")
    A("s_mul_i32 %s, %s, 0x41c64e6d" % (s(sTAG), s(sEP)))
    A("s_add_u32 %s, %s, 0x3039" % (s(sTAG), s(sTAG)))
    A("v_mov_b32 %s, %s" % (v(vTAG), s(sTAG)))
    HD, HS = E("HD", 0), E("HS", 0)
    if HD + HS == 0:
        A("s_cmp_ge_u32 %s, 2" % s(sWAVE))
        A("s_cbranch_scc1 L_ln_two")
        A("ds_read_b64_tr_b16 v[68:69], v52 offset:1024")
        A("ds_read_b64_tr_b16 v[70:71], v55 offset:1024")
        A("s_waitcnt lgkmcnt(0)")
        A(vm.op("buffer_store_dwordx4 v[68:71], v53, %s, %s offen sc1" % (s(SWS, 4), s(sT2)), "hst", True))
        A("L_ln_two:")
        A("s_waitcnt lgkmcnt(0)")
        A(vm.op("buffer_store_dwordx4 v[60:63], v53, %s, %s offen sc1" % (s(SWS, 4), s(sT0)), "hst"))
        A(vm.op("buffer_store_dwordx4 v[64:67], v53, %s, %s offen sc1" % (s(SWS, 4), s(sT1)), "hst"))
    else:
        A("ds_read_b64_tr_b16 v[68:69], v52 offset:1024")
        A("ds_read_b64_tr_b16 v[70:71], v55 offset:1024")
        kk = N0 + NL
        for g_ in range(3):
            for x in w1[kk:kk + (HS if g_ else HD)]:
                vm.waitbig(DW1A - 1)
                A(vm.op(*x))
            kk += HS if g_ else HD
            if g_ == 0:
                A("s_waitcnt lgkmcnt(0)")
                A(vm.op("buffer_store_dwordx4 v[60:63], v53, %s, %s offen sc1" % (s(SWS, 4), s(sT0)), "hst"))
            if g_ == 1:
                A("s_cmp_ge_u32 %s, 2" % s(sWAVE))
                A("s_cbranch_scc1 L_ln_two")
                A(vm.op("buffer_store_dwordx4 v[68:71], v53, %s, %s offen sc1" % (s(SWS, 4), s(sT2)), "hst", True))
                A("L_ln_two:")
            if g_ == 2:
                A(vm.op("buffer_store_dwordx4 v[64:67], v53, %s, %s offen sc1" % (s(SWS, 4), s(sT1)), "hst"))
    st(A, "hst")
    A("s_cmp_eq_u32 %s, 0" % s(sMAIN))
    A("s_cbranch_scc1 L_helper")

    def poll_check(lab, vPA=vPA, also=""):
        A("v_cmp_ne_u32 vcc, %s, %s" % (v(vPOLL), v(vTAG)))
        A("s_cbranch_vccz %s_ok" % lab)
        A("s_mov_b32 %s, 0" % s(sU2))
        A("%s_spin:" % lab)
        A(also)
        A("buffer_load_dword %s, %s, %s, 0 offen sc1" % (v(vPOLL), v(vPA), s(SWS, 4)))
        A("s_add_u32 %s, %s, 1" % (s(sU2), s(sU2)))
        A("s_cmp_ge_u32 %s, %d" % (s(sU2), SPIN))
        A("s_waitcnt vmcnt(0)")
        A("s_cbranch_scc1 %s_ok" % lab)
        if SL:
            A("s_sleep %d" % SL)
        A("v_cmp_ne_u32 vcc, %s, %s" % (v(vPOLL), v(vTAG)))
        A("s_cbranch_vccnz %s_spin" % lab)
        A("%s_ok:" % lab)

    def w_stream(which, ns, ops, k0, da, db, d, pe, acts, fill, sttag, flag_fn, after_flag, late):
        state = {"read": -1, "safe": -1, "flag": False}

        def mk(i):
            def fn():
                st(A, "w%d_%d" % (which, i))
                if state["read"] >= 0:
                    A("s_waitcnt lgkmcnt(7)")
                    state["safe"] = state["read"] - 1
                L(tr_reads(which, i))
                state["read"] = i
            return fn

        def flag():
            flag_fn()
            state["flag"] = True

        vm.on(sttag, flag)
        for i in range(ns):
            vm.on("w%d_%d" % (which, i), mk(i))
        fill = list(fill)
        seq = list(ops[k0:])
        mx = E("MX%d" % which, 0)
        held = seq[len(seq) - mx:]
        seq = seq[:len(seq) - mx]
        acts = [x for pr in zip(acts, held) for x in pr] + list(acts[mx:]) + held[len(acts):]
        seq.insert(max(0, len(seq) - pe), ("buffer_load_dword %s, %s, %s, 0 offen sc1" % (v(vPOLL), v(vPA), s(SWS, 4)), "poll%d" % which))
        nfill = (len(fill) + NF - 1) // NF
        after = list(after_flag)
        while seq:
            if state["flag"] and after and not fill:
                for x in after:
                    A(vm.op(*x) if x[1] else x[0])
                after = []
            t, tag = seq.pop(0)
            slow = [j for j, (tg, _) in enumerate(vm.ops) if tg in ("b", "fl1", "fl2", "ep")]
            if not state["flag"]:
                cur = da
            elif after or (slow and max(slow) >= vm.done):
                cur = db
            else:
                cur = max(d, cur - 2)
            vm.waitbig(cur - 1, sttag)
            if tag.startswith("poll"):
                assert not fill and state["flag"]
            if t.startswith("s_add_u32 m0") and tag.startswith("w%d" % which):
                i = int(tag.split("_")[1])
                prev = max([j for j in range(i) if SLOT[which][j] == SLOT[which][i]] + [-1])
                if prev > state["safe"]:
                    vm.wait("w%d_%d" % (which, prev))
                    A("s_waitcnt lgkmcnt(0)")
                    state["safe"] = state["read"]
            A(vm.op(t, tag))
            vm.fire(limit=1)
            L(fill[:nfill])
            fill = fill[nfill:]
        assert not after
        L(late)
        vm.wait("poll%d" % which)
        poll_check("L_p%d" % which)
        st(A, "poll%d" % which)
        for t, tag in acts:
            vm.waitbig(d - 1, sttag)
            if t.startswith("s_add_u32 m0"):
                i = int(tag.split("_")[1])
                assert max([j for j in range(i) if SLOT[which][j] == SLOT[which][i]] + [-1]) <= state["safe"]
            A(vm.op(t, tag))
            vm.fire()
        vm.wait("w%d_%d" % (which, ns - 1))
        assert not vm.actions
        A("s_waitcnt lgkmcnt(0)")

    GR, GE = E("GR", 1), E("GE", 4)
    DEP = {1: E("DEPTH1", DEPTH), 2: DEPTH}
    NBF = {k: x + GR for k, x in DEP.items()}
    assert max(NBF.values()) <= 20

    def act_load(which, n, ns, va_of_block):
        blk, i = divmod(n, ns)
        return ("buffer_load_dwordx4 %s, %s, %s, %s offen sc1" % (v(AB + (n % NBF[which]) * 4, 4), v(va_of_block(blk)), s(SWS, 4), s(ST + i)), "a%d_%d" % (which, n))

    def units(which, ns, nblk, va_of_block, tail_vm, extra, preset):
        nun = ns * nblk
        tail_vm = list(tail_vm)
        DEPTH, NBUF = DEP[which], NBF[which]
        for n in range(nun):
            blk, i = divmod(n, ns)
            gr = GR if n < nun - GE else 1
            if n % gr == 0:
                vm.wait("a%d_%d" % (which, n + gr - 1))
            st(A, "u%d_%d" % (which, n))
            fill = []
            if n + DEPTH < nun:
                fill.append(vm.op(*act_load(which, n + DEPTH, ns, va_of_block)))
            elif tail_vm and n >= E("TU", 0):
                fill.append(vm.op(*tail_vm.pop(0)))
            fill += [vm.op(*x) if isinstance(x, tuple) else x for x in extra.get(n, [])]
            m = []
            for k in range(4):
                e = (n % gr) * 4 + k
                o, dn = e // gr, e % gr - n % gr
                ar = v(AB + ((n + dn) % NBUF) * 4, 4)
                d = v(ACC + blk * 16 + o * 4, 4)
                wr = a(16 * (i + dn) + 4 * o, 4)
                c = "0" if i + dn == 0 and blk not in preset else d
                m.append("v_mfma_f32_16x16x32_bf16 %s, %s, %s, %s" % ((d, wr, ar, c) if which == 1 else (d, ar, wr, c)))
            if E("LF", 0) and fill and fill[0].startswith("buffer_load"):
                A(fill.pop(0))
            L(interleave(m, fill, 0, 1, max((len(fill) + 3) // 4, 1)))
        assert not tail_vm

    def xwrites(blk, slot):
        return ["ds_write_b128 %s, %s offset:%d" % (v(vXW), v(ACC + blk * 16 + o * 4, 4), slot * 4096 + o * 1024) for o in range(4)]

    def add_extra(extra, n, lst):
        extra.setdefault(n, []).extend(lst)

    va1 = lambda blk: VA + 3 - blk

    bias1 = [("v_and_b32 %s, 0xffff0000, %s" if e & 1 else "v_lshlrev_b32 %s, 16, %s") % (v(ACC + e), v(VB1 + e // 2)) for e in range(16)]

    def flag1():
        A(flag_store(FS1, "0") if SA else vm.op(flag_store(FS1, "0"), "fl1"))
        st(A, "fl1")

    A.c('==== w1 tile: LDS-DMA slabs -> transposing reads -> AGPRs; flag 1 once the h stores are done; poll; first h loads')
    assert 4 * EP >= N0 + NL or not EW
    w1 = w1[:4 * EP] + w2[:4 * EW] + w1[4 * EP:]
    w_stream(1, 16, w1, N0 + NL + HD + 2 * HS, DW1A, DW1B, DW1, PE1, [act_load(1, n, 16, va1) for n in range(DEP[1])], main1[npre:], "hst", flag1, [("s_waitcnt lgkmcnt(3)\n" + "\n".join(bias_perm), None)], bias1)
    st(A, "w1")
    extra = {}
    for n, x in enumerate(w2_off):
        add_extra(extra, 2 + n // 2, [x])
    for blk in range(3):
        w = xwrites(blk, blk + 1)
        for o in range(4):
            add_extra(extra, 16 * (blk + 1) + 2 + (o // 2 if blk == 2 else o), [w[o]])
    k1 = 2 * 0.7978845608028654 * 1.4426950408889634
    k3 = k1 * 0.044715
    gs = ["v_mov_b32 %s, %s" % (v(vT0), f32(-k3)), "v_mov_b32 %s, %s" % (v(vT1), f32(-k1)),
          "s_lshl2_add_u32 %s, %s, %s" % (s(sT2), s(sDT), s(sC)),
          "s_mul_i32 %s, %s, %d" % (s(sT0), s(sFT), 2 * KSTEP_B),
          "s_lshl_b32 %s, %s, 10" % (s(sT1), s(sT2)),
          "s_add_u32 %s, %s, %s" % (s(sT0), s(sT0), s(sT1)),
          "s_add_u32 %s, %s, %d" % (s(sT0), s(sT0), G_OFF),
          "s_add_u32 %s, %s, %d" % (s(sT1), s(sT0), KSTEP_B),
          "s_mul_i32 %s, %s, 24" % (s(sT2), s(sT2)),
          "s_add_u32 %s, %s, %s" % (s(sT2), s(sT2), s(sFT)),
          "s_lshl_b32 %s, %s, %d" % (s(sT2), s(sT2), lg(FS2)),
          "s_add_u32 %s, %s, %d" % (s(sT2), s(sT2), FL2),
          "v_mov_b32 %s, %s" % (v(vFA), v(vL16))]
    if PF:
        gs += ["s_mov_b32 %s, 0" % s(sZ), "s_buffer_atomic_or %s, %s, %s" % (s(sZ), s(SWS, 4), s(sT2))]
    for n, x in enumerate(gs):
        add_extra(extra, 23 + n // 2, [x])

    def xread(dst, j):
        return ["ds_read_b128 %s, %s offset:%d" % (v(dst + o * 4, 4), v(vXR + j - 1), (4 - j) * 4096 + o * 1024) for o in range(4)]

    def exchange(extra, own, first_own, nb):
        add_extra(extra, nb, ["s_waitcnt lgkmcnt(0)\ns_barrier"])
        add_extra(extra, nb + 1, xread(own, 3))
        add_extra(extra, nb + 2, xread(RB, 2))
        adds = ["v_add_f32 %s, %s, %s" % (v(own + e), v(own + e), v(RB + e)) for e in range(16)]
        return adds

    adds = exchange(extra, ACC + 48, 48, 39)
    adds[0] = "s_waitcnt lgkmcnt(0)\n" + adds[0]
    for e in range(16):
        add_extra(extra, 43 + e // 4, [adds[e]])
    add_extra(extra, 64 - BL, ["s_waitcnt lgkmcnt(0)\ns_barrier"])
    for o, x in enumerate(xread(PS, 1)):
        add_extra(extra, 65 - BL + o // 2, [x])
    assert C1M == 0 and C2M == 0
    setup2 = ["s_mul_i32 %s, %s, -3072" % (s(sU0), s(sDT2)),
                                "s_add_u32 %s, %s, 32768" % (s(sU0), s(sU0)),
                                "v_add_u32 %s, %s, %s" % (v(VA + 4), s(sU0), v(vL16)),
                                "v_min_u32 %s, 29, v0" % v(vS0),
                                "v_mul_u32_u24 %s, 43, %s" % (v(vS1), v(vS0)),
                                "v_lshrrev_b32 %s, 8, %s" % (v(vS1), v(vS1)),
                                "v_lshrrev_b32 %s, 2, %s" % (v(vPA), v(vS1)),
                                "v_mul_u32_u24 %s, 18, %s" % (v(vS1), v(vS1)),
                                "v_add_u32 %s, %s, %s" % (v(vS0), v(vS0), v(vS1)),
                                "s_mul_i32 %s, %s, -72" % (s(sU0), s(sDT2)),
                                "s_add_u32 %s, %s, %d" % (s(sU0), s(sU0), 28 * 24),
                                "v_mad_u32_u24 %s, %s, %s, %s" % (v(vS0), v(vPA), s(sU0), v(vS0)),
                                "s_mul_i32 %s, %s, 96" % (s(sU0), s(sDT2)),
                                "s_mul_i32 %s, %s, 6" % (s(sU1), s(sWAVE)),
                                "s_add_u32 %s, %s, %s" % (s(sU0), s(sU0), s(sU1)),
                                "s_lshl_b32 %s, %s, %d" % (s(sU0), s(sU0), lg(FS2)),
                                "s_add_u32 %s, %s, %d" % (s(sU0), s(sU0), FL2),
                                "v_lshl_add_u32 %s, %s, %d, %s" % (v(vPA), v(vS0), lg(FS2), s(sU0)),
                                "s_mul_i32 %s, %s, %d" % (s(sU0), s(sWAVE), 12 * KSTEP_B),
                                "s_lshl_b32 %s, %s, 12" % (s(sU1), s(sDT2)),
                                "s_add_u32 %s, %s, %s" % (s(sU0), s(sU0), s(sU1)),
                                "s_add_u32 %s, %s, %d" % (s(sU0), s(sU0), G_OFF)]
    table2 = table(12, sROT2)
    if HO:
        table2 = ["s_add_u32 %s, %s, %d" % (s(sU1), s(sU0), 8 * KSTEP_B),
                  "s_mul_i32 %s, %s, %d" % (s(ST), s(sDT2), KSTEP_B), "s_add_u32 %s, %s, %s" % (s(ST), s(ST), s(sU0))]
        table2 += ["s_add_u32 %s, %s, %d" % (s(ST + i), s(sU0), (7 + i) * KSTEP_B) for i in range(1, 5)]
        for i in range(5, 12):
            table2.append("s_add_u32 %s, %s, %d\ns_cmp_eq_u32 %s, %s\ns_cselect_b32 %s, %s, %s" % (
                s(ST + i), s(ST + i - 1 if i > 5 else ST), KSTEP_B, s(ST + i), s(sU1), s(ST + i), s(sU0), s(ST + i)))
    bias2 = ["v_lshlrev_b32 %s, 16, %s" % (v(ACC + 16 + e), v(VB2 + e // 4)) for e in range(16)]
    bias2 += ["v_mul_f32 %s, 0x3e800000, %s" % (v(ACC + e), v(ACC + 16 + e)) for e in range(16)]
    for n, x in enumerate(setup2):
        add_extra(extra, 7 + n // 2 + (4 if n >= 18 else 0), [x])
    first = max(40, 48 - DEP[1] + 1)
    add_extra(extra, first - 1, table2[:1])
    add_extra(extra, first, table2[1:3])
    for i in range(1, 12):
        add_extra(extra, first + i, [table2[2 + i]])
    for n, x in enumerate(bias2):
        add_extra(extra, 47 + n // 4 + (2 if n >= 12 else 0), [x])
    add_extra(extra, 47, ["s_or_b32 %s, s2, %s\ns_cbranch_scc1 L_noepoch\ns_mov_b32 %s, %d\ns_buffer_atomic_swap %s, %s, %s\nL_noepoch:" % (
        s(sZ), s(sWAVE), s(sZ), EPOCH, s(sTAG), s(SWS, 4), s(sZ))])
    TE, UE, US = E("TE", 0), E("UE", 44), E("US", 4)
    for n, x in enumerate(w2[:TE]):
        add_extra(extra, UE + n // US, [x])
    assert T0 <= DEP[1]
    A.c('==== GEMM1: wave = K quarter; 4 blocks (16 d x 64 f) x 16 k-steps, own block last; partial sums exchanged through LDS')
    units(1, 16, 4, va1, w2[4 * EW + TE:4 * EW + TE + T0], extra, (0, 3))
    st(A, "g1")
    A.c('==== GELU(u) = u / (1 + exp2(-(k1*u + k3*u^3))), publish g (write-through)')
    U = ACC + 48
    T = RB
    A("s_waitcnt lgkmcnt(0)")
    A("s_nop 3")
    for h in range(2):
        r2 = range(8 * h, 8 * h + 8, 2)
        r1 = range(8 * h, 8 * h + 8)
        gl = []
        gl += ["v_pk_add_f32 %s, %s, %s" % (v(U + e, 2), v(U + e, 2), v(PS + e, 2)) for e in r2]
        gl += ["v_pk_mul_f32 %s, %s, %s" % (v(T + e, 2), v(U + e, 2), v(U + e, 2)) for e in r2]
        gl += ["v_pk_fma_f32 %s, %s, %s, %s op_sel:[0,0,1] op_sel_hi:[1,0,1]" % (v(T + e, 2), v(T + e, 2), v(vT0, 2), v(vT0, 2)) for e in r2]
        gl += ["v_pk_mul_f32 %s, %s, %s" % (v(T + e, 2), v(T + e, 2), v(U + e, 2)) for e in r2]
        gl += ["v_exp_f32 %s, %s" % (v(T + e), v(T + e)) for e in r1]
        gl += ["v_pk_add_f32 %s, %s, 1.0 op_sel_hi:[1,0]" % (v(T + e, 2), v(T + e, 2)) for e in r2]
        gl += ["v_rcp_f32 %s, %s" % (v(T + e), v(T + e)) for e in r1]
        gl += ["v_pk_mul_f32 %s, %s, %s" % (v(U + e, 2), v(U + e, 2), v(T + e, 2)) for e in r2]
        gl += ["v_cvt_pk_bf16_f32 %s, %s, %s" % (v(T + 16 + e // 2), v(U + e), v(U + e + 1)) for e in r2]
        ins = w2[4 * EW + TE + T0 + h * MG0:4 * EW + TE + T0 + MG0 + h * MG]
        for n, x in enumerate(gl):
            if ins and n % max(1, 36 // (MG if h else MG0)) == 0:
                A(vm.op(*ins.pop(0)))
            A(x)
        assert not ins
        A(vm.op("buffer_store_dwordx4 %s, %s, %s, %s offen sc1" % (v(T + 16 + 4 * h, 4), v(vFA), s(SWS, 4), s(sT0 + h)), "gst"))
    if E("RACY", 0) == 1:
        A(flag_store(FS2, s(sT2)))
    if E("RACY", 0) == 2:
        A("s_mov_b64 exec, 1")
        A(vm.op("buffer_store_dword %s, %s, %s, %s offen sc1" % (v(vTAG), v(vFA), s(SWS, 4), s(sT2)), "fl2", True))
        A("s_mov_b64 exec, -1")
    if E("RACY", 0) == 3:
        A("s_mov_b64 exec, 1")
        A(vm.op("buffer_atomic_swap %s, %s, %s, %s offen" % (v(vTAG), v(vFA), s(SWS, 4), s(sT2)), "fl2", True))
        A("s_mov_b64 exec, -1")
    st(A, "gst")
    A("L_join:")

    def flag2():
        if E("RACY", 0):
            return
        A("s_cmp_eq_u32 %s, 0" % s(sMAIN))
        A("s_cbranch_scc1 L_noflag")
        A(flag_store(FS2, s(sT2)) if SA else vm.op(flag_store(FS2, s(sT2)), "fl2", True))
        A("L_noflag:")
        st(A, "fl2")

    va2 = lambda blk: VA + 4 - blk
    A.c('==== w2 tile -> AGPRs; flag 2 once the g stores are done; poll; first g loads')
    w_stream(2, 12, w2, 4 * EW + TE + T0 + MG0 + MG, DW2A, DW2B, DW2, PE2, [act_load(2, n, 12, va2) for n in range(DEPTH)], [], "gst", flag2, [], [])
    st(A, "w2")
    extra = {}
    OP, OB = 144, 16384
    vOW, vOR, vOS = VW1, VW1 + 1, VW1 + 2
    oa = ["v_and_b32 %s, 15, v0" % v(vT0),
          "v_lshrrev_b32 %s, 4, v0" % v(vT1),
          "v_mul_u32_u24 %s, 1280, %s" % (v(vFA), v(vT0)),
          "v_lshl_add_u32 %s, %s, 3, %s" % (v(vFA), v(vT1), v(vFA)),
          "v_mul_u32_u24 %s, %d, %s" % (v(vOW), OP, v(vT0)),
          "v_lshl_add_u32 %s, %s, 3, %s" % (v(vOW), v(vT1), v(vOW)),
          "s_lshl_b32 %s, %s, 5" % (s(sT1), s(sC)),
          "v_add_u32 %s, %s, %s" % (v(vOW), s(sT1), v(vOW)),
          "v_lshrrev_b32 %s, 3, v0" % v(vT0),
          "v_and_b32 %s, 7, v0" % v(vT1),
          "v_mul_u32_u24 %s, %d, %s" % (v(vOR), OP, v(vT0)),
          "v_lshl_add_u32 %s, %s, 4, %s" % (v(vOR), v(vT1), v(vOR)),
          "s_mul_i32 %s, %s, %d" % (s(sT1), s(sWAVE), 16 * OP),
          "v_add_u32 %s, %s, %s" % (v(vOR), s(sT1), v(vOR)),
          "v_mul_u32_u24 %s, 1280, %s" % (v(vOS), v(vT0)),
          "v_lshl_add_u32 %s, %s, 4, %s" % (v(vOS), v(vT1), v(vOS)),
          "s_lshl2_add_u32 %s, %s, %s" % (s(sT0), s(sST), s(sWAVE)),
          "s_mul_i32 %s, %s, %d" % (s(sT0), s(sT0), 16 * 1280),
          "s_lshl_b32 %s, %s, 5" % (s(sT1), s(sDT2)),
          "s_add_u32 %s, %s, %s" % (s(sU2), s(sT0), s(sT1)),
          "s_lshl2_add_u32 %s, %s, %s" % (s(sT0), s(sT1), s(sT0)),
          "s_add_u32 %s, %s, %d" % (s(sT1), s(sT0), 8 * 1280)]
    for n, x in enumerate(oa):
        add_extra(extra, 1 + n // 2, [x])
    for blk in range(4):
        w = xwrites(blk, blk)
        for o in range(4):
            add_extra(extra, 12 * (blk + 1) + 2 + (o // 2 if blk >= 2 else o), [w[o]])
    adds = exchange(extra, ACC + 64, 48, 41)
    adds[0] = "s_waitcnt lgkmcnt(4)\n" + adds[0]
    Y = RB + 16
    add_extra(extra, 44, ["ds_read_b128 %s, %s offset:%d" % (v(Y + sw * 4, 4), v(vX4B if sw & 2 else vX4), (sw & 1) * REG) for sw in range(4)])
    for e in range(16):
        add_extra(extra, 45 + e // 6, [adds[e]])
    add_extra(extra, 47, ["s_nop 0"])
    add_extra(extra, 60 - BL, ["s_waitcnt lgkmcnt(0)\ns_barrier"])
    for o, x in enumerate(xread(PS, 1)):
        add_extra(extra, 61 - BL + o // 2, [x])
    l = ["v_add_f32 %s, %s, %s" % (v(Y + e), v(Y + e), v(Y + 4 + e)) for e in (0, 1, 2, 3, 8, 9, 10, 11)]
    l[0] = "s_waitcnt lgkmcnt(0)\n" + l[0]
    add_extra(extra, 48, l[:4])
    add_extra(extra, 49, l[4:])
    add_extra(extra, 52, ["v_add_f32 %s, %s, %s" % (v(Y + e), v(Y + e), v(Y + 8 + e)) for e in range(4)])
    add_extra(extra, 53, ["v_cvt_pk_bf16_f32 %s, %s, %s" % (v(Y), v(Y), v(Y + 1)),
                          "v_cvt_pk_bf16_f32 %s, %s, %s" % (v(Y + 1), v(Y + 2), v(Y + 3))])
    tile4 = ("buffer_store_dwordx2 %s, %s, %s, %s offen offset:1024 sc1" % (v(Y, 2), v(vFA), s(SOUT, 4), s(sU2)), "o4")
    add_extra(extra, 54, [tile4])
    A.c('==== GEMM2: wave = K quarter; 5 blocks (16 d x 64 s) x 12 k-steps, own block last')
    units(2, 12, 5, va2, [], extra, (0, 1, 4))
    st(A, "g2")
    A.c('final sums -> bf16 -> LDS -> full 128-byte output lines')
    U = ACC + 64
    A("s_waitcnt lgkmcnt(0)")
    A("s_nop 3")
    for q in range(4):
        A("v_pk_add_f32 %s, %s, %s" % (v(U + 4 * q, 2), v(U + 4 * q, 2), v(PS + 4 * q, 2)))
        A("v_pk_add_f32 %s, %s, %s" % (v(U + 4 * q + 2, 2), v(U + 4 * q + 2, 2), v(PS + 4 * q + 2, 2)))
        A("v_cvt_pk_bf16_f32 %s, %s, %s" % (v(RB + 2 * q), v(U + 4 * q), v(U + 4 * q + 1)))
        A("v_cvt_pk_bf16_f32 %s, %s, %s" % (v(RB + 2 * q + 1), v(U + 4 * q + 2), v(U + 4 * q + 3)))
        A("ds_write_b64 %s, %s offset:%d" % (v(vOW), v(RB + 2 * q, 2), OB + 16 * OP * q))
    A("s_waitcnt lgkmcnt(0)")
    A("s_barrier")
    for j in range(2):
        A("ds_read_b128 %s, %s offset:%d" % (v(RB + 8 + 4 * j, 4), v(vOR), OB + 8 * OP * j))
    for j in range(2):
        A("s_waitcnt lgkmcnt(%d)" % (1 - j))
        A("buffer_store_dwordx4 %s, %s, %s, %s offen sc1" % (v(RB + 8 + 4 * j, 4), v(vOS), s(SOUT, 4), s(sT0 + j)))
    if E("XD", 0) >= 2:
        A("s_waitcnt vmcnt(0) lgkmcnt(0)")
        A("s_load_dword s66, s[68:69], 0")
        A("s_memrealtime s[72:73]")
        A("s_waitcnt lgkmcnt(0)")
        A("s_not_b32 s66, s66")
        A("s_sub_u32 s66, s74, s66")
        A("s_max_i32 s66, s66, 0")
        A("s_min_i32 s66, s66, 3000")
        A("s_mul_i32 s66, s66, %d" % E("EM", 10))
        A("L_echo:")
        A("s_memrealtime s[70:71]")
        A("s_waitcnt lgkmcnt(0)")
        A("s_sub_u32 s67, s70, s72")
        A("s_cmp_lt_u32 s67, s66")
        A("s_cbranch_scc1 L_echo")
    if E("XD", 0) == 1:
        A("s_getreg_b32 s66, hwreg(HW_REG_XCC_ID)")
        A("s_and_b32 s66, s66, 15")
        A("s_and_b32 s64, s64, 0xffff")
        A("s_mul_i32 s64, s64, 100")
        A("s_add_u32 s66, s66, s64")
        A("s_and_b32 s69, s69, 0xffff")
        A("s_mov_b32 s70, 64")
        A("s_mov_b32 s71, 0x20000")
        A("s_lshl_b32 s67, s2, 2")
        A("v_mov_b32 v1, 0")
        A("v_mov_b32 v2, s66")
        A("buffer_store_dword v2, v1, s[68:71], s67 offen")
    st(A, "ost")
    stamp_flush(A, 0, s(sWAVE), 14, "L_st", wave=-1)
    A("L_done:")
    A("s_endpgm")
    A.c('==== the 16 workgroups without a GEMM1 tile: flag 1, GEMM2 setup, part of w2 and the code into L2, then join')
    A("L_helper:")
    A("s_waitcnt vmcnt(0)")
    A(flag_store(FS1, "0"))
    A("s_barrier")
    if E("HL", 0):
        A("v_not_b32 %s, %s" % (v(vPOLL), v(vTAG)))
        poll_check("L_phl")
    L(bias_perm)
    L(w2_off)
    L(setup2 + table2)
    A("s_waitcnt lgkmcnt(0)")
    L(bias2)
    touch = ""
    if E("HT", 0):
        A("v_lshlrev_b32 %s, 12, v0" % v(vT0))
        A("s_bfe_u32 %s, s2, 0x10003" % s(sU1))
        A("s_mul_i32 %s, %s, %d" % (s(sU1), s(sU1), 192 * 4096))
        A("s_add_u32 %s, %s, %s" % (s(sU0), s(sW2BASE), s(sU1)))
        for n in range(3):
            A("s_add_u32 %s, %s, %d" % (s(sU1), s(sU0), n * 64 * 4096))
            A("buffer_load_dword v164, %s, %s, %s offen" % (v(vT0), s(SW2, 4), s(sU1)))
        A("s_waitcnt vmcnt(0)")
    if HP:
        assert XA2 == 1
        A("v_and_b32 %s, 3, v0" % v(vT0))
        A("v_lshlrev_b32 %s, 7, %s" % (v(vT0), v(vT0)))
        A("v_lshrrev_b32 %s, 2, v0" % v(vT1))
        A("v_lshl_add_u32 %s, %s, 12, %s" % (v(vT0), v(vT1), v(vT0)))
        A("s_and_b32 %s, s2, 7" % s(sU0))
        A("s_lshl_b32 %s, %s, 9" % (s(sU0), s(sU0)))
        A("s_mul_i32 %s, %s, %d" % (s(sU1), s(sWAVE), 12 * 32 * 4096))
        A("s_add_u32 %s, %s, %s" % (s(sU0), s(sU0), s(sU1)))
        A("s_bfe_u32 %s, s2, 0x10003" % s(sU1))
        A("s_lshl_b32 %s, %s, 16" % (s(sU1), s(sU1)))
        A("s_add_u32 %s, %s, %s" % (s(sU0), s(sU0), s(sU1)))
        order = [int(x) for x in os.environ.get("HPO", "8,9,10,11" if HO else "2,5,8,11").split(",")]
        for n in order[:HP]:
            touch += "s_add_u32 %s, %s, %d\n" % (s(sU1), s(sU0), n * 32 * 4096)
            touch += "buffer_load_dword v164, %s, %s, %s offen sc1\n" % (v(vT0), s(SW2, 4), s(sU1))
        if not E("HR", 0):
            A(touch)
            touch = ""
    L([t for t, _ in w2[:4 * EW + TE + T0 + MG0 + MG]])
    A("v_mov_b32 %s, %d" % (v(vEA), EPOCH))
    A("v_not_b32 %s, %s" % (v(vPOLL), v(vTAG)))
    if E("HW", 1):
        also = ""
        if E("HC", 1):
            A("s_getpc_b64 s[24:25]")
            A("L_pc2:")
            A("s_sub_u32 s24, s24, L_pc2 - L_p1_ok")
            A("s_subb_u32 s25, s25, 0")
            A("v_lshlrev_b32 %s, 7, v0" % v(vS0))
            A("v_lshl_add_u32 %s, %s, 13, %s" % (v(vS0), v(vWV), v(vS0)))
            A("v_min_u32 %s, L_helper - L_p1_ok - 4, %s" % (v(vS0), v(vS0)))
            also = "global_load_dword %s, %s, s[24:25] sc1" % (v(vS1), v(vS0))
        poll_check("L_ph", vEA, touch + also)
    A("s_waitcnt vmcnt(0) lgkmcnt(0)")
    A("s_branch L_join")
    A("L_end:")
    kernel_desc(A, NAME, 512, 256, 102)
    hdr = HEADER + DOC + "; @launch grid=(256,1,1) block=(256,1,1) lds=163840\n"
    txt = A.text()
    dbg = os.environ.get("DBG", "")
    if dbg:
        out = []
        for ln_ in txt.split("\n"):
            if "nohst" in dbg and "buffer_store_dwordx4" in ln_ and "v53" in ln_:
                ln_ = ln_.replace("buffer_store_dwordx4", "buffer_load_dwordx4").replace("v53", "v47").replace("s96", "0").replace("s97", "0").replace("s98", "0")
            if "plainh" in dbg and "buffer_store_dwordx4" in ln_ and "v53" in ln_:
                ln_ = ln_.replace(" sc1", "")
            if "nofl" in dbg and "buffer_store_dwordx4 v[20:23]" in ln_:
                ln_ = "    buffer_load_dword v164, v47, s[16:19], 0 offen"
            if "nobias" in dbg and ("s[24:27]" in ln_ or "s[28:31]" in ln_) and "buffer" in ln_:
                ln_ = "    buffer_load_dword v164, v47, s[16:19], 0 offen"
            if "nopoll" in dbg and "s_cbranch_vccz" in ln_:
                ln_ = ln_.replace("s_cbranch_vccz", "s_branch")
            if "nopoll" in dbg and "buffer_load_dword v18" in ln_:
                ln_ = "    buffer_load_dword v164, v47, s[16:19], 0 offen"
            if "w2hot" in dbg and "s[12:15]" in ln_ and " lds" in ln_:
                ln_ = ln_.replace(" lds", " sc1 lds").replace("s55", "s99")
            if "w1hot" in dbg and "s[8:11]" in ln_ and " lds" in ln_:
                ln_ = ln_.replace(" lds", " sc1 lds").replace("s55", "s99")
            if "acthot" in dbg and "buffer_load_dwordx4 v[" in ln_ and "s[16:19]" in ln_:
                import re
                ln_ = re.sub(r"s\[16:19\], s\d+", "s[16:19], s32", ln_)
            if "s[20:23]" in ln_ and "buffer_store" in ln_:
                if "noout" in dbg:
                    ln_ = "    s_nop 0" if "offset:1024" not in ln_ else ln_
                for f_ in ("sc1", "nt", "sc0"):
                    if "o" + f_ in dbg.split(",") and ("x4" in ln_ or "oall" in dbg):
                        ln_ += " " + f_
            if "buffer_load_dwordx4 v[" in ln_ and "s[16:19]" in ln_:
                if "aplain" in dbg:
                    ln_ = ln_.replace(" sc1", "")
                if "ant" in dbg:
                    ln_ += " nt"
                if "asc0" in dbg:
                    ln_ = ln_.replace(" sc1", " sc0 sc1")
            if " lds" in ln_ and "wsc1" in dbg:
                ln_ = ln_.replace(" lds", " sc1 lds")
            if "buffer_store_dwordx4" in ln_ and "s[16:19]" in ln_:
                if "ssc0" in dbg:
                    ln_ = ln_.replace(" sc1", " sc0 sc1")
                if "snt" in dbg:
                    ln_ += " nt"
            if "cyc" in dbg:
                ln_ = ln_.replace("s_memrealtime", "s_memtime")
            if "nomfma" in dbg and "v_mfma" in ln_:
                continue
            out.append(ln_)
        txt = "\n".join(out)
    return hdr + txt


if __name__ == "__main__":
    open(sys.argv[1], "w").write(gen())
```

```python
import sys
from asmlib import *
set_stamps(True)
out, mode, MF = sys.argv[1], sys.argv[2], int(sys.argv[3])
name = "standalone__mixer_token_mlp__prompt_kernel"
A = Asm()
A('.amdgcn_target "amdgcn-amd-amdhsa--gfx950"')
kernel_begin(A, name)
A("s_cmp_ge_u32 s2, 256")
A("s_cbranch_scc1 L_done")
stamp_init(A)
A("s_load_dwordx2 s[4:5], s[0:1], 56")
A("s_load_dwordx2 s[8:9], s[0:1], 8")
A("v_lshlrev_b32 v8, 4, v0")
A("v_lshrrev_b32 v14, 6, v0")
A("v_and_b32 v0, 63, v0")
A("v_readfirstlane_b32 s20, v14")
A("v_lshlrev_b32 v9, 4, v0")
A("s_waitcnt lgkmcnt(0)")
for d, n in ((4, 0x4000000), (8, 6291456)):
    A("s_and_b32 %s, %s, 0xffff" % (s(d + 1), s(d + 1)))
    A("s_mov_b32 %s, %d" % (s(d + 2), n))
    A("s_mov_b32 %s, 0x20000" % s(d + 3))
A("s_mul_i32 s21, s2, 16384")
for i in range(16):
    A("buffer_load_dwordx4 %s, v8, s[8:11], s21 offen" % a(4 * i, 4))
    A("s_add_u32 s21, s21, 4096")
A("s_waitcnt vmcnt(0)")
A("s_lshl_b32 s21, s2, 15")
for i in range(8):
    A("buffer_store_dwordx4 %s, v8, s[4:7], s21 offen sc1" % a(4 * i, 4))
    A("s_add_u32 s21, s21, 4096")
for i in range(16):
    A("v_mov_b32 %s, 0" % v(64 + i))
A("s_waitcnt vmcnt(0)")
A("s_add_u32 s26, s64, 900")
A("s_and_b32 s26, s26, 0xffffff00")
A("L_w:")
A("s_memrealtime s[24:25]")
A("s_waitcnt lgkmcnt(0)")
A("s_sub_u32 s27, s24, s26")
A("s_cmp_lt_i32 s27, 0")
A("s_cbranch_scc1 L_w")
A("s_cmp_ge_u32 s2, 240")
A("s_cbranch_scc1 L_done")
A("s_lshr_b32 s22, s2, 3")
A("s_mul_i32 s23, s22, 26")
A("s_lshr_b32 s23, s23, 8")
A("s_mul_i32 s23, s23, 10")
A("s_sub_u32 s22, s22, s23")
A("s_lshl_b32 s21, s20, 21")
BS = 1024
ROT = 0
if mode == "gen":
    WS_, STEP, TS, BS, ROT = map(int, sys.argv[4:9])
    A("s_mul_i32 s30, s22, 13")
    A("s_lshr_b32 s30, s30, 3")
    A("s_mul_i32 s21, s20, %d" % WS_)
    A("s_mul_i32 s22, s22, %d" % TS)
elif mode == "mix":
    A("s_lshl_b32 s22, s22, 12")
    STEP = 40960
elif mode.startswith("seg"):
    A("s_lshr_b32 s21, s20, 1")
    A("s_lshl_b32 s21, s21, 21")
    A("s_and_b32 s23, s20, 1")
    A("s_mul_i32 s23, s23, %d" % (16 * 49152))
    A("s_add_u32 s21, s21, s23")
    A("s_lshr_b32 s23, s22, 2")
    A("s_lshl_b32 s23, s23, 14")
    A("s_and_b32 s22, s22, 3")
    A("s_lshl_b32 s22, s22, 11")
    A("s_add_u32 s22, s22, s23")
    STEP = 49152
else:
    A("s_lshr_b32 s23, s22, 1")
    A("s_lshl_b32 s23, s23, 14")
    A("s_and_b32 s22, s22, 1")
    A("s_lshl_b32 s22, s22, 12")
    A("s_add_u32 s22, s22, s23")
    A("s_getreg_b32 s23, hwreg(HW_REG_XCC_ID)")
    A("s_bfe_u32 s23, s23, 0x10002")
    A("s_xor_b32 s23, s23, s20")
    A("s_xor_b32 s23, s23, %d" % int(mode[1]))
    A("s_and_b32 s23, s23, 1")
    A("s_lshl_b32 s23, s23, 13")
    A("s_add_u32 s22, s22, s23")
    STEP = 81920
A("s_add_u32 s21, s21, s22")
for j in range(4):
    A("s_xor_b32 s22, s20, %d" % j)
    if mode.startswith("seg"):
        if mode == "seg1":
            A("s_and_b32 s23, s2, 1")
            A("s_lshl_b32 s23, s23, 1")
            A("s_xor_b32 s22, s22, s23")
        if mode == "seg2":
            A("s_lshr_b32 s23, s2, 3")
            A("s_and_b32 s23, s23, 1")
            A("s_lshl_b32 s23, s23, 1")
            A("s_xor_b32 s22, s22, s23")
        A("s_and_b32 s23, s22, 2")
        A("s_mul_i32 s23, s23, 3")
        A("s_add_u32 s22, s22, s23")
    A("s_mul_i32 s22, s22, %d" % BS)
    A("s_add_u32 s22, s22, s21")
    A("v_add_u32 %s, s22, v9" % v(10 + j))
stamp(A, 1)
D = 9
def ld(n):
    if ROT:
        A("s_add_u32 s23, s30, %d" % (n % 16))
        A("s_and_b32 s23, s23, 15")
        A("s_mul_i32 s23, s23, %d" % STEP)
    else:
        A("s_mov_b32 s23, %d" % ((n % 16) * STEP))
    A("buffer_load_dwordx4 %s, %s, s[4:7], s23 offen sc1" % (v(16 + 4 * (n % 10), 4), v(10 + n // 16)))
for n in range(D):
    ld(n)
for n in range(64):
    A("s_waitcnt vmcnt(%d)" % min(D - 1, 63 - n))
    if n in (0, 16, 32, 48):
        stamp(A, 2 + n // 16)
    for o in range(4):
        if MF:
            A("v_mfma_f32_16x16x32_bf16 %s, %s, %s, %s" % (v(64 + 4 * o, 4), a(16 * (n % 4) + 4 * o, 4), v(16 + 4 * (n % 10), 4), v(64 + 4 * o, 4)))
        if o == 0 and n + D < 64:
            ld(n + D)
stamp(A, 6)
stamp_flush(A, 0, "s20", 7, "L_st", wave=-1)
A("L_done:")
A("s_endpgm")
kernel_desc(A, name, 256, 128, 100)
hdr = HEADER + "; @launch grid=(256,1,1) block=(256,1,1) lds=131072\n"
open(out, "w").write(hdr + A.text())
```
